```python
import torch

def _softmax(x, axis=-1):
    return torch.softmax(x, dim=axis)
def _gelu(x):
    return torch.nn.functional.gelu(x, approximate="tanh")
def _silu(x):
    return torch.nn.functional.silu(x)
def _sigmoid(x):
    return torch.sigmoid(x)
def _layernorm(x, axis=-1, eps=1e-5):
    m = x.mean(dim=axis, keepdim=True)
    v = x.var(dim=axis, keepdim=True, unbiased=False)
    return (x - m) / torch.sqrt(v + eps)
def _scatter_add(tgt, idx, src, axis=0):
    return tgt.clone().index_add_(axis, idx, src)
def _segment_sum(src, seg, n):
    out = torch.zeros((n,) + src.shape[1:], dtype=src.dtype)
    return out.index_add_(0, seg, src)
def _pad(x, pw):
    flat = tuple(v for pair in reversed(pw) for v in pair)
    return torch.nn.functional.pad(x, flat)

kernel_name = 'standalone__molecular_angular_dimenet__graph'

def setup_inputs():

    _w = (lambda a: (lambda t: t.to(torch.bfloat16) if t.is_floating_point() else t)(torch.as_tensor(a)))
    N, deg, D = 10000, 16, 128
    n_rbf, L = max(0, 1), max(3, 1)
    E = N * deg
    T = E * deg
    d = torch.abs((lambda *s: torch.randn(*s, dtype=torch.bfloat16) * 0.05)(E)) + 0.5
    theta = torch.abs((lambda *s: torch.randn(*s, dtype=torch.bfloat16) * 0.05)(T)) * 0.8 + 0.1
    return {
        "h": _w((lambda *s: torch.randn(*s, dtype=torch.bfloat16) * 0.05)(E, D)),
        "d": _w(d),
        "theta": _w(theta),
        "idx_kj": _w((lambda lo, hi, *s: torch.randint(lo, hi, s))(0, E, T).to(torch.int64)),
        "idx_ji": _w((lambda lo, hi, *s: torch.randint(lo, hi, s))(0, E, T).to(torch.int64)),
        "freq": _w(torch.arange(1, n_rbf + 1).to(float) * torch.pi / 5.0),
        "ell": _w(torch.arange(1, L + 1).to(float)),
        "w_sbf": _w((lambda *s: torch.randn(*s, dtype=torch.bfloat16) * 0.05)(n_rbf * L, D) * (n_rbf * L) ** -0.5),
        "w_rbf": _w((lambda *s: torch.randn(*s, dtype=torch.bfloat16) * 0.1)(n_rbf, D) * n_rbf ** -0.5),
    }

def reference(h, d, theta, idx_kj, idx_ji, freq, ell, w_sbf, w_rbf):
    E = h.shape[0]
    n_rbf = freq.shape[0]
    L = ell.shape[0]
    rbf = torch.sin(d[:, None] * freq[None, :]) / d[:, None]
    d_kj = d[idx_kj]
    rad = torch.sin(d_kj[:, None] * freq[None, :]) / d_kj[:, None]
    ang = torch.cos(theta[:, None] * ell[None, :])
    sbf = torch.reshape(rad[:, :, None] * ang[:, None, :], (-1, n_rbf * L))
    m = h[idx_kj] * (sbf @ w_sbf)
    agg = _segment_sum(m, idx_ji, E)
    return h * (rbf @ w_rbf) + agg
```

```python
import math
import struct
import sys

MAIN = "standalone__molecular_angular_dimenet__graph_kernel"
PART = "dn_part_kernel"

E, T = 160000, 2560000
NWG = 250
TILE = T // NWG
NW = 8
DPW = 80
NCH = 64
NB = 4
G = NB * 8
STRIDE_ROWS = NWG * NW * 4

WS_REC = 0
WS_OFF = NWG * TILE * 8
WS_RAD = WS_OFF + NWG * 1024

P_HIST, P_OFF, P_REC = 0, 1024, 2048
P_LDS = P_REC + TILE * 8

L_ZERO = 0
L_STG = 512
L_HIST = L_STG + NW * 512
L_N = L_HIST + NW * NCH * 4
L_SEG = L_N + 64
L_P = L_SEG + 1024
L_Q = L_P + 1024
L_REC = L_Q + 1024
LCAP = 2304
L_LDS = L_REC + NW * LCAP * 8
RSLOTS = 4
RMAX = RSLOTS * 512
assert RMAX + DPW <= LCAP and LCAP % G == 0 and L_LDS <= 163840 and L_REC % 16 == 0

F_SELF = 0x80000000
F_DUMMY = 0x40000000
ROWMASK = 0x03FFFF00
DUMMY_REC = F_DUMMY | ((E - 1) << 8)
M_DIV8000 = -(-(1 << 32) // STRIDE_ROWS)
M_CHUNK = -(-(NCH << 32) // E)
assert M_DIV8000 < (1 << 24) and M_CHUNK < (1 << 24) and ((E - 1) * M_CHUNK) >> 32 < NCH
assert all((e * M_DIV8000) >> 32 == e // STRIDE_ROWS for e in range(E))


def f2u(x):
    return struct.unpack("<I", struct.pack("<f", x))[0]


def u2f(u):
    return struct.unpack("<f", struct.pack("<I", u))[0]


INV2PI = 1.0 / (2.0 * math.pi)
C_HI = f2u(INV2PI) & 0xFFFFFF00
C_LO = f2u(INV2PI - u2f(C_HI))

DEFAULTS = dict(in_flags="nt", rec_st="", seg_ld="", row_ld="", out_st="", stamps=0)


class Asm:
    def __init__(self):
        self.l = []

    def __call__(self, s):
        for line in s.strip("\n").split("\n"):
            line = line.strip()
            if not line:
                continue
            if line.endswith(":") or line.startswith("."):
                self.l.append(line)
            else:
                self.l.append("    " + line)

    def text(self):
        return "\n".join(self.l) + "\n"


def srd(e, d, lo, hi, nbytes, add=None):
    if add is None:
        e(f"s_mov_b32 s{d}, s{lo}\ns_mov_b32 s{d+1}, s{hi}")
    else:
        e(f"s_add_u32 s{d}, s{lo}, {add}\ns_addc_u32 s{d+1}, s{hi}, 0")
    e(f"s_mov_b32 s{d+2}, {nbytes}\ns_mov_b32 s{d+3}, 0x20000")


def wave_scan(e, v):
    for ctl in ("row_shr:1 row_mask:0xf", "row_shr:2 row_mask:0xf", "row_shr:4 row_mask:0xf",
                "row_shr:8 row_mask:0xf", "row_bcast:15 row_mask:0xa", "row_bcast:31 row_mask:0xc"):
        e(f"s_nop 1\nv_add_u32_dpp v{v}, v{v}, v{v} {ctl} bank_mask:0xf")


def stamp(e, o, v):
    if o["stamps"]:
        e(f"s_memrealtime vcc\ns_waitcnt lgkmcnt(0)\nv_mov_b32 v{v}, vcc_lo")


def stamps_out(e, o, regs, region, nwaves):
    if not o["stamps"]:
        return
    e("s_waitcnt vmcnt(0)")
    stamp(e, o, regs[-1])
    e("s_load_dwordx2 s[4:5], s[0:1], 88\ns_waitcnt lgkmcnt(0)")
    srd(e, 12, 4, 5, NWG * nwaves * 32, region)
    e(f"s_mul_i32 s4, s2, {nwaves}\ns_add_u32 s4, s4, s3\ns_lshl_b32 s4, s4, 5\nv_mov_b32 v0, s4")
    for k, r in enumerate(regs):
        e(f"buffer_store_dword v{r}, v0, s[12:15], 0 offen offset:{4*k}")


def gen_part(o):
    e = Asm()
    fl = o["in_flags"]
    JI, KJ, TH = 4, 16, 28
    VD = 33
    U, REM, HA, RK = 36, 46, 56, 66
    R = 76
    S = 96
    e(f"""
{PART}:
s_cmp_ge_u32 s2, {NWG}
s_cbranch_scc1 LP_end
s_load_dwordx8 s[12:19], s[0:1], 8
s_load_dwordx2 s[20:21], s[0:1], 40
s_load_dwordx2 s[22:23], s[0:1], 88
""")
    stamp(e, o, 110)
    e(f"""
v_lshlrev_b32 v1, 4, v0
v_lshlrev_b32 v2, 3, v0
v_lshlrev_b32 v3, 2, v0
v_lshlrev_b32 v34, 1, v0
v_mov_b32 v35, 0
ds_write_b32 v3, v35
v_lshrrev_b32 v35, 6, v0
s_mul_i32 s4, s2, {TILE*4}
s_mul_i32 s5, s2, {TILE*2}
s_mul_i32 s6, s2, {TILE*8}
v_readfirstlane_b32 s3, v35
s_mul_i32 s7, s2, {E//NWG*2}
s_lshl_b32 s8, s2, 10
s_mov_b32 s9, 16384
s_mov_b32 s10, 32768
s_mov_b32 s11, 8192
s_waitcnt lgkmcnt(0)
s_load_dword s24, s[20:21], 0
""")
    srd(e, 28, 18, 19, TILE * 4, "s4")
    srd(e, 32, 16, 17, TILE * 4, "s4")
    srd(e, 36, 14, 15, TILE * 2, "s5")
    srd(e, 48, 12, 13, E // NWG * 2, "s7")
    e(f"""
buffer_load_dwordx4 v[{JI}:{JI+3}], v1, s[28:31], 0 offen {fl}
buffer_load_dwordx4 v[{JI+4}:{JI+7}], v1, s[28:31], s9 offen {fl}
buffer_load_dwordx2 v[{JI+8}:{JI+9}], v2, s[28:31], s10 offen {fl}
buffer_load_ushort v{VD}, v34, s[48:51], 0 offen
buffer_load_dwordx4 v[{KJ}:{KJ+3}], v1, s[32:35], 0 offen {fl}
buffer_load_dwordx4 v[{KJ+4}:{KJ+7}], v1, s[32:35], s9 offen {fl}
buffer_load_dwordx2 v[{KJ+8}:{KJ+9}], v2, s[32:35], s10 offen {fl}
buffer_load_dwordx2 v[{TH}:{TH+1}], v2, s[36:39], 0 offen {fl}
buffer_load_dwordx2 v[{TH+2}:{TH+3}], v2, s[36:39], s11 offen {fl}
buffer_load_dword v{TH+4}, v3, s[36:39], s9 offen {fl}
""")
    srd(e, 40, 22, 23, TILE * 8, "s6")
    e(f"s_add_u32 s8, s8, {WS_OFF}")
    srd(e, 44, 22, 23, NWG * 4, "s8")
    e(f"s_add_u32 s7, s7, {WS_RAD}")
    srd(e, 52, 22, 23, E // NWG * 2, "s7")
    e(f"""
s_mov_b32 s25, {-STRIDE_ROWS}
v_mov_b32 v35, 8
s_barrier
""")
    for k in range(10):
        if k in (0, 4, 8):
            e(f"s_waitcnt vmcnt({9 - k // 4})")
        e(f"""
v_mul_hi_u32_u24 v{U+k}, {M_DIV8000}, v{JI+k}
v_mad_i32_i24 v{REM+k}, v{U+k}, s25, v{JI+k}
v_lshrrev_b32 v{HA+k}, 3, v{REM+k}
v_and_b32 v{HA+k}, 0x3fc, v{HA+k}
ds_add_rtn_u32 v{RK+k}, v{HA+k}, v35 offset:{P_HIST}
v_and_b32 v{JI+k}, 3, v{JI+k}
v_lshl_add_u32 v{U+k}, v{U+k}, 2, v{JI+k}
v_bfe_u32 v{REM+k}, v{REM+k}, 2, 3
""")
    e(f"""
s_waitcnt vmcnt(6) lgkmcnt(0)
s_barrier
""")
    stamp(e, o, 111)
    e(f"""
s_lshl_b32 s24, s24, 16
v_and_b32 v{S+12}, 63, v0
v_lshlrev_b32 v{S+12}, 4, v{S+12}
ds_read_b128 v[{S}:{S+3}], v{S+12} offset:{P_HIST}
v_lshlrev_b32 v{VD}, 16, v{VD}
v_mul_f32 v{S+8}, s24, v{VD}
v_cvt_pk_bf16_f32 v{S+8}, v{S+8}, v{S+8}
v_lshlrev_b32 v{S+8}, 16, v{S+8}
v_mul_f32 v{S+9}, {hex(C_HI)}, v{S+8}
v_fract_f32 v{S+9}, v{S+9}
v_fmac_f32 v{S+9}, {hex(C_LO)}, v{S+8}
v_sin_f32 v{S+9}, v{S+9}
v_rcp_f32 v{VD}, v{VD}
v_cvt_pk_bf16_f32 v{S+9}, v{S+9}, v{S+9}
v_lshlrev_b32 v{S+9}, 16, v{S+9}
v_mul_f32 v{S+9}, v{S+9}, v{VD}
v_cvt_pk_bf16_f32 v{S+9}, v{S+9}, v{S+9}
buffer_store_short v{S+9}, v34, s[52:55], 0 offen
s_waitcnt lgkmcnt(0)
v_add_u32 v{S+1}, v{S}, v{S+1}
v_add_u32 v{S+2}, v{S+1}, v{S+2}
v_add_u32 v{S+3}, v{S+2}, v{S+3}
v_mov_b32 v{S+8}, v{S+3}
""")
    wave_scan(e, S + 8)
    e(f"""
v_sub_u32 v{S+4}, v{S+8}, v{S+3}
v_add_u32 v{S+5}, v{S+4}, v{S}
v_add_u32 v{S+6}, v{S+4}, v{S+1}
v_add_u32 v{S+7}, v{S+4}, v{S+2}
ds_write_b128 v{S+12}, v[{S+4}:{S+7}] offset:{P_OFF}
""")
    for k in range(10):
        e(f"ds_read_b32 v{HA+k}, v{HA+k} offset:{P_OFF}")
    e(f"""
s_waitcnt vmcnt(1)
s_cmp_lg_u32 s3, 0
s_cbranch_scc1 LP_nooff
v_lshrrev_b32 v{S}, 3, v{S+4}
v_lshrrev_b32 v{S+1}, 3, v{S+5}
v_lshrrev_b32 v{S+2}, 3, v{S+6}
v_lshrrev_b32 v{S+3}, 3, v{S+7}
v_lshl_or_b32 v{S}, v{S+5}, 13, v{S}
v_lshl_or_b32 v{S+1}, v{S+6}, 13, v{S+1}
v_lshl_or_b32 v{S+2}, v{S+7}, 13, v{S+2}
v_lshl_or_b32 v{S+3}, v{S+8}, 13, v{S+3}
buffer_store_dwordx4 v[{S}:{S+3}], v{S+12}, s[44:47], 0 offen
LP_nooff:
""")
    stamp(e, o, 112)
    for k in range(10):
        r0, r1 = R + 2 * k, R + 2 * k + 1
        th = TH + k // 2
        e(f"""
v_mul_hi_u32_u24 v{r1}, {M_CHUNK}, v{KJ+k}
v_lshl_or_b32 v{r0}, v{KJ+k}, 7, v{U+k}
v_lshl_add_u32 v{r1}, v{REM+k}, 6, v{r1}
{f'v_lshrrev_b32 v{JI+k}, 16, v{th}' if k & 1 else f'v_and_b32 v{JI+k}, 0xffff, v{th}'}
v_lshlrev_b32 v{r0}, 1, v{r0}
v_lshl_or_b32 v{r1}, v{r1}, 18, v{JI+k}
""")
        if k == 0:
            e("s_waitcnt lgkmcnt(0)")
        e(f"v_add_u32 v{HA+k}, v{HA+k}, v{RK+k}\nds_write_b64 v{HA+k}, v[{r0}:{r1}] offset:{P_REC}")
    e("s_waitcnt lgkmcnt(0)\ns_barrier")
    stamp(e, o, 113)
    e(f"v_add_u32 v2, {3*16384}, v1")
    for j in range(5):
        a, off = (1, j * 16384) if j < 3 else (2, (j - 3) * 16384)
        e(f"ds_read_b128 v[{4+4*j}:{7+4*j}], v{a} offset:{P_REC+off}")
    for j in range(5):
        e(f"s_mov_b32 s4, {j*16384}\ns_waitcnt lgkmcnt({4-j})")
        e(f"buffer_store_dwordx4 v[{4+4*j}:{7+4*j}], v1, s[40:43], s4 offen {o['rec_st']}")
    stamps_out(e, o, [110, 111, 112, 113, 114], 32 << 20, 16)
    e("LP_end:\ns_endpgm")
    return e.text()


def gen_main(o):
    e = Asm()
    ACC, ROW = 0, 160
    FILT = ROW + G
    UNP = FILT + 16
    A = UNP + 16
    W = A + 4
    AU = W + 4
    (VCUR, VNXT, VCLEAN, VN2, VTH, VRAD, VRA, VAD, VAA, VAB, VQ, VT0, VT1, VSW, VLANE, VSE) = range(AU + 8, AU + 24)
    assert VSE <= 255
    SI = 36
    SM = 36
    X = ROW
    VONE = VRAD
    SE0, SE1, SE2 = 30, 31, 32
    S_NIT, S_N, S_MODE = 28, 29, 35
    S_TOT, S_BASE = 100, 101
    MA, MB = 24, 26

    e(f"""
{MAIN}:
s_cmp_ge_u32 s2, {NWG}
s_cbranch_scc1 LM_end
s_load_dwordx2 s[4:5], s[0:1], 0
s_load_dwordx2 s[6:7], s[0:1], 88
s_load_dwordx4 s[40:43], s[0:1], 56
s_load_dwordx2 s[44:45], s[0:1], 48
""")
    stamp(e, o, VAA)
    e(f"""
v_lshrrev_b32 v{X}, 6, v0
v_and_b32 v{VLANE}, 63, v0
v_lshlrev_b32 v{X+1}, 2, v0
v_readfirstlane_b32 s3, v{X}
v_mov_b32 v{X+2}, 0
ds_write_b32 v{X+1}, v{X+2} offset:{L_HIST}
ds_write_b32 v{X+1}, v{X+2} offset:{L_ZERO}
s_and_b32 s33, s2, 7
s_lshr_b32 s34, s2, 3
s_min_u32 s2, s33, 2
s_mul_i32 s33, s33, 31
s_add_u32 s2, s2, s33
s_add_u32 s2, s2, s34
v_and_b32 v{X+3}, 15, v{VLANE}
v_lshlrev_b32 v{VQ}, 4, v{X+3}
v_lshrrev_b32 v{X+4}, 5, v{VLANE}
v_lshl_add_u32 v{X+5}, v{X+3}, 1, v{X+4}
s_lshl_b32 s33, s3, 15
s_lshl_b32 s34, s2, 2
s_add_u32 s33, s33, s34
v_lshl_add_u32 v{X+6}, v{X+5}, 10, s33
s_waitcnt lgkmcnt(0)
""")
    srd(e, 24, 6, 7, NWG * 1024, WS_OFF)
    e(f"buffer_load_dword v{VSE}, v{X+6}, s[24:27], 0 offen")
    e("s_load_dwordx2 s[46:47], s[44:45], 0")
    srd(e, 12, 40, 41, 768)
    srd(e, 36, 42, 43, 256)
    e(f"""
v_bfe_u32 v{X+7}, v{VLANE}, 4, 1
v_lshl_add_u32 v{X+7}, v{X+7}, 1, v{X+4}
v_lshl_add_u32 v{X+7}, v{X+7}, 1, v{VQ}
buffer_load_ushort v{W}, v{X+7}, s[12:15], 0 offen
buffer_load_ushort v{FILT}, v{X+7}, s[12:15], 0 offen offset:256
buffer_load_ushort v{W+1}, v{X+7}, s[12:15], 0 offen offset:512
buffer_load_ushort v{FILT+1}, v{X+7}, s[36:39], 0 offen
buffer_load_ushort v{W+2}, v{X+7}, s[12:15], 0 offen offset:8
buffer_load_ushort v{FILT+2}, v{X+7}, s[12:15], 0 offen offset:264
buffer_load_ushort v{W+3}, v{X+7}, s[12:15], 0 offen offset:520
buffer_load_ushort v{FILT+3}, v{X+7}, s[36:39], 0 offen offset:8
""")
    srd(e, 8, 4, 5, E * 256)
    srd(e, 16, 6, 7, NWG * TILE * 8)
    srd(e, 20, 6, 7, E * 2, WS_RAD)
    e("s_barrier")
    e(f"""
v_and_b32 v{X+8}, 1, v{VLANE}
v_cmp_eq_u32 s[4:5], v{X+8}, v{X+4}
v_bfe_u32 v{X+9}, v{VLANE}, 2, 1
v_cmp_eq_u32 vcc, 0, v{X+9}
s_and_b64 s[{MA}:{MA+1}], s[4:5], vcc
s_andn2_b64 s[{MB}:{MB+1}], s[4:5], vcc
v_bfe_u32 v{X+10}, v{VLANE}, 1, 1
v_lshlrev_b32 v{X+8}, 4, v{X+8}
v_mov_b32 v{X+11}, 0x3f80
v_lshlrev_b32 v{X+8}, v{X+8}, v{X+11}
v_lshrrev_b32 v{X+11}, 4, v{VLANE}
v_sub_u32 v{X+12}, v{X+11}, v{X+10}
v_bfe_u32 v{X+13}, v{VLANE}, 2, 2
v_lshl_add_u32 v{X+13}, v{X+12}, 2, v{X+13}
""")
    for u in range(2):
        for r in range(4):
            e(f"v_cmp_eq_u32 vcc, {8*u+r}, v{X+13}\ns_nop 1\nv_cndmask_b32 v{AU+4*u+r}, 0, v{X+8}, vcc")
    def self_slots(base):
        e(f"""
s_lshl_b32 s33, s2, 5
s_lshl_b32 s34, s3, 2
s_add_u32 s33, s33, s34
s_lshl_b32 s34, s3, 6
""")
        for k in range(2):
            r0, r1 = base + 2 * k, base + 2 * k + 1
            e(f"""
v_add_u32 v{VT0}, {64*k}, v{VLANE}
v_lshrrev_b32 v{VT1}, 2, v{VT0}
v_mul_u32_u24 v{VT1}, {STRIDE_ROWS}, v{VT1}
v_and_b32 v{r1}, 3, v{VT0}
v_add3_u32 v{VT1}, v{VT1}, v{r1}, s33
v_mul_hi_u32_u24 v{r1}, {M_CHUNK}, v{VT1}
v_lshl_or_b32 v{r0}, v{VT1}, 7, v{VT0}
v_add_u32 v{r1}, s34, v{r1}
v_lshlrev_b32 v{r0}, 1, v{r0}
v_lshlrev_b32 v{r1}, 18, v{r1}
v_or_b32 v{r0}, {hex(F_SELF)}, v{r0}
""")
    self_slots(68)
    e(f"""
v_and_b32 v{X+14}, 31, v{VLANE}
v_lshlrev_b32 v{X+14}, 1, v{X+14}
v_mul_u32_u24 v{X+15}, {TILE*8}, v{X+4}
v_mov_b32 v{VONE}, 8
s_mul_i32 s33, s3, {32*TILE*8}
s_mov_b32 s{S_MODE}, 0
s_waitcnt vmcnt(8) lgkmcnt(0)
s_lshl_b32 s{SE0}, s46, 16
s_and_b32 s{SE1}, s46, 0xffff0000
s_lshl_b32 s{SE2}, s47, 16
""")
    e(f"""
v_lshrrev_b32 v{X+16}, 16, v{VSE}
v_and_b32 v{X+17}, 0xffff, v{VSE}
v_sub_u32 v{X+16}, v{X+16}, v{X+17}
v_cmp_lt_u32 s[4:5], 64, v{X+16}
s_mov_b64 s[12:13], 0
s_mov_b64 s[14:15], 0
s_and_b32 s4, s4, 0xffff
s_and_b32 s5, s5, 0xffff
s_cmp_eq_u64 s[4:5], 0
s_cbranch_scc1 LM_noextra
v_mov_b32 v{X+17}, 128
v_cmp_gt_u32 vcc, v{X+16}, v{X+17}
s_bcnt1_i32_b64 s6, s[4:5]
s_cmp_gt_u32 s6, 2
s_cselect_b32 s{S_MODE}, 1, 0
s_cmp_lg_u64 vcc, 0
s_cselect_b32 s{S_MODE}, 1, s{S_MODE}
""")
    for k in range(2):
        if k:
            e("s_cmp_eq_u64 s[4:5], 0\ns_cbranch_scc1 LM_noextra")
        e(f"""
s_ff1_i32_b64 s6, s[4:5]
s_bitset0_b64 s[4:5], s6
v_readlane_b32 s7, v{VSE}, s6
s_and_b32 s34, s6, 15
s_lshr_b32 s6, s6, 5
s_lshl_b32 s34, s34, 1
s_add_u32 s6, s6, s34
s_mul_i32 s6, s6, {TILE*8}
s_add_u32 s6, s6, s33
s_and_b32 s34, s7, 0xffff
s_lshr_b32 s7, s7, 16
s_add_u32 s34, s34, 64
v_add_u32 v{X+17}, s34, v{VLANE}
v_cmp_gt_u32 s[{12+2*k}:{13+2*k}], s7, v{X+17}
v_lshlrev_b32 v{X+17}, 3, v{X+17}
s_mov_b64 exec, s[{12+2*k}:{13+2*k}]
buffer_load_dwordx2 v[{64+2*k}:{65+2*k}], v{X+17}, s[16:19], s6 offen {o['seg_ld']}
s_mov_b64 exec, -1
""")
    e("LM_noextra:")
    for i in range(16):
        t, en = X + 16 + 2 * (i & 1), X + 17 + 2 * (i & 1)
        e(f"""
v_mov_b32_dpp v{t}, v{VSE} row_newbcast:{i} row_mask:0xf bank_mask:0xf
v_lshrrev_b32 v{en}, 16, v{t}
v_and_b32 v{t}, 0xffff, v{t}
v_add_u32 v{t}, v{t}, v{X+14}
v_cmp_lt_u32 s[{SM+4*i}:{SM+4*i+1}], v{t}, v{en}
v_subrev_u32 v{en}, 1, v{en}
v_cmp_lt_i32 s[{SM+4*i+2}:{SM+4*i+3}], v{t}, v{en}
v_lshl_add_u32 v{t}, v{t}, 3, v{X+15}
s_mov_b64 exec, s[{SM+4*i}:{SM+4*i+1}]
buffer_load_dwordx4 v[{4*i}:{4*i+3}], v{t}, s[16:19], s33 offen {o['seg_ld']}
s_mov_b64 exec, -1
s_add_u32 s33, s33, {2*TILE*8}
""")
    e("s_waitcnt vmcnt(16)")
    for i in range(4):
        e(f"v_lshl_or_b32 v{W+i}, v{FILT+i}, 16, v{W+i}")

    def setexec(m):
        if m == "all":
            e("s_mov_b64 exec, -1")
        elif m == "lo16":
            e("s_mov_b64 exec, 0xffff")
        else:
            e(f"s_mov_b64 exec, s[{m}:{m+1}]")

    def phase1(slots):
        for (m, r, a, wait) in slots:
            if wait is not None:
                e(f"s_waitcnt vmcnt({wait})")
            setexec(m)
            e(f"v_lshrrev_b32 v{a}, 16, v{r+1}\nds_add_u32 v{a}, v{VONE} offset:{L_HIST}")
        e("s_mov_b64 exec, -1\ns_waitcnt lgkmcnt(0)\ns_barrier")

    def phase2(slots, lead=4):
        ops = []
        n = len(slots)
        for s in range(n + lead):
            if s < n:
                m, r, a, _ = slots[s]
                setexec(m)
                e(f"ds_add_rtn_u32 v{a}, v{a}, v{VONE} offset:{L_HIST}")
                ops.append(("A", s))
            if s >= lead:
                m, r, a, _ = slots[s - lead]
                younger = len(ops) - 1 - ops.index(("A", s - lead))
                assert younger <= 15
                setexec(m)
                e(f"s_waitcnt lgkmcnt({younger})\nds_write_b64 v{a}, v[{r}:{r+1}] offset:{L_REC}")
                ops.append(("W", s - lead))
        e("s_mov_b64 exec, -1")

    def scan_exchange(flagged):
        e(f"""
s_lshl_b32 s4, s3, 8
v_lshl_add_u32 v{X+1}, v{VLANE}, 2, s4
ds_read_b32 v{X+2}, v{X+1} offset:{L_HIST}
s_mul_i32 s5, s3, {LCAP*8}
s_waitcnt lgkmcnt(0)
v_mov_b32 v{X+3}, v{X+2}
""")
        wave_scan(e, X + 3)
        e(f"""
v_sub_u32 v{X+2}, v{X+3}, v{X+2}
v_readlane_b32 s{S_N}, v{X+3}, 63
v_add_u32 v{X+2}, s5, v{X+2}
ds_write_b32 v{X+1}, v{X+2} offset:{L_HIST}
s_lshr_b32 s{S_N}, s{S_N}, 3
s_mov_b32 s6, s{S_N}
""")
        if flagged:
            e(f"s_cmp_lg_u32 s{S_MODE}, 0\ns_cselect_b32 s6, 0x7fffffff, s6")
        e(f"""
s_lshl_b32 s4, s3, 2
v_mov_b32 v{X+2}, s4
v_mov_b32 v{X+3}, s6
ds_write_b32 v{X+2}, v{X+3} offset:{L_N}
v_mov_b32 v{X+1}, 0
s_waitcnt lgkmcnt(0)
s_barrier
ds_read_b128 v[{X+4}:{X+7}], v{X+1} offset:{L_N}
ds_read_b128 v[{X+8}:{X+11}], v{X+1} offset:{L_N+16}
s_waitcnt lgkmcnt(0)
v_max3_u32 v{X+4}, v{X+4}, v{X+5}, v{X+6}
v_max3_u32 v{X+7}, v{X+7}, v{X+8}, v{X+9}
v_max3_u32 v{X+4}, v{X+4}, v{X+10}, v{X+11}
v_max_u32 v{X+4}, v{X+4}, v{X+7}
s_nop 0
v_readfirstlane_b32 s{S_NIT}, v{X+4}
""")

    fast = [("all", 68, 72, None), ("lo16", 70, 73, None)]
    for i in range(16):
        fast.append((SM + 4 * i, 4 * i, 74 + 2 * i, 15 - i))
        fast.append((SM + 4 * i + 2, 4 * i + 2, 75 + 2 * i, None))
    fast += [(12, 64, 106, None), (14, 66, 107, None)]
    stamp(e, o, VAB)
    phase1(fast)
    stamp(e, o, VCUR)
    scan_exchange(True)
    stamp(e, o, VNXT)
    e(f"s_cmp_gt_u32 s{S_NIT}, {LCAP}\ns_cbranch_scc1 LM_slow")
    phase2(fast)
    for i in range(2 * DPW):
        if not (i < 108):
            e(f"v_mov_b32 v{ACC+i}, 0")
    e("s_waitcnt lgkmcnt(0)")
    for i in range(108):
        e(f"v_mov_b32 v{ACC+i}, 0")

    e(f"""
LM_tail:
s_add_u32 s{S_NIT}, s{S_NIT}, {G-1}
s_and_b32 s{S_NIT}, s{S_NIT}, {-G}
s_mul_i32 s5, s3, {LCAP*8}
v_mov_b32 v{X+2}, {hex(DUMMY_REC)}
LM_tailloop:
v_add_u32 v{X}, s{S_N}, v{VLANE}
v_cmp_gt_u32 vcc, s{S_NIT}, v{X}
v_lshl_add_u32 v{X+1}, v{X}, 3, s5
s_mov_b64 exec, vcc
ds_write_b32 v{X+1}, v{X+2} offset:{L_REC}
s_mov_b64 exec, -1
s_add_u32 s{S_N}, s{S_N}, 64
s_cmp_lt_u32 s{S_N}, s{S_NIT}
s_cbranch_scc1 LM_tailloop
v_and_b32 v{X}, 15, v{VLANE}
v_lshrrev_b32 v{X+1}, 4, v{VLANE}
v_lshl_add_u32 v{X}, v{X}, 2, v{X+1}
s_add_u32 s5, s5, {L_REC}
v_lshl_add_u32 v{VRA}, v{X}, 3, s5
s_lshl_b32 s4, s3, 9
s_add_u32 s4, s4, {L_STG}
v_lshl_add_u32 v{VSW}, v{X}, 3, s4
v_bfe_u32 v{X}, v{VLANE}, 3, 2
v_bfe_u32 v{X+1}, v{VLANE}, 1, 1
v_lshl_add_u32 v{X}, v{X}, 1, v{X+1}
v_lshl_add_u32 v{VAD}, v{X}, 3, s4
s_waitcnt lgkmcnt(0)
s_barrier
""")
    if o["stamps"]:
        for k, r in enumerate((VAA, VAB, VCUR, VNXT)):
            e(f"v_readfirstlane_b32 s{92+k}, v{r}")
        stamp(e, o, VAA)
        e(f"s_nop 0\nv_readfirstlane_b32 s96, v{VAA}")

    def adr():
        e(f"v_cndmask_b32 v{VAA}, 0, v{VAD}, s[{MA}:{MA+1}]\nv_cndmask_b32 v{VAB}, 0, v{VAD}, s[{MB}:{MB+1}]")

    def readA(b):
        e(f"ds_read_b64 v[{A}:{A+1}], v{VAA} offset:{b*64}\nds_read_b64 v[{A+2}:{A+3}], v{VAB} offset:{b*64}")

    def filt():
        e(f"v_mfma_f32_32x32x16_bf16 v[{FILT}:{FILT+15}], v[{A}:{A+3}], v[{W}:{W+3}], 0")

    def loads(b):
        for i, t in enumerate((VT0, VT1)):
            e(f"v_or_b32_dpp v{t}, v{VCLEAN}, v{VQ} row_newbcast:{2*b+i} row_mask:0xf bank_mask:0xf")
            e(f"buffer_load_dwordx4 v[{ROW+b*8+4*i}:{ROW+b*8+4*i+3}], v{t}, s[8:11], 0 offen {o['row_ld']}")

    def half_on():
        e("s_mov_b32 exec_lo, 0x00ff00ff\ns_mov_b32 exec_hi, 0x00ff00ff")

    def gather(dst, rec):
        e(f"v_bfe_u32 v{dst}, v{rec}, 8, 18\nv_lshlrev_b32 v{dst}, 1, v{dst}")
        e(f"buffer_load_ushort v{dst}, v{dst}, s[20:23], 0 offen")

    def jit(rec, rad):
        t = UNP
        e(f"""
v_lshlrev_b32 v{VTH}, 16, v{VTH}
v_mul_f32 v{t}, s{SE0}, v{VTH}
v_mul_f32 v{t+1}, s{SE1}, v{VTH}
v_mul_f32 v{t+2}, s{SE2}, v{VTH}
v_cvt_pk_bf16_f32 v{t+1}, v{t}, v{t+1}
v_cvt_pk_bf16_f32 v{t+2}, v{t+2}, v{t+2}
v_lshlrev_b32 v{t}, 16, v{t+1}
v_and_b32 v{t+1}, 0xffff0000, v{t+1}
v_and_b32 v{t+2}, 0xffff0000, v{t+2}
""")
        for k in range(3):
            e(f"v_mul_f32 v{t+3+k}, {hex(C_HI)}, v{t+k}")
        for k in range(3):
            e(f"v_fract_f32 v{t+3+k}, v{t+3+k}")
        for k in range(3):
            e(f"v_fmac_f32 v{t+3+k}, {hex(C_LO)}, v{t+k}")
        for k in range(3):
            e(f"v_cos_f32 v{t+3+k}, v{t+3+k}")
        e(f"""
v_lshlrev_b32 v{t+6}, 16, v{rad}
v_cvt_pk_bf16_f32 v{t+1}, v{t+3}, v{t+4}
v_cvt_pk_bf16_f32 v{t+2}, v{t+5}, v{t+5}
v_cmp_gt_u32 vcc, {hex(F_DUMMY)}, v{rec}
v_lshlrev_b32 v{t}, 16, v{t+1}
v_and_b32 v{t+1}, 0xffff0000, v{t+1}
v_and_b32 v{t+2}, 0xffff0000, v{t+2}
v_mul_f32 v{t}, v{t}, v{t+6}
v_mul_f32 v{t+1}, v{t+1}, v{t+6}
v_mul_f32 v{t+2}, v{t+2}, v{t+6}
v_ashrrev_i32 v{t+3}, 31, v{rec}
v_cvt_pk_bf16_f32 v{t}, v{t}, v{t+1}
v_cvt_pk_bf16_f32 v{t+1}, v{t+2}, 0
v_and_b32 v{t+3}, v{t+3}, v{t+6}
v_cndmask_b32 v{t}, 0, v{t}, vcc
v_cndmask_b32 v{t+1}, v{t+3}, v{t+1}, vcc
ds_write_b64 v{VSW}, v[{t}:{t+1}]
v_xor_b32 v{VSW}, 256, v{VSW}
""")

    def batch(b, steady):
        if steady:
            cnt = 2 * NB - 2 if b == 0 else 2 * NB - 1
        else:
            cnt = 2 * NB - 1 if b == 0 else 2 * (NB - 1 - b)
        e(f"s_waitcnt vmcnt({cnt})")
        for i in range(2):
            for u in range(2):
                d = UNP + 8 * i + 4 * u
                e(f"v_mfma_f32_16x16x32_bf16 v[{d}:{d+3}], v[{AU+4*u}:{AU+4*u+3}], v[{ROW+b*8+4*i}:{ROW+b*8+4*i+3}], 0")
        if steady:
            loads(b)
        for j in range(8):
            t = b * 8 + j
            e(f"v_readlane_b32 s{SI+j}, v{VCUR}, {16*(t&3)+(t>>2)}")
        if steady and b == NB - 1:
            e(f"""
v_mov_b32 v{VCUR}, v{VNXT}
v_mov_b32 v{VNXT}, v{VN2}
v_and_b32 v{VCLEAN}, {hex(ROWMASK)}, v{VN2}
v_add_u32 v{VRA}, {G*8}, v{VRA}
ds_read_b32 v{VN2}, v{VRA} offset:{2*G*8}
""")
        for j in range(8):
            e(f"s_set_gpr_idx_on s{SI}, gpr_idx(SRC2,DST)" if j == 0 else f"s_set_gpr_idx_idx s{SI+j}")
            e(f"v_pk_fma_f32 v[{ACC}:{ACC+1}], v[{UNP+2*j}:{UNP+2*j+1}], v[{FILT+2*j}:{FILT+2*j+1}], v[{ACC}:{ACC+1}]")
        e("s_set_gpr_idx_off")
        if steady or b < NB - 1:
            e(f"s_waitcnt lgkmcnt({1 if steady and b == NB - 1 else 0})")
            filt()
            if steady and b == NB - 2:
                e(f"v_xor_b32 v{VAD}, 256, v{VAD}")
                adr()
            if steady or b < NB - 2:
                readA((b + 2) % NB)
        if steady and b == 0:
            half_on()
            jit(VNXT, VRAD)
            gather(VRAD, VN2)
            e(f"s_mov_b64 exec, -1\nds_read_b32 v{VTH}, v{VRA} offset:{2*G*8+4}")

    e(f"""
ds_read_b32 v{VCUR}, v{VRA}
ds_read_b32 v{VNXT}, v{VRA} offset:{G*8}
ds_read_b32 v{VTH}, v{VRA} offset:4
ds_read_b32 v{VN2}, v{VRA} offset:{2*G*8}
""")
    adr()
    e(f"s_waitcnt lgkmcnt(0)\nv_and_b32 v{VCLEAN}, {hex(ROWMASK)}, v{VCUR}")
    half_on()
    gather(FILT, VCUR)
    e("s_mov_b64 exec, -1")
    loads(0)
    half_on()
    gather(VRAD, VNXT)
    e("s_mov_b64 exec, -1")
    for b in range(1, NB):
        loads(b)
    e(f"v_and_b32 v{VCLEAN}, {hex(ROWMASK)}, v{VNXT}\ns_waitcnt vmcnt({2*NB+1})")
    half_on()
    jit(VCUR, FILT)
    e(f"s_mov_b64 exec, -1\nds_read_b32 v{VTH}, v{VRA} offset:{G*8+4}")
    readA(0)
    e("s_waitcnt lgkmcnt(0)")
    filt()
    readA(1)
    e(f"s_cmp_le_u32 s{S_NIT}, {G}\ns_cbranch_scc1 LM_drain\n.p2align 6\nLM_loop:")
    for b in range(NB):
        batch(b, True)
    e(f"""
s_barrier
s_sub_u32 s{S_NIT}, s{S_NIT}, {G}
s_cmp_gt_u32 s{S_NIT}, {G}
s_cbranch_scc1 LM_loop
LM_drain:
""")
    for b in range(NB):
        batch(b, False)
    e(f"""
s_waitcnt lgkmcnt(0)
s_cmp_eq_u32 s{S_MODE}, 0
s_cbranch_scc1 LM_out
s_add_u32 s{S_BASE}, s{S_BASE}, {RMAX}
s_cmp_lt_u32 s{S_BASE}, s{S_TOT}
s_cbranch_scc1 LM_round
LM_out:
s_load_dwordx2 s[4:5], s[0:1], 72
""")
    stamp(e, o, VAA)
    e(f"""
s_lshl_b32 s33, s2, 5
s_lshl_b32 s34, s3, 2
s_add_u32 s33, s33, s34
s_lshl_b32 s33, s33, 8
v_lshlrev_b32 v{VT0}, 4, v{VLANE}
s_waitcnt lgkmcnt(0)
""")
    srd(e, 12, 4, 5, E * 256)
    for i in range(DPW // 4):
        y = ROW + 4 * (i % 4)
        for j in range(4):
            a = ACC + 8 * i + 2 * j
            e(f"v_cvt_pk_bf16_f32 v{y+j}, v{a}, v{a+1}")
        e(f"""
s_nop 1
v_permlane16_swap_b32 v{y}, v{y+1}
v_permlane16_swap_b32 v{y+2}, v{y+3}
s_nop 1
v_permlane32_swap_b32 v{y}, v{y+2}
v_permlane32_swap_b32 v{y+1}, v{y+3}
buffer_store_dwordx4 v[{y}:{y+3}], v{VT0}, s[12:15], s33 offen {o['out_st']}
s_add_u32 s33, s33, {STRIDE_ROWS*256}
""")
    if o["stamps"]:
        for k in range(5):
            e(f"v_mov_b32 v{8+k}, s{92+k}")
    stamps_out(e, o, [8, 9, 10, 11, 12, VAA, VAB], 33 << 20, NW)
    e("LM_end:\ns_endpgm")

    e(f"""
LM_slow:
s_mov_b32 s{S_MODE}, 1
s_lshl_b32 s4, s3, 7
v_and_b32 v{X}, 15, v{VLANE}
v_lshrrev_b32 v{X+1}, 5, v{VLANE}
v_lshl_add_u32 v{X}, v{X}, 1, v{X+1}
v_lshl_add_u32 v{X}, v{X}, 2, s4
ds_write_b32 v{X}, v{VSE} offset:{L_SEG}
v_lshlrev_b32 v{X+1}, 4, v{VLANE}
s_waitcnt lgkmcnt(0)
s_barrier
ds_read_b128 v[{X+4}:{X+7}], v{X+1} offset:{L_SEG}
v_mul_u32_u24 v{X+2}, {4*TILE}, v{VLANE}
s_waitcnt lgkmcnt(0)
""")
    for k in range(4):
        e(f"""
v_lshrrev_b32 v{X+8+k}, 16, v{X+4+k}
v_and_b32 v{X+4+k}, 0xffff, v{X+4+k}
v_sub_u32 v{X+8+k}, v{X+8+k}, v{X+4+k}
""")
    e(f"""
v_add_u32 v{X+9}, v{X+8}, v{X+9}
v_add_u32 v{X+10}, v{X+9}, v{X+10}
v_add_u32 v{X+11}, v{X+10}, v{X+11}
v_mov_b32 v{X+3}, v{X+11}
""")
    wave_scan(e, X + 3)
    e(f"""
v_sub_u32 v{X+12}, v{X+3}, v{X+11}
v_readlane_b32 s{S_TOT}, v{X+3}, 63
v_add_u32 v{X+13}, v{X+12}, v{X+8}
v_add_u32 v{X+14}, v{X+12}, v{X+9}
v_add_u32 v{X+15}, v{X+12}, v{X+10}
ds_write_b128 v{X+1}, v[{X+12}:{X+15}] offset:{L_P}
""")
    for k in range(4):
        e(f"""
v_sub_u32 v{X+4+k}, v{X+4+k}, v{X+12+k}
v_add_u32 v{X+4+k}, v{X+4+k}, v{X+2}
v_add_u32 v{X+2}, {TILE}, v{X+2}
""")
    e(f"ds_write_b128 v{X+1}, v[{X+4}:{X+7}] offset:{L_Q}")
    for i in range(2 * DPW):
        e(f"v_mov_b32 v{ACC+i}, 0")
    SR = X + 12
    SA = SR + 2 * (RSLOTS + 2)
    assert SA + RSLOTS + 2 <= ROW + G
    e(f"""
s_mov_b32 s{S_BASE}, 0
LM_round:
s_lshl_b32 s4, s3, 6
v_add_u32 v{X}, s4, v{VLANE}
v_lshlrev_b32 v{X+1}, 2, v{X}
v_mov_b32 v{X+2}, 0
v_mov_b32 v{VONE}, 8
ds_write_b32 v{X+1}, v{X+2} offset:{L_HIST}
v_add_u32 v{X}, s{S_BASE}, v{X}
""")
    for j in range(RSLOTS):
        e(f"v_cmp_gt_u32 s[{SM+2*j}:{SM+2*j+1}], s{S_TOT}, v{X}\nv_mov_b32 v{X+3}, 0")
        for st in (128, 64, 32, 16, 8, 4, 2, 1):
            e(f"""
ds_read_b32 v{X+4}, v{X+3} offset:{L_P+4*st}
v_add_u32 v{X+5}, {4*st}, v{X+3}
s_waitcnt lgkmcnt(0)
v_cmp_le_u32 vcc, v{X+4}, v{X}
s_nop 1
v_cndmask_b32 v{X+3}, v{X+3}, v{X+5}, vcc
""")
        e(f"""
ds_read_b32 v{X+4}, v{X+3} offset:{L_Q}
s_waitcnt lgkmcnt(0)
v_add_lshl_u32 v{X+4}, v{X+4}, v{X}, 3
s_mov_b64 exec, s[{SM+2*j}:{SM+2*j+1}]
buffer_load_dwordx2 v[{SR+2*j}:{SR+2*j+1}], v{X+4}, s[16:19], 0 offen
s_mov_b64 exec, -1
v_add_u32 v{X}, 512, v{X}
""")
    self_slots(SR + 2 * RSLOTS)
    m0 = SM + 2 * RSLOTS
    e(f"""
s_cmp_eq_u32 s{S_BASE}, 0
s_cselect_b64 s[{m0}:{m0+1}], -1, 0
s_cselect_b32 s{m0+2}, 0xffff, 0
s_mov_b32 s{m0+3}, 0
s_waitcnt vmcnt(0) lgkmcnt(0)
s_barrier
""")
    slow = [(SM + 2 * j, SR + 2 * j, SA + j, None) for j in range(RSLOTS + 2)]
    phase1(slow)
    scan_exchange(False)
    phase2(slow)
    e("s_branch LM_tail")
    return e.text()


HEADER = """; DimeNet angular message passing on gfx950.
"""


def kd(name, vgpr):
    return f""".p2align 6
.amdhsa_kernel {name}
  .amdhsa_next_free_vgpr {vgpr}
  .amdhsa_next_free_sgpr 102
  .amdhsa_accum_offset {vgpr}
  .amdhsa_group_segment_fixed_size 0
  .amdhsa_kernarg_size 96
  .amdhsa_user_sgpr_count 2
  .amdhsa_user_sgpr_kernarg_segment_ptr 1
  .amdhsa_system_sgpr_workgroup_id_x 1
  .amdhsa_float_denorm_mode_32 3
.end_amdhsa_kernel
"""


def generate(**kw):
    o = dict(DEFAULTS)
    o.update(kw)
    s = HEADER
    s += f"; @launch kernel={PART} grid=({NWG},1,1) block=(1024,1,1) lds={P_LDS}\n"
    s += f"; @launch kernel={MAIN} grid=({NWG},1,1) block=(512,1,1) lds={L_LDS}\n"
    s += '.amdgcn_target "amdgcn-amd-amdhsa--gfx950"\n.text\n'
    for name, body in ((PART, gen_part(o)), (MAIN, gen_main(o))):
        s += f".globl {name}\n.p2align 8\n.type {name},@function\n{body}"
    s += '.section .rodata,"a"\n' + kd(PART, 120 if o["stamps"] else 112) + kd(MAIN, 256)
    return s


if __name__ == "__main__":
    out = sys.argv[1]
    kw = {}
    for a in sys.argv[2:]:
        k, v = a.split("=", 1)
        kw[k] = int(v) if v.lstrip("-").isdigit() else v.replace("_", " ")
    open(out, "w").write(generate(**kw))
```

```python
import math
import struct
import sys

MAIN = "standalone__molecular_angular_dimenet__graph_kernel"
PART = "dn_part_kernel"

E, T = 160000, 2560000
NWG = 250
TILE = T // NWG
NW = 8
DPW = 80
NCH = 64
NB = 4
G = NB * 8
STRIDE_ROWS = NWG * NW * 4

WS_REC = 0
WS_OFF = NWG * TILE * 8
WS_RAD = WS_OFF + NWG * 1024

P_HIST, P_OFF, P_REC = 0, 1024, 2048
P_LDS = P_REC + TILE * 8

L_ZERO = 0
L_STG = 512
L_HIST = L_STG + NW * 512
L_N = L_HIST + NW * NCH * 4
L_SEG = L_N + 64
L_P = L_SEG + 1024
L_Q = L_P + 1024
L_REC = L_Q + 1024
LCAP = 2304
L_LDS = L_REC + NW * LCAP * 8
RSLOTS = 4
RMAX = RSLOTS * 512
assert RMAX + DPW <= LCAP and LCAP % G == 0 and L_LDS <= 163840 and L_REC % 16 == 0

F_SELF = 0x80000000
F_DUMMY = 0x40000000
ROWMASK = 0x03FFFF00
DUMMY_REC = F_DUMMY | ((E - 1) << 8)
M_DIV8000 = -(-(1 << 32) // STRIDE_ROWS)
M_CHUNK = -(-(NCH << 32) // E)
assert M_DIV8000 < (1 << 24) and M_CHUNK < (1 << 24) and ((E - 1) * M_CHUNK) >> 32 < NCH
assert all((e * M_DIV8000) >> 32 == e // STRIDE_ROWS for e in range(E))


def f2u(x):
    return struct.unpack("<I", struct.pack("<f", x))[0]


def u2f(u):
    return struct.unpack("<f", struct.pack("<I", u))[0]


INV2PI = 1.0 / (2.0 * math.pi)
C_HI = f2u(INV2PI) & 0xFFFFFF00
C_LO = f2u(INV2PI - u2f(C_HI))

DEFAULTS = dict(pre="", presrc=0, preoff=0, post=0, in_flags="nt", rec_st="", seg_ld="", row_ld="", out_st="", stamps=0)


class Asm:
    def __init__(self):
        self.l = []

    def __call__(self, s):
        for line in s.strip("\n").split("\n"):
            line = line.strip()
            if not line:
                continue
            if line.endswith(":") or line.startswith("."):
                self.l.append(line)
            else:
                self.l.append("    " + line)

    def text(self):
        return "\n".join(self.l) + "\n"


def srd(e, d, lo, hi, nbytes, add=None):
    if add is None:
        e(f"s_mov_b32 s{d}, s{lo}\ns_mov_b32 s{d+1}, s{hi}")
    else:
        e(f"s_add_u32 s{d}, s{lo}, {add}\ns_addc_u32 s{d+1}, s{hi}, 0")
    e(f"s_mov_b32 s{d+2}, {nbytes}\ns_mov_b32 s{d+3}, 0x20000")


def wave_scan(e, v):
    for ctl in ("row_shr:1 row_mask:0xf", "row_shr:2 row_mask:0xf", "row_shr:4 row_mask:0xf",
                "row_shr:8 row_mask:0xf", "row_bcast:15 row_mask:0xa", "row_bcast:31 row_mask:0xc"):
        e(f"s_nop 1\nv_add_u32_dpp v{v}, v{v}, v{v} {ctl} bank_mask:0xf")


def stamp(e, o, v):
    if o["stamps"]:
        e(f"s_memrealtime vcc\ns_waitcnt lgkmcnt(0)\nv_mov_b32 v{v}, vcc_lo")


def stamps_out(e, o, regs, region, nwaves):
    if not o["stamps"]:
        return
    e("s_waitcnt vmcnt(0)")
    stamp(e, o, regs[-1])
    e("s_load_dwordx2 s[4:5], s[0:1], 88\ns_waitcnt lgkmcnt(0)")
    srd(e, 12, 4, 5, NWG * nwaves * 32, region)
    e(f"s_mul_i32 s4, s2, {nwaves}\ns_add_u32 s4, s4, s3\ns_lshl_b32 s4, s4, 5\nv_mov_b32 v0, s4")
    for k, r in enumerate(regs):
        e(f"buffer_store_dword v{r}, v0, s[12:15], 0 offen offset:{4*k}")


def gen_part(o):
    e = Asm()
    fl = o["in_flags"]
    JI, KJ, TH = 4, 16, 28
    VD = 33
    U, REM, HA, RK = 36, 46, 56, 66
    R = 76
    S = 96
    e(f"""
{PART}:
s_cmp_ge_u32 s2, {NWG}
s_cbranch_scc1 LP_end
s_load_dwordx8 s[12:19], s[0:1], 8
s_load_dwordx2 s[20:21], s[0:1], 40
s_load_dwordx2 s[22:23], s[0:1], 88
""")
    stamp(e, o, 110)
    e(f"""
v_lshlrev_b32 v1, 4, v0
v_lshlrev_b32 v2, 3, v0
v_lshlrev_b32 v3, 2, v0
v_lshlrev_b32 v34, 1, v0
v_mov_b32 v35, 0
ds_write_b32 v3, v35
v_lshrrev_b32 v35, 6, v0
s_mul_i32 s4, s2, {TILE*4}
s_mul_i32 s5, s2, {TILE*2}
s_mul_i32 s6, s2, {TILE*8}
v_readfirstlane_b32 s3, v35
s_mul_i32 s7, s2, {E//NWG*2}
s_lshl_b32 s8, s2, 10
s_mov_b32 s9, 16384
s_mov_b32 s10, 32768
s_mov_b32 s11, 8192
s_waitcnt lgkmcnt(0)
s_load_dword s24, s[20:21], 0
""")
    srd(e, 28, 18, 19, TILE * 4, "s4")
    srd(e, 32, 16, 17, TILE * 4, "s4")
    srd(e, 36, 14, 15, TILE * 2, "s5")
    srd(e, 48, 12, 13, E // NWG * 2, "s7")
    e(f"""
buffer_load_dwordx4 v[{JI}:{JI+3}], v1, s[28:31], 0 offen {fl}
buffer_load_dwordx4 v[{JI+4}:{JI+7}], v1, s[28:31], s9 offen {fl}
buffer_load_dwordx2 v[{JI+8}:{JI+9}], v2, s[28:31], s10 offen {fl}
buffer_load_ushort v{VD}, v34, s[48:51], 0 offen
buffer_load_dwordx4 v[{KJ}:{KJ+3}], v1, s[32:35], 0 offen {fl}
buffer_load_dwordx4 v[{KJ+4}:{KJ+7}], v1, s[32:35], s9 offen {fl}
buffer_load_dwordx2 v[{KJ+8}:{KJ+9}], v2, s[32:35], s10 offen {fl}
buffer_load_dwordx2 v[{TH}:{TH+1}], v2, s[36:39], 0 offen {fl}
buffer_load_dwordx2 v[{TH+2}:{TH+3}], v2, s[36:39], s11 offen {fl}
buffer_load_dword v{TH+4}, v3, s[36:39], s9 offen {fl}
""")
    srd(e, 40, 22, 23, TILE * 8, "s6")
    e(f"s_add_u32 s8, s8, {WS_OFF}")
    srd(e, 44, 22, 23, NWG * 4, "s8")
    e(f"s_add_u32 s7, s7, {WS_RAD}")
    srd(e, 52, 22, 23, E // NWG * 2, "s7")
    e(f"""
s_mov_b32 s25, {-STRIDE_ROWS}
v_mov_b32 v35, 8
s_barrier
""")
    for k in range(10):
        if k in (0, 4, 8):
            e(f"s_waitcnt vmcnt({9 - k // 4})")
        e(f"""
v_mul_hi_u32_u24 v{U+k}, {M_DIV8000}, v{JI+k}
v_mad_i32_i24 v{REM+k}, v{U+k}, s25, v{JI+k}
v_lshrrev_b32 v{HA+k}, 3, v{REM+k}
v_and_b32 v{HA+k}, 0x3fc, v{HA+k}
ds_add_rtn_u32 v{RK+k}, v{HA+k}, v35 offset:{P_HIST}
v_and_b32 v{JI+k}, 3, v{JI+k}
v_lshl_add_u32 v{U+k}, v{U+k}, 2, v{JI+k}
v_bfe_u32 v{REM+k}, v{REM+k}, 2, 3
""")
    e(f"""
s_waitcnt vmcnt(6) lgkmcnt(0)
s_barrier
""")
    stamp(e, o, 111)
    e(f"""
s_lshl_b32 s24, s24, 16
v_and_b32 v{S+12}, 63, v0
v_lshlrev_b32 v{S+12}, 4, v{S+12}
ds_read_b128 v[{S}:{S+3}], v{S+12} offset:{P_HIST}
v_lshlrev_b32 v{VD}, 16, v{VD}
v_mul_f32 v{S+8}, s24, v{VD}
v_cvt_pk_bf16_f32 v{S+8}, v{S+8}, v{S+8}
v_lshlrev_b32 v{S+8}, 16, v{S+8}
v_mul_f32 v{S+9}, {hex(C_HI)}, v{S+8}
v_fract_f32 v{S+9}, v{S+9}
v_fmac_f32 v{S+9}, {hex(C_LO)}, v{S+8}
v_sin_f32 v{S+9}, v{S+9}
v_rcp_f32 v{VD}, v{VD}
v_cvt_pk_bf16_f32 v{S+9}, v{S+9}, v{S+9}
v_lshlrev_b32 v{S+9}, 16, v{S+9}
v_mul_f32 v{S+9}, v{S+9}, v{VD}
v_cvt_pk_bf16_f32 v{S+9}, v{S+9}, v{S+9}
buffer_store_short v{S+9}, v34, s[52:55], 0 offen
s_waitcnt lgkmcnt(0)
v_add_u32 v{S+1}, v{S}, v{S+1}
v_add_u32 v{S+2}, v{S+1}, v{S+2}
v_add_u32 v{S+3}, v{S+2}, v{S+3}
v_mov_b32 v{S+8}, v{S+3}
""")
    wave_scan(e, S + 8)
    e(f"""
v_sub_u32 v{S+4}, v{S+8}, v{S+3}
v_add_u32 v{S+5}, v{S+4}, v{S}
v_add_u32 v{S+6}, v{S+4}, v{S+1}
v_add_u32 v{S+7}, v{S+4}, v{S+2}
ds_write_b128 v{S+12}, v[{S+4}:{S+7}] offset:{P_OFF}
""")
    for k in range(10):
        e(f"ds_read_b32 v{HA+k}, v{HA+k} offset:{P_OFF}")
    e(f"""
s_waitcnt vmcnt(1)
s_cmp_lg_u32 s3, 0
s_cbranch_scc1 LP_nooff
v_lshrrev_b32 v{S}, 3, v{S+4}
v_lshrrev_b32 v{S+1}, 3, v{S+5}
v_lshrrev_b32 v{S+2}, 3, v{S+6}
v_lshrrev_b32 v{S+3}, 3, v{S+7}
v_lshl_or_b32 v{S}, v{S+5}, 13, v{S}
v_lshl_or_b32 v{S+1}, v{S+6}, 13, v{S+1}
v_lshl_or_b32 v{S+2}, v{S+7}, 13, v{S+2}
v_lshl_or_b32 v{S+3}, v{S+8}, 13, v{S+3}
buffer_store_dwordx4 v[{S}:{S+3}], v{S+12}, s[44:47], 0 offen
LP_nooff:
""")
    stamp(e, o, 112)
    for k in range(10):
        r0, r1 = R + 2 * k, R + 2 * k + 1
        th = TH + k // 2
        e(f"""
v_mul_hi_u32_u24 v{r1}, {M_CHUNK}, v{KJ+k}
v_lshl_or_b32 v{r0}, v{KJ+k}, 7, v{U+k}
v_lshl_add_u32 v{r1}, v{REM+k}, 6, v{r1}
{f'v_lshrrev_b32 v{JI+k}, 16, v{th}' if k & 1 else f'v_and_b32 v{JI+k}, 0xffff, v{th}'}
v_lshlrev_b32 v{r0}, 1, v{r0}
v_lshl_or_b32 v{r1}, v{r1}, 18, v{JI+k}
""")
        if k == 0:
            e("s_waitcnt lgkmcnt(0)")
        e(f"v_add_u32 v{HA+k}, v{HA+k}, v{RK+k}\nds_write_b64 v{HA+k}, v[{r0}:{r1}] offset:{P_REC}")
    e("s_waitcnt lgkmcnt(0)\ns_barrier")
    stamp(e, o, 113)
    e(f"v_add_u32 v2, {3*16384}, v1")
    for j in range(5):
        a, off = (1, j * 16384) if j < 3 else (2, (j - 3) * 16384)
        e(f"ds_read_b128 v[{4+4*j}:{7+4*j}], v{a} offset:{P_REC+off}")
    for j in range(5):
        e(f"s_mov_b32 s4, {j*16384}\ns_waitcnt lgkmcnt({4-j})")
        e(f"buffer_store_dwordx4 v[{4+4*j}:{7+4*j}], v1, s[40:43], s4 offen {o['rec_st']}")
    stamps_out(e, o, [110, 111, 112, 113, 114], 32 << 20, 16)
    e("LP_end:\ns_endpgm")
    return e.text()


def gen_main(o):
    e = Asm()
    ACC, ROW = 0, 160
    FILT = ROW + G
    UNP = FILT + 16
    A = UNP + 16
    W = A + 4
    AU = W + 4
    (VCUR, VNXT, VCLEAN, VN2, VTH, VRAD, VRA, VAD, VAA, VAB, VQ, VT0, VT1, VSW, VLANE, VSE) = range(AU + 8, AU + 24)
    assert VSE <= 255
    SI = 36
    SM = 36
    X = ROW
    VONE = VRAD
    SE0, SE1, SE2 = 30, 31, 32
    S_NIT, S_N, S_MODE = 28, 29, 35
    S_TOT, S_BASE = 100, 101
    MA, MB = 24, 26

    e(f"""
{MAIN}:
s_cmp_ge_u32 s2, {NWG}
s_cbranch_scc1 LM_end
s_load_dwordx2 s[4:5], s[0:1], 0
s_load_dwordx2 s[6:7], s[0:1], 88
s_load_dwordx4 s[40:43], s[0:1], 56
s_load_dwordx2 s[44:45], s[0:1], 48
""")
    stamp(e, o, VAA)
    e(f"""
v_lshrrev_b32 v{X}, 6, v0
v_and_b32 v{VLANE}, 63, v0
v_lshlrev_b32 v{X+1}, 2, v0
v_readfirstlane_b32 s3, v{X}
v_mov_b32 v{X+2}, 0
ds_write_b32 v{X+1}, v{X+2} offset:{L_HIST}
ds_write_b32 v{X+1}, v{X+2} offset:{L_ZERO}
s_and_b32 s33, s2, 7
s_lshr_b32 s34, s2, 3
s_min_u32 s2, s33, 2
s_mul_i32 s33, s33, 31
s_add_u32 s2, s2, s33
s_add_u32 s2, s2, s34
v_and_b32 v{X+3}, 15, v{VLANE}
v_lshlrev_b32 v{VQ}, 4, v{X+3}
v_lshrrev_b32 v{X+4}, 5, v{VLANE}
v_lshl_add_u32 v{X+5}, v{X+3}, 1, v{X+4}
s_lshl_b32 s33, s3, 15
s_lshl_b32 s34, s2, 2
s_add_u32 s33, s33, s34
v_lshl_add_u32 v{X+6}, v{X+5}, 10, s33
s_waitcnt lgkmcnt(0)
""")
    srd(e, 24, 6, 7, NWG * 1024, WS_OFF)
    e(f"buffer_load_dword v{VSE}, v{X+6}, s[24:27], 0 offen")
    e("s_load_dwordx2 s[46:47], s[44:45], 0")
    srd(e, 12, 40, 41, 768)
    srd(e, 36, 42, 43, 256)
    e(f"""
v_bfe_u32 v{X+7}, v{VLANE}, 4, 1
v_lshl_add_u32 v{X+7}, v{X+7}, 1, v{X+4}
v_lshl_add_u32 v{X+7}, v{X+7}, 1, v{VQ}
buffer_load_ushort v{W}, v{X+7}, s[12:15], 0 offen
buffer_load_ushort v{FILT}, v{X+7}, s[12:15], 0 offen offset:256
buffer_load_ushort v{W+1}, v{X+7}, s[12:15], 0 offen offset:512
buffer_load_ushort v{FILT+1}, v{X+7}, s[36:39], 0 offen
buffer_load_ushort v{W+2}, v{X+7}, s[12:15], 0 offen offset:8
buffer_load_ushort v{FILT+2}, v{X+7}, s[12:15], 0 offen offset:264
buffer_load_ushort v{W+3}, v{X+7}, s[12:15], 0 offen offset:520
buffer_load_ushort v{FILT+3}, v{X+7}, s[36:39], 0 offen offset:8
""")
    srd(e, 8, 4, 5, E * 256)
    srd(e, 16, 6, 7, NWG * TILE * 8)
    srd(e, 20, 6, 7, E * 2, WS_RAD)
    e("s_barrier")
    e(f"""
v_and_b32 v{X+8}, 1, v{VLANE}
v_cmp_eq_u32 s[4:5], v{X+8}, v{X+4}
v_bfe_u32 v{X+9}, v{VLANE}, 2, 1
v_cmp_eq_u32 vcc, 0, v{X+9}
s_and_b64 s[{MA}:{MA+1}], s[4:5], vcc
s_andn2_b64 s[{MB}:{MB+1}], s[4:5], vcc
v_bfe_u32 v{X+10}, v{VLANE}, 1, 1
v_lshlrev_b32 v{X+8}, 4, v{X+8}
v_mov_b32 v{X+11}, 0x3f80
v_lshlrev_b32 v{X+8}, v{X+8}, v{X+11}
v_lshrrev_b32 v{X+11}, 4, v{VLANE}
v_sub_u32 v{X+12}, v{X+11}, v{X+10}
v_bfe_u32 v{X+13}, v{VLANE}, 2, 2
v_lshl_add_u32 v{X+13}, v{X+12}, 2, v{X+13}
""")
    for u in range(2):
        for r in range(4):
            e(f"v_cmp_eq_u32 vcc, {8*u+r}, v{X+13}\ns_nop 1\nv_cndmask_b32 v{AU+4*u+r}, 0, v{X+8}, vcc")
    def self_slots(base):
        e(f"""
s_lshl_b32 s33, s2, 5
s_lshl_b32 s34, s3, 2
s_add_u32 s33, s33, s34
s_lshl_b32 s34, s3, 6
""")
        for k in range(2):
            r0, r1 = base + 2 * k, base + 2 * k + 1
            e(f"""
v_add_u32 v{VT0}, {64*k}, v{VLANE}
v_lshrrev_b32 v{VT1}, 2, v{VT0}
v_mul_u32_u24 v{VT1}, {STRIDE_ROWS}, v{VT1}
v_and_b32 v{r1}, 3, v{VT0}
v_add3_u32 v{VT1}, v{VT1}, v{r1}, s33
v_mul_hi_u32_u24 v{r1}, {M_CHUNK}, v{VT1}
v_lshl_or_b32 v{r0}, v{VT1}, 7, v{VT0}
v_add_u32 v{r1}, s34, v{r1}
v_lshlrev_b32 v{r0}, 1, v{r0}
v_lshlrev_b32 v{r1}, 18, v{r1}
v_or_b32 v{r0}, {hex(F_SELF)}, v{r0}
""")
    self_slots(68)
    e(f"""
v_and_b32 v{X+14}, 31, v{VLANE}
v_lshlrev_b32 v{X+14}, 1, v{X+14}
v_mul_u32_u24 v{X+15}, {TILE*8}, v{X+4}
v_mov_b32 v{VONE}, 8
s_mul_i32 s33, s3, {32*TILE*8}
s_mov_b32 s{S_MODE}, 0
s_waitcnt vmcnt(8) lgkmcnt(0)
s_lshl_b32 s{SE0}, s46, 16
s_and_b32 s{SE1}, s46, 0xffff0000
s_lshl_b32 s{SE2}, s47, 16
""")
    e(f"""
v_lshrrev_b32 v{X+16}, 16, v{VSE}
v_and_b32 v{X+17}, 0xffff, v{VSE}
v_sub_u32 v{X+16}, v{X+16}, v{X+17}
v_cmp_lt_u32 s[4:5], 64, v{X+16}
s_mov_b64 s[12:13], 0
s_mov_b64 s[14:15], 0
s_and_b32 s4, s4, 0xffff
s_and_b32 s5, s5, 0xffff
s_cmp_eq_u64 s[4:5], 0
s_cbranch_scc1 LM_noextra
v_mov_b32 v{X+17}, 128
v_cmp_gt_u32 vcc, v{X+16}, v{X+17}
s_bcnt1_i32_b64 s6, s[4:5]
s_cmp_gt_u32 s6, 2
s_cselect_b32 s{S_MODE}, 1, 0
s_cmp_lg_u64 vcc, 0
s_cselect_b32 s{S_MODE}, 1, s{S_MODE}
""")
    for k in range(2):
        if k:
            e("s_cmp_eq_u64 s[4:5], 0\ns_cbranch_scc1 LM_noextra")
        e(f"""
s_ff1_i32_b64 s6, s[4:5]
s_bitset0_b64 s[4:5], s6
v_readlane_b32 s7, v{VSE}, s6
s_and_b32 s34, s6, 15
s_lshr_b32 s6, s6, 5
s_lshl_b32 s34, s34, 1
s_add_u32 s6, s6, s34
s_mul_i32 s6, s6, {TILE*8}
s_add_u32 s6, s6, s33
s_and_b32 s34, s7, 0xffff
s_lshr_b32 s7, s7, 16
s_add_u32 s34, s34, 64
v_add_u32 v{X+17}, s34, v{VLANE}
v_cmp_gt_u32 s[{12+2*k}:{13+2*k}], s7, v{X+17}
v_lshlrev_b32 v{X+17}, 3, v{X+17}
s_mov_b64 exec, s[{12+2*k}:{13+2*k}]
buffer_load_dwordx2 v[{64+2*k}:{65+2*k}], v{X+17}, s[16:19], s6 offen {o['seg_ld']}
s_mov_b64 exec, -1
""")
    e("LM_noextra:")
    for i in range(16):
        t, en = X + 16 + 2 * (i & 1), X + 17 + 2 * (i & 1)
        e(f"""
v_mov_b32_dpp v{t}, v{VSE} row_newbcast:{i} row_mask:0xf bank_mask:0xf
v_lshrrev_b32 v{en}, 16, v{t}
v_and_b32 v{t}, 0xffff, v{t}
v_add_u32 v{t}, v{t}, v{X+14}
v_cmp_lt_u32 s[{SM+4*i}:{SM+4*i+1}], v{t}, v{en}
v_subrev_u32 v{en}, 1, v{en}
v_cmp_lt_i32 s[{SM+4*i+2}:{SM+4*i+3}], v{t}, v{en}
v_lshl_add_u32 v{t}, v{t}, 3, v{X+15}
s_mov_b64 exec, s[{SM+4*i}:{SM+4*i+1}]
buffer_load_dwordx4 v[{4*i}:{4*i+3}], v{t}, s[16:19], s33 offen {o['seg_ld']}
s_mov_b64 exec, -1
s_add_u32 s33, s33, {2*TILE*8}
""")
    e("s_waitcnt vmcnt(16)")
    for i in range(4):
        e(f"v_lshl_or_b32 v{W+i}, v{FILT+i}, 16, v{W+i}")

    def setexec(m):
        if m == "all":
            e("s_mov_b64 exec, -1")
        elif m == "lo16":
            e("s_mov_b64 exec, 0xffff")
        else:
            e(f"s_mov_b64 exec, s[{m}:{m+1}]")

    def phase1(slots):
        for (m, r, a, wait) in slots:
            if wait is not None:
                e(f"s_waitcnt vmcnt({wait})")
            setexec(m)
            e(f"v_lshrrev_b32 v{a}, 16, v{r+1}\nds_add_u32 v{a}, v{VONE} offset:{L_HIST}")
        e("s_mov_b64 exec, -1\ns_waitcnt lgkmcnt(0)\ns_barrier")

    def phase2(slots, lead=4):
        ops = []
        n = len(slots)
        for s in range(n + lead):
            if s < n:
                m, r, a, _ = slots[s]
                setexec(m)
                e(f"ds_add_rtn_u32 v{a}, v{a}, v{VONE} offset:{L_HIST}")
                ops.append(("A", s))
            if s >= lead:
                m, r, a, _ = slots[s - lead]
                younger = len(ops) - 1 - ops.index(("A", s - lead))
                assert younger <= 15
                setexec(m)
                e(f"s_waitcnt lgkmcnt({younger})\nds_write_b64 v{a}, v[{r}:{r+1}] offset:{L_REC}")
                ops.append(("W", s - lead))
        e("s_mov_b64 exec, -1")

    def scan_exchange(flagged):
        e(f"""
s_lshl_b32 s4, s3, 8
v_lshl_add_u32 v{X+1}, v{VLANE}, 2, s4
ds_read_b32 v{X+2}, v{X+1} offset:{L_HIST}
s_mul_i32 s5, s3, {LCAP*8}
s_waitcnt lgkmcnt(0)
v_mov_b32 v{X+3}, v{X+2}
""")
        wave_scan(e, X + 3)
        e(f"""
v_sub_u32 v{X+2}, v{X+3}, v{X+2}
v_readlane_b32 s{S_N}, v{X+3}, 63
v_add_u32 v{X+2}, s5, v{X+2}
ds_write_b32 v{X+1}, v{X+2} offset:{L_HIST}
s_lshr_b32 s{S_N}, s{S_N}, 3
s_mov_b32 s6, s{S_N}
""")
        if flagged:
            e(f"s_cmp_lg_u32 s{S_MODE}, 0\ns_cselect_b32 s6, 0x7fffffff, s6")
        e(f"""
s_lshl_b32 s4, s3, 2
v_mov_b32 v{X+2}, s4
v_mov_b32 v{X+3}, s6
ds_write_b32 v{X+2}, v{X+3} offset:{L_N}
v_mov_b32 v{X+1}, 0
s_waitcnt lgkmcnt(0)
s_barrier
ds_read_b128 v[{X+4}:{X+7}], v{X+1} offset:{L_N}
ds_read_b128 v[{X+8}:{X+11}], v{X+1} offset:{L_N+16}
s_waitcnt lgkmcnt(0)
v_max3_u32 v{X+4}, v{X+4}, v{X+5}, v{X+6}
v_max3_u32 v{X+7}, v{X+7}, v{X+8}, v{X+9}
v_max3_u32 v{X+4}, v{X+4}, v{X+10}, v{X+11}
v_max_u32 v{X+4}, v{X+4}, v{X+7}
s_nop 0
v_readfirstlane_b32 s{S_NIT}, v{X+4}
""")

    fast = [("all", 68, 72, None), ("lo16", 70, 73, None)]
    for i in range(16):
        fast.append((SM + 4 * i, 4 * i, 74 + 2 * i, 15 - i))
        fast.append((SM + 4 * i + 2, 4 * i + 2, 75 + 2 * i, None))
    fast += [(12, 64, 106, None), (14, 66, 107, None)]
    stamp(e, o, VAB)
    phase1(fast)
    stamp(e, o, VCUR)
    scan_exchange(True)
    stamp(e, o, VNXT)
    e(f"s_cmp_gt_u32 s{S_NIT}, {LCAP}\ns_cbranch_scc1 LM_slow")
    phase2(fast)
    for i in range(2 * DPW):
        if not (i < 108):
            e(f"v_mov_b32 v{ACC+i}, 0")
    e("s_waitcnt lgkmcnt(0)")
    for i in range(108):
        e(f"v_mov_b32 v{ACC+i}, 0")

    e(f"""
LM_tail:
s_add_u32 s{S_NIT}, s{S_NIT}, {G-1}
s_and_b32 s{S_NIT}, s{S_NIT}, {-G}
s_mul_i32 s5, s3, {LCAP*8}
v_mov_b32 v{X+2}, {hex(DUMMY_REC)}
LM_tailloop:
v_add_u32 v{X}, s{S_N}, v{VLANE}
v_cmp_gt_u32 vcc, s{S_NIT}, v{X}
v_lshl_add_u32 v{X+1}, v{X}, 3, s5
s_mov_b64 exec, vcc
ds_write_b32 v{X+1}, v{X+2} offset:{L_REC}
s_mov_b64 exec, -1
s_add_u32 s{S_N}, s{S_N}, 64
s_cmp_lt_u32 s{S_N}, s{S_NIT}
s_cbranch_scc1 LM_tailloop
v_and_b32 v{X}, 15, v{VLANE}
v_lshrrev_b32 v{X+1}, 4, v{VLANE}
v_lshl_add_u32 v{X}, v{X}, 2, v{X+1}
s_add_u32 s5, s5, {L_REC}
v_lshl_add_u32 v{VRA}, v{X}, 3, s5
s_lshl_b32 s4, s3, 9
s_add_u32 s4, s4, {L_STG}
v_lshl_add_u32 v{VSW}, v{X}, 3, s4
v_bfe_u32 v{X}, v{VLANE}, 3, 2
v_bfe_u32 v{X+1}, v{VLANE}, 1, 1
v_lshl_add_u32 v{X}, v{X}, 1, v{X+1}
v_lshl_add_u32 v{VAD}, v{X}, 3, s4
s_waitcnt lgkmcnt(0)
s_barrier
""")
    if o["stamps"]:
        for k, r in enumerate((VAA, VAB, VCUR, VNXT)):
            e(f"v_readfirstlane_b32 s{92+k}, v{r}")
        stamp(e, o, VAA)
        e(f"s_nop 0\nv_readfirstlane_b32 s96, v{VAA}")

    def adr():
        e(f"v_cndmask_b32 v{VAA}, 0, v{VAD}, s[{MA}:{MA+1}]\nv_cndmask_b32 v{VAB}, 0, v{VAD}, s[{MB}:{MB+1}]")

    def readA(b):
        e(f"ds_read_b64 v[{A}:{A+1}], v{VAA} offset:{b*64}\nds_read_b64 v[{A+2}:{A+3}], v{VAB} offset:{b*64}")

    def filt():
        e(f"v_mfma_f32_32x32x16_bf16 v[{FILT}:{FILT+15}], v[{A}:{A+3}], v[{W}:{W+3}], 0")

    def loads(b):
        for i, t in enumerate((VT0, VT1)):
            e(f"v_or_b32_dpp v{t}, v{VCLEAN}, v{VQ} row_newbcast:{2*b+i} row_mask:0xf bank_mask:0xf")
            e(f"buffer_load_dwordx4 v[{ROW+b*8+4*i}:{ROW+b*8+4*i+3}], v{t}, s[8:11], 0 offen {o['row_ld']}")

    def half_on():
        e("s_mov_b32 exec_lo, 0x00ff00ff\ns_mov_b32 exec_hi, 0x00ff00ff")

    def gather(dst, rec):
        e(f"v_bfe_u32 v{dst}, v{rec}, 8, 18\nv_lshlrev_b32 v{dst}, 1, v{dst}")
        e(f"buffer_load_ushort v{dst}, v{dst}, s[20:23], 0 offen")

    def jit(rec, rad):
        t = UNP
        e(f"""
v_lshlrev_b32 v{VTH}, 16, v{VTH}
v_mul_f32 v{t}, s{SE0}, v{VTH}
v_mul_f32 v{t+1}, s{SE1}, v{VTH}
v_mul_f32 v{t+2}, s{SE2}, v{VTH}
v_cvt_pk_bf16_f32 v{t+1}, v{t}, v{t+1}
v_cvt_pk_bf16_f32 v{t+2}, v{t+2}, v{t+2}
v_lshlrev_b32 v{t}, 16, v{t+1}
v_and_b32 v{t+1}, 0xffff0000, v{t+1}
v_and_b32 v{t+2}, 0xffff0000, v{t+2}
""")
        for k in range(3):
            e(f"v_mul_f32 v{t+3+k}, {hex(C_HI)}, v{t+k}")
        for k in range(3):
            e(f"v_fract_f32 v{t+3+k}, v{t+3+k}")
        for k in range(3):
            e(f"v_fmac_f32 v{t+3+k}, {hex(C_LO)}, v{t+k}")
        for k in range(3):
            e(f"v_cos_f32 v{t+3+k}, v{t+3+k}")
        e(f"""
v_lshlrev_b32 v{t+6}, 16, v{rad}
v_cvt_pk_bf16_f32 v{t+1}, v{t+3}, v{t+4}
v_cvt_pk_bf16_f32 v{t+2}, v{t+5}, v{t+5}
v_cmp_gt_u32 vcc, {hex(F_DUMMY)}, v{rec}
v_lshlrev_b32 v{t}, 16, v{t+1}
v_and_b32 v{t+1}, 0xffff0000, v{t+1}
v_and_b32 v{t+2}, 0xffff0000, v{t+2}
v_mul_f32 v{t}, v{t}, v{t+6}
v_mul_f32 v{t+1}, v{t+1}, v{t+6}
v_mul_f32 v{t+2}, v{t+2}, v{t+6}
v_ashrrev_i32 v{t+3}, 31, v{rec}
v_cvt_pk_bf16_f32 v{t}, v{t}, v{t+1}
v_cvt_pk_bf16_f32 v{t+1}, v{t+2}, 0
v_and_b32 v{t+3}, v{t+3}, v{t+6}
v_cndmask_b32 v{t}, 0, v{t}, vcc
v_cndmask_b32 v{t+1}, v{t+3}, v{t+1}, vcc
ds_write_b64 v{VSW}, v[{t}:{t+1}]
v_xor_b32 v{VSW}, 256, v{VSW}
""")

    def batch(b, steady):
        if steady:
            cnt = 2 * NB - 2 if b == 0 else 2 * NB - 1
        else:
            cnt = 2 * NB - 1 if b == 0 else 2 * (NB - 1 - b)
        e(f"s_waitcnt vmcnt({cnt})")
        for i in range(2):
            for u in range(2):
                d = UNP + 8 * i + 4 * u
                e(f"v_mfma_f32_16x16x32_bf16 v[{d}:{d+3}], v[{AU+4*u}:{AU+4*u+3}], v[{ROW+b*8+4*i}:{ROW+b*8+4*i+3}], 0")
        if steady:
            loads(b)
        for j in range(8):
            t = b * 8 + j
            e(f"v_readlane_b32 s{SI+j}, v{VCUR}, {16*(t&3)+(t>>2)}")
        if steady and b == NB - 1:
            e(f"""
v_mov_b32 v{VCUR}, v{VNXT}
v_mov_b32 v{VNXT}, v{VN2}
v_and_b32 v{VCLEAN}, {hex(ROWMASK)}, v{VN2}
v_add_u32 v{VRA}, {G*8}, v{VRA}
ds_read_b32 v{VN2}, v{VRA} offset:{2*G*8}
""")
        for j in range(8):
            e(f"s_set_gpr_idx_on s{SI}, gpr_idx(SRC2,DST)" if j == 0 else f"s_set_gpr_idx_idx s{SI+j}")
            e(f"v_pk_fma_f32 v[{ACC}:{ACC+1}], v[{UNP+2*j}:{UNP+2*j+1}], v[{FILT+2*j}:{FILT+2*j+1}], v[{ACC}:{ACC+1}]")
        e("s_set_gpr_idx_off")
        if steady or b < NB - 1:
            e(f"s_waitcnt lgkmcnt({1 if steady and b == NB - 1 else 0})")
            filt()
            if steady and b == NB - 2:
                e(f"v_xor_b32 v{VAD}, 256, v{VAD}")
                adr()
            if steady or b < NB - 2:
                readA((b + 2) % NB)
        if steady and b == 0:
            half_on()
            jit(VNXT, VRAD)
            gather(VRAD, VN2)
            e(f"s_mov_b64 exec, -1\nds_read_b32 v{VTH}, v{VRA} offset:{2*G*8+4}")

    e(f"""
ds_read_b32 v{VCUR}, v{VRA}
ds_read_b32 v{VNXT}, v{VRA} offset:{G*8}
ds_read_b32 v{VTH}, v{VRA} offset:4
ds_read_b32 v{VN2}, v{VRA} offset:{2*G*8}
""")
    adr()
    e(f"s_waitcnt lgkmcnt(0)\nv_and_b32 v{VCLEAN}, {hex(ROWMASK)}, v{VCUR}")
    half_on()
    gather(FILT, VCUR)
    e("s_mov_b64 exec, -1")
    loads(0)
    half_on()
    gather(VRAD, VNXT)
    e("s_mov_b64 exec, -1")
    for b in range(1, NB):
        loads(b)
    e(f"v_and_b32 v{VCLEAN}, {hex(ROWMASK)}, v{VNXT}\ns_waitcnt vmcnt({2*NB+1})")
    half_on()
    jit(VCUR, FILT)
    e(f"s_mov_b64 exec, -1\nds_read_b32 v{VTH}, v{VRA} offset:{G*8+4}")
    readA(0)
    e("s_waitcnt lgkmcnt(0)")
    filt()
    readA(1)
    e(f"s_cmp_le_u32 s{S_NIT}, {G}\ns_cbranch_scc1 LM_drain\n.p2align 6\nLM_loop:")
    for b in range(NB):
        batch(b, True)
    e(f"""
s_barrier
s_sub_u32 s{S_NIT}, s{S_NIT}, {G}
s_cmp_gt_u32 s{S_NIT}, {G}
s_cbranch_scc1 LM_loop
LM_drain:
""")
    for b in range(NB):
        batch(b, False)
    e(f"""
s_waitcnt lgkmcnt(0)
s_cmp_eq_u32 s{S_MODE}, 0
s_cbranch_scc1 LM_out
s_add_u32 s{S_BASE}, s{S_BASE}, {RMAX}
s_cmp_lt_u32 s{S_BASE}, s{S_TOT}
s_cbranch_scc1 LM_round
LM_out:
s_load_dwordx2 s[4:5], s[0:1], 72
""")
    stamp(e, o, VAA)
    e(f"""
s_lshl_b32 s33, s2, 5
s_lshl_b32 s34, s3, 2
s_add_u32 s33, s33, s34
s_lshl_b32 s33, s33, 8
v_lshlrev_b32 v{VT0}, 4, v{VLANE}
s_waitcnt lgkmcnt(0)
""")
    srd(e, 12, 4, 5, E * 256)
    for i in range(DPW // 4):
        y = ROW + 4 * (i % 4)
        for j in range(4):
            a = ACC + 8 * i + 2 * j
            e(f"v_cvt_pk_bf16_f32 v{y+j}, v{a}, v{a+1}")
        e(f"""
s_nop 1
v_permlane16_swap_b32 v{y}, v{y+1}
v_permlane16_swap_b32 v{y+2}, v{y+3}
s_nop 1
v_permlane32_swap_b32 v{y}, v{y+2}
v_permlane32_swap_b32 v{y+1}, v{y+3}
buffer_store_dwordx4 v[{y}:{y+3}], v{VT0}, s[12:15], s33 offen {o['out_st']}
s_add_u32 s33, s33, {STRIDE_ROWS*256}
""")
    if o["stamps"]:
        for k in range(5):
            e(f"v_mov_b32 v{8+k}, s{92+k}")
    stamps_out(e, o, [8, 9, 10, 11, 12, VAA, VAB], 33 << 20, NW)
    e("LM_end:\ns_endpgm")

    e(f"""
LM_slow:
s_mov_b32 s{S_MODE}, 1
s_lshl_b32 s4, s3, 7
v_and_b32 v{X}, 15, v{VLANE}
v_lshrrev_b32 v{X+1}, 5, v{VLANE}
v_lshl_add_u32 v{X}, v{X}, 1, v{X+1}
v_lshl_add_u32 v{X}, v{X}, 2, s4
ds_write_b32 v{X}, v{VSE} offset:{L_SEG}
v_lshlrev_b32 v{X+1}, 4, v{VLANE}
s_waitcnt lgkmcnt(0)
s_barrier
ds_read_b128 v[{X+4}:{X+7}], v{X+1} offset:{L_SEG}
v_mul_u32_u24 v{X+2}, {4*TILE}, v{VLANE}
s_waitcnt lgkmcnt(0)
""")
    for k in range(4):
        e(f"""
v_lshrrev_b32 v{X+8+k}, 16, v{X+4+k}
v_and_b32 v{X+4+k}, 0xffff, v{X+4+k}
v_sub_u32 v{X+8+k}, v{X+8+k}, v{X+4+k}
""")
    e(f"""
v_add_u32 v{X+9}, v{X+8}, v{X+9}
v_add_u32 v{X+10}, v{X+9}, v{X+10}
v_add_u32 v{X+11}, v{X+10}, v{X+11}
v_mov_b32 v{X+3}, v{X+11}
""")
    wave_scan(e, X + 3)
    e(f"""
v_sub_u32 v{X+12}, v{X+3}, v{X+11}
v_readlane_b32 s{S_TOT}, v{X+3}, 63
v_add_u32 v{X+13}, v{X+12}, v{X+8}
v_add_u32 v{X+14}, v{X+12}, v{X+9}
v_add_u32 v{X+15}, v{X+12}, v{X+10}
ds_write_b128 v{X+1}, v[{X+12}:{X+15}] offset:{L_P}
""")
    for k in range(4):
        e(f"""
v_sub_u32 v{X+4+k}, v{X+4+k}, v{X+12+k}
v_add_u32 v{X+4+k}, v{X+4+k}, v{X+2}
v_add_u32 v{X+2}, {TILE}, v{X+2}
""")
    e(f"ds_write_b128 v{X+1}, v[{X+4}:{X+7}] offset:{L_Q}")
    for i in range(2 * DPW):
        e(f"v_mov_b32 v{ACC+i}, 0")
    SR = X + 12
    SA = SR + 2 * (RSLOTS + 2)
    assert SA + RSLOTS + 2 <= ROW + G
    e(f"""
s_mov_b32 s{S_BASE}, 0
LM_round:
s_lshl_b32 s4, s3, 6
v_add_u32 v{X}, s4, v{VLANE}
v_lshlrev_b32 v{X+1}, 2, v{X}
v_mov_b32 v{X+2}, 0
v_mov_b32 v{VONE}, 8
ds_write_b32 v{X+1}, v{X+2} offset:{L_HIST}
v_add_u32 v{X}, s{S_BASE}, v{X}
""")
    for j in range(RSLOTS):
        e(f"v_cmp_gt_u32 s[{SM+2*j}:{SM+2*j+1}], s{S_TOT}, v{X}\nv_mov_b32 v{X+3}, 0")
        for st in (128, 64, 32, 16, 8, 4, 2, 1):
            e(f"""
ds_read_b32 v{X+4}, v{X+3} offset:{L_P+4*st}
v_add_u32 v{X+5}, {4*st}, v{X+3}
s_waitcnt lgkmcnt(0)
v_cmp_le_u32 vcc, v{X+4}, v{X}
s_nop 1
v_cndmask_b32 v{X+3}, v{X+3}, v{X+5}, vcc
""")
        e(f"""
ds_read_b32 v{X+4}, v{X+3} offset:{L_Q}
s_waitcnt lgkmcnt(0)
v_add_lshl_u32 v{X+4}, v{X+4}, v{X}, 3
s_mov_b64 exec, s[{SM+2*j}:{SM+2*j+1}]
buffer_load_dwordx2 v[{SR+2*j}:{SR+2*j+1}], v{X+4}, s[16:19], 0 offen
s_mov_b64 exec, -1
v_add_u32 v{X}, 512, v{X}
""")
    self_slots(SR + 2 * RSLOTS)
    m0 = SM + 2 * RSLOTS
    e(f"""
s_cmp_eq_u32 s{S_BASE}, 0
s_cselect_b64 s[{m0}:{m0+1}], -1, 0
s_cselect_b32 s{m0+2}, 0xffff, 0
s_mov_b32 s{m0+3}, 0
s_waitcnt vmcnt(0) lgkmcnt(0)
s_barrier
""")
    slow = [(SM + 2 * j, SR + 2 * j, SA + j, None) for j in range(RSLOTS + 2)]
    phase1(slow)
    scan_exchange(False)
    phase2(slow)
    e("s_branch LM_tail")
    return e.text()


def gen_pf(o):
    e = Asm()
    fl = "" if o["pre"] == "pf" else o["pre"]
    e(f"""
dn_pf_kernel:
s_cmp_ge_u32 s2, {NWG}
s_cbranch_scc1 LF_end
s_load_dwordx2 s[4:5], s[0:1], {o["presrc"]}
v_lshlrev_b32 v1, 4, v0
s_waitcnt lgkmcnt(0)
""")
    srd(e, 8, 4, 5, E * 256, o["preoff"] << 20)
    e("s_mul_i32 s4, s2, 16384")
    for i in range(10):
        e(f"buffer_load_dwordx4 v[{8+4*i}:{11+4*i}], v1, s[8:11], s4 offen {fl}\ns_add_u32 s4, s4, {250*16384}")
    e("s_waitcnt vmcnt(0)\nLF_end:\ns_endpgm")
    return e.text()


HEADER = """; DimeNet angular message passing on gfx950.
"""


def kd(name, vgpr):
    return f""".p2align 6
.amdhsa_kernel {name}
  .amdhsa_next_free_vgpr {vgpr}
  .amdhsa_next_free_sgpr 102
  .amdhsa_accum_offset {vgpr}
  .amdhsa_group_segment_fixed_size 0
  .amdhsa_kernarg_size 96
  .amdhsa_user_sgpr_count 2
  .amdhsa_user_sgpr_kernarg_segment_ptr 1
  .amdhsa_system_sgpr_workgroup_id_x 1
  .amdhsa_float_denorm_mode_32 3
.end_amdhsa_kernel
"""


def generate(**kw):
    o = dict(DEFAULTS)
    o.update(kw)
    s = HEADER
    if o["pre"]:
        s += f"; @launch kernel=dn_pf_kernel grid=({NWG},1,1) block=(1024,1,1) lds=0\n"
    s += f"; @launch kernel={PART} grid=({NWG},1,1) block=(1024,1,1) lds={P_LDS}\n"
    s += f"; @launch kernel={MAIN} grid=({NWG},1,1) block=(512,1,1) lds={L_LDS}\n"
    for _ in range(o["post"]):
        s += f"; @launch kernel=dn_nop_kernel grid=({NWG},1,1) block=(64,1,1) lds=0\n"
    s += '.amdgcn_target "amdgcn-amd-amdhsa--gfx950"\n.text\n'
    extra = []
    if o["pre"]:
        extra.append(("dn_pf_kernel", gen_pf(o)))
    if o["post"]:
        extra.append(("dn_nop_kernel", "dn_nop_kernel:\n    s_endpgm\n"))
    for name, body in [(PART, gen_part(o)), (MAIN, gen_main(o))] + extra:
        s += f".globl {name}\n.p2align 8\n.type {name},@function\n{body}"
    s += '.section .rodata,"a"\n' + kd(PART, 120 if o["stamps"] else 112) + kd(MAIN, 256)
    for name, _ in extra:
        s += kd(name, 64)
    return s


if __name__ == "__main__":
    out = sys.argv[1]
    kw = {}
    for a in sys.argv[2:]:
        k, v = a.split("=", 1)
        kw[k] = int(v) if v.lstrip("-").isdigit() else v.replace("_", " ")
    open(out, "w").write(generate(**kw))
```

```python
import math
import struct
import sys

MAIN = "standalone__molecular_angular_dimenet__graph_kernel"
PART = "dn_part_kernel"

E, T = 160000, 2560000
NWG = 250
TILE = T // NWG
NW = 8
DPW = 80
NCH = 64
NB = 4
G = NB * 8
STRIDE_ROWS = NWG * NW * 4

WS_REC = 0
WS_OFF = NWG * TILE * 8
WS_RAD = WS_OFF + NWG * 1024

P_HIST, P_OFF, P_REC = 0, 1024, 2048
P_LDS = P_REC + TILE * 8

L_ZERO = 0
L_STG = 512
L_HIST = L_STG + NW * 512
L_N = L_HIST + NW * NCH * 4
L_SEG = L_N + 64
L_P = L_SEG + 1024
L_Q = L_P + 1024
L_REC = L_Q + 1024
LCAP = 2304
L_LDS = L_REC + NW * LCAP * 8
RSLOTS = 4
RMAX = RSLOTS * 512
assert RMAX + DPW <= LCAP and LCAP % G == 0 and L_LDS <= 163840 and L_REC % 16 == 0

F_SELF = 0x80000000
F_DUMMY = 0x40000000
ROWMASK = 0x03FFFF00
DUMMY_REC = F_DUMMY | ((E - 1) << 8)
M_DIV8000 = -(-(1 << 32) // STRIDE_ROWS)
M_CHUNK = -(-(NCH << 32) // E)
assert M_DIV8000 < (1 << 24) and M_CHUNK < (1 << 24) and ((E - 1) * M_CHUNK) >> 32 < NCH
assert all((e * M_DIV8000) >> 32 == e // STRIDE_ROWS for e in range(E))


def f2u(x):
    return struct.unpack("<I", struct.pack("<f", x))[0]


def u2f(u):
    return struct.unpack("<f", struct.pack("<I", u))[0]


INV2PI = 1.0 / (2.0 * math.pi)
C_HI = f2u(INV2PI) & 0xFFFFFF00
C_LO = f2u(INV2PI - u2f(C_HI))

DEFAULTS = dict(pf1=0, pf1s=0, pf1pos=2, pf1e=0, pf2=0, rot=0, pre="", presrc=0, preoff=0, post=0, in_flags="nt", rec_st="", seg_ld="", row_ld="", out_st="", stamps=0)


class Asm:
    def __init__(self):
        self.l = []

    def __call__(self, s):
        for line in s.strip("\n").split("\n"):
            line = line.strip()
            if not line:
                continue
            if line.endswith(":") or line.startswith("."):
                self.l.append(line)
            else:
                self.l.append("    " + line)

    def text(self):
        return "\n".join(self.l) + "\n"


def srd(e, d, lo, hi, nbytes, add=None):
    if add is None:
        e(f"s_mov_b32 s{d}, s{lo}\ns_mov_b32 s{d+1}, s{hi}")
    else:
        e(f"s_add_u32 s{d}, s{lo}, {add}\ns_addc_u32 s{d+1}, s{hi}, 0")
    e(f"s_mov_b32 s{d+2}, {nbytes}\ns_mov_b32 s{d+3}, 0x20000")


def wave_scan(e, v):
    for ctl in ("row_shr:1 row_mask:0xf", "row_shr:2 row_mask:0xf", "row_shr:4 row_mask:0xf",
                "row_shr:8 row_mask:0xf", "row_bcast:15 row_mask:0xa", "row_bcast:31 row_mask:0xc"):
        e(f"s_nop 1\nv_add_u32_dpp v{v}, v{v}, v{v} {ctl} bank_mask:0xf")


def stamp(e, o, v):
    if o["stamps"]:
        e(f"s_memrealtime vcc\ns_waitcnt lgkmcnt(0)\nv_mov_b32 v{v}, vcc_lo")


def stamps_out(e, o, regs, region, nwaves):
    if not o["stamps"]:
        return
    e("s_waitcnt vmcnt(0)")
    stamp(e, o, regs[-1])
    e("s_load_dwordx2 s[4:5], s[0:1], 88\ns_waitcnt lgkmcnt(0)")
    srd(e, 12, 4, 5, NWG * nwaves * 32, region)
    srd(e, 16, 4, 5, 64, 32 << 20)
    e(f"s_mul_i32 s4, s2, {nwaves}\ns_add_u32 s4, s4, s3\ns_lshl_b32 s4, s4, 5\nv_mov_b32 v0, s4")
    for k, r in enumerate(regs):
        e(f"buffer_store_dword v{r}, v0, s[12:15], 0 offen offset:{4*k}")
    if o["stamps"] == 2:
        e("s_load_dwordx2 s[6:7], s[0:1], 80\nv_mov_b32 v0, 0\ns_waitcnt vmcnt(0) lgkmcnt(0)")
        srd(e, 20, 6, 7, 256)
        if nwaves == 16:
            e(f"v_mov_b32 v1, v{regs[0]}")
        else:
            e("buffer_load_dword v1, v0, s[16:19], 0 offen sc0 sc1\ns_waitcnt vmcnt(0)")
        e("s_mov_b64 exec, 1")
        for k, r in enumerate(regs):
            e(f"v_sub_u32 v{r}, v{r}, v1\nbuffer_atomic_smax v{r}, v0, s[20:23], 0 offen offset:{4*k}")


def gen_part(o):
    e = Asm()
    fl = o["in_flags"]
    JI, KJ, TH = 4, 16, 28
    VD = 33
    U, REM, HA, RK = 36, 46, 56, 66
    R = 76
    S = 96
    PFD = 116
    e(f"""
{PART}:
s_cmp_ge_u32 s2, {NWG}
s_cbranch_scc1 LP_end
s_load_dwordx8 s[12:19], s[0:1], 8
s_load_dwordx2 s[20:21], s[0:1], 40
s_load_dwordx2 s[22:23], s[0:1], 88
s_load_dwordx2 s[26:27], s[0:1], 0
""")
    stamp(e, o, 110)
    e(f"""
v_lshlrev_b32 v1, 4, v0
v_lshlrev_b32 v2, 3, v0
v_lshlrev_b32 v3, 2, v0
v_lshlrev_b32 v34, 1, v0
v_mov_b32 v35, 0
ds_write_b32 v3, v35
v_lshrrev_b32 v35, 6, v0
s_mul_i32 s4, s2, {TILE*4}
s_mul_i32 s5, s2, {TILE*2}
s_mul_i32 s6, s2, {TILE*8}
v_readfirstlane_b32 s3, v35
s_mul_i32 s7, s2, {E//NWG*2}
s_lshl_b32 s8, s2, 10
s_mov_b32 s9, 16384
s_mov_b32 s10, 32768
s_mov_b32 s11, 8192
s_waitcnt lgkmcnt(0)
s_load_dword s24, s[20:21], 0
""")
    srd(e, 28, 18, 19, TILE * 4, "s4")
    srd(e, 32, 16, 17, TILE * 4, "s4")
    srd(e, 36, 14, 15, TILE * 2, "s5")
    srd(e, 48, 12, 13, E // NWG * 2, "s7")
    e(f"""
buffer_load_dwordx4 v[{JI}:{JI+3}], v1, s[28:31], 0 offen {fl}
buffer_load_dwordx4 v[{JI+4}:{JI+7}], v1, s[28:31], s9 offen {fl}
buffer_load_dwordx2 v[{JI+8}:{JI+9}], v2, s[28:31], s10 offen {fl}
buffer_load_ushort v{VD}, v34, s[48:51], 0 offen
buffer_load_dwordx4 v[{KJ}:{KJ+3}], v1, s[32:35], 0 offen {fl}
buffer_load_dwordx4 v[{KJ+4}:{KJ+7}], v1, s[32:35], s9 offen {fl}
buffer_load_dwordx2 v[{KJ+8}:{KJ+9}], v2, s[32:35], s10 offen {fl}
buffer_load_dwordx2 v[{TH}:{TH+1}], v2, s[36:39], 0 offen {fl}
buffer_load_dwordx2 v[{TH+2}:{TH+3}], v2, s[36:39], s11 offen {fl}
buffer_load_dword v{TH+4}, v3, s[36:39], s9 offen {fl}
""")
    npf = o["pf1"]

    def prefetch(start=o["pf1s"], n=npf):
        srd(e, 56, 26, 27, E * 256)
        e(f"s_lshl_b32 s60, s2, 14\ns_add_u32 s60, s60, {start * NWG * 16384}")
        for i in range(n):
            e(f"buffer_load_dwordx4 v[{PFD}:{PFD+3}], v1, s[56:59], s60 offen\ns_add_u32 s60, s60, {NWG*16384}")
    n0 = npf if o["pf1pos"] == 0 else 0
    if n0:
        prefetch()
    srd(e, 40, 22, 23, TILE * 8, "s6")
    e(f"s_add_u32 s8, s8, {WS_OFF}")
    srd(e, 44, 22, 23, NWG * 4, "s8")
    e(f"s_add_u32 s7, s7, {WS_RAD}")
    srd(e, 52, 22, 23, E // NWG * 2, "s7")
    e(f"""
s_mov_b32 s25, {-STRIDE_ROWS}
v_mov_b32 v35, 8
s_barrier
""")
    for k in range(10):
        if k in (0, 4, 8):
            e(f"s_waitcnt vmcnt({9 - k // 4 + n0})")
        e(f"""
v_mul_hi_u32_u24 v{U+k}, {M_DIV8000}, v{JI+k}
v_mad_i32_i24 v{REM+k}, v{U+k}, s25, v{JI+k}
v_lshrrev_b32 v{HA+k}, 3, v{REM+k}
v_and_b32 v{HA+k}, 0x3fc, v{HA+k}
ds_add_rtn_u32 v{RK+k}, v{HA+k}, v35 offset:{P_HIST}
v_and_b32 v{JI+k}, 3, v{JI+k}
v_lshl_add_u32 v{U+k}, v{U+k}, 2, v{JI+k}
v_bfe_u32 v{REM+k}, v{REM+k}, 2, 3
""")
    e(f"""
s_waitcnt vmcnt({6 + n0}) lgkmcnt(0)
""")
    if npf and o["pf1pos"] == 1:
        prefetch()
    e("s_barrier")
    stamp(e, o, 111)
    e(f"""
s_lshl_b32 s24, s24, 16
v_and_b32 v{S+12}, 63, v0
v_lshlrev_b32 v{S+12}, 4, v{S+12}
ds_read_b128 v[{S}:{S+3}], v{S+12} offset:{P_HIST}
v_lshlrev_b32 v{VD}, 16, v{VD}
v_mul_f32 v{S+8}, s24, v{VD}
v_cvt_pk_bf16_f32 v{S+8}, v{S+8}, v{S+8}
v_lshlrev_b32 v{S+8}, 16, v{S+8}
v_mul_f32 v{S+9}, {hex(C_HI)}, v{S+8}
v_fract_f32 v{S+9}, v{S+9}
v_fmac_f32 v{S+9}, {hex(C_LO)}, v{S+8}
v_sin_f32 v{S+9}, v{S+9}
v_rcp_f32 v{VD}, v{VD}
v_cvt_pk_bf16_f32 v{S+9}, v{S+9}, v{S+9}
v_lshlrev_b32 v{S+9}, 16, v{S+9}
v_mul_f32 v{S+9}, v{S+9}, v{VD}
v_cvt_pk_bf16_f32 v{S+9}, v{S+9}, v{S+9}
buffer_store_short v{S+9}, v34, s[52:55], 0 offen
s_waitcnt lgkmcnt(0)
v_add_u32 v{S+1}, v{S}, v{S+1}
v_add_u32 v{S+2}, v{S+1}, v{S+2}
v_add_u32 v{S+3}, v{S+2}, v{S+3}
v_mov_b32 v{S+8}, v{S+3}
""")
    wave_scan(e, S + 8)
    e(f"""
v_sub_u32 v{S+4}, v{S+8}, v{S+3}
v_add_u32 v{S+5}, v{S+4}, v{S}
v_add_u32 v{S+6}, v{S+4}, v{S+1}
v_add_u32 v{S+7}, v{S+4}, v{S+2}
ds_write_b128 v{S+12}, v[{S+4}:{S+7}] offset:{P_OFF}
""")
    for k in range(10):
        e(f"ds_read_b32 v{HA+k}, v{HA+k} offset:{P_OFF}")
    e(f"""
s_waitcnt vmcnt({1 + (npf if o["pf1pos"] < 2 else 0)})
""")
    if npf and o["pf1pos"] == 2:
        prefetch()
    e(f"""
s_cmp_lg_u32 s3, 0
s_cbranch_scc1 LP_nooff
v_lshrrev_b32 v{S}, 3, v{S+4}
v_lshrrev_b32 v{S+1}, 3, v{S+5}
v_lshrrev_b32 v{S+2}, 3, v{S+6}
v_lshrrev_b32 v{S+3}, 3, v{S+7}
v_lshl_or_b32 v{S}, v{S+5}, 13, v{S}
v_lshl_or_b32 v{S+1}, v{S+6}, 13, v{S+1}
v_lshl_or_b32 v{S+2}, v{S+7}, 13, v{S+2}
v_lshl_or_b32 v{S+3}, v{S+8}, 13, v{S+3}
buffer_store_dwordx4 v[{S}:{S+3}], v{S+12}, s[44:47], 0 offen
LP_nooff:
""")
    stamp(e, o, 112)
    for k in range(10):
        r0, r1 = R + 2 * k, R + 2 * k + 1
        th = TH + k // 2
        e(f"""
v_mul_hi_u32_u24 v{r1}, {M_CHUNK}, v{KJ+k}
v_lshl_or_b32 v{r0}, v{KJ+k}, 7, v{U+k}
v_lshl_add_u32 v{r1}, v{REM+k}, 6, v{r1}
{f'v_lshrrev_b32 v{JI+k}, 16, v{th}' if k & 1 else f'v_and_b32 v{JI+k}, 0xffff, v{th}'}
v_lshlrev_b32 v{r0}, 1, v{r0}
v_lshl_or_b32 v{r1}, v{r1}, 18, v{JI+k}
""")
        if k == 0:
            e("s_waitcnt lgkmcnt(0)")
        e(f"v_add_u32 v{HA+k}, v{HA+k}, v{RK+k}\nds_write_b64 v{HA+k}, v[{r0}:{r1}] offset:{P_REC}")
    e("s_waitcnt lgkmcnt(0)\ns_barrier")
    stamp(e, o, 113)
    e(f"v_add_u32 v2, {3*16384}, v1")
    for j in range(5):
        a, off = (1, j * 16384) if j < 3 else (2, (j - 3) * 16384)
        e(f"ds_read_b128 v[{4+4*j}:{7+4*j}], v{a} offset:{P_REC+off}")
    for j in range(5):
        e(f"s_mov_b32 s4, {j*16384}\ns_waitcnt lgkmcnt({4-j})")
        e(f"buffer_store_dwordx4 v[{4+4*j}:{7+4*j}], v1, s[40:43], s4 offen {o['rec_st']}")
    if o["pf1e"]:
        prefetch(o["pf1s"] + npf, o["pf1e"])
    stamps_out(e, o, [110, 111, 112, 113, 114], 32 << 20, 16)
    e("LP_end:\ns_endpgm")
    return e.text()


def gen_main(o):
    e = Asm()
    ACC, ROW = 0, 160
    FILT = ROW + G
    UNP = FILT + 16
    A = UNP + 16
    W = A + 4
    AU = W + 4
    (VCUR, VNXT, VCLEAN, VN2, VTH, VRAD, VRA, VAD, VAA, VAB, VQ, VT0, VT1, VSW, VLANE, VSE) = range(AU + 8, AU + 24)
    assert VSE <= 255
    SI = 36
    SM = 36
    X = ROW
    VONE = VRAD
    SE0, SE1, SE2 = 30, 31, 32
    S_NIT, S_N, S_MODE = 28, 29, 35
    S_TOT, S_BASE = 100, 101
    MA, MB = 24, 26

    e(f"""
{MAIN}:
s_cmp_ge_u32 s2, {NWG}
s_cbranch_scc1 LM_end
s_load_dwordx2 s[4:5], s[0:1], 0
s_load_dwordx2 s[6:7], s[0:1], 88
s_load_dwordx4 s[40:43], s[0:1], 56
s_load_dwordx2 s[44:45], s[0:1], 48
""")
    stamp(e, o, VAA)
    e(f"""
v_lshrrev_b32 v{X}, 6, v0
v_and_b32 v{VLANE}, 63, v0
v_lshlrev_b32 v{X+1}, 2, v0
v_readfirstlane_b32 s3, v{X}
v_mov_b32 v{X+2}, 0
ds_write_b32 v{X+1}, v{X+2} offset:{L_HIST}
ds_write_b32 v{X+1}, v{X+2} offset:{L_ZERO}
s_and_b32 s33, s2, 7
s_lshr_b32 s34, s2, 3
s_lshl_b32 s{S_TOT}, s34, 13
s_mul_i32 s{S_BASE}, s33, {o["rot"]}
s_min_u32 s2, s33, 2
s_mul_i32 s33, s33, 31
s_add_u32 s2, s2, s33
s_add_u32 s2, s2, s34
v_and_b32 v{X+3}, 15, v{VLANE}
v_lshlrev_b32 v{VQ}, 4, v{X+3}
v_lshrrev_b32 v{X+4}, 5, v{VLANE}
v_lshl_add_u32 v{X+5}, v{X+3}, 1, v{X+4}
s_lshl_b32 s33, s3, 15
s_lshl_b32 s34, s2, 2
s_add_u32 s33, s33, s34
v_lshl_add_u32 v{X+6}, v{X+5}, 10, s33
s_waitcnt lgkmcnt(0)
""")
    srd(e, 24, 6, 7, NWG * 1024, WS_OFF)
    e(f"buffer_load_dword v{VSE}, v{X+6}, s[24:27], 0 offen")
    e("s_load_dwordx2 s[46:47], s[44:45], 0")
    srd(e, 12, 40, 41, 768)
    srd(e, 36, 42, 43, 256)
    e(f"""
v_bfe_u32 v{X+7}, v{VLANE}, 4, 1
v_lshl_add_u32 v{X+7}, v{X+7}, 1, v{X+4}
v_lshl_add_u32 v{X+7}, v{X+7}, 1, v{VQ}
buffer_load_ushort v{W}, v{X+7}, s[12:15], 0 offen
buffer_load_ushort v{FILT}, v{X+7}, s[12:15], 0 offen offset:256
buffer_load_ushort v{W+1}, v{X+7}, s[12:15], 0 offen offset:512
buffer_load_ushort v{FILT+1}, v{X+7}, s[36:39], 0 offen
buffer_load_ushort v{W+2}, v{X+7}, s[12:15], 0 offen offset:8
buffer_load_ushort v{FILT+2}, v{X+7}, s[12:15], 0 offen offset:264
buffer_load_ushort v{W+3}, v{X+7}, s[12:15], 0 offen offset:520
buffer_load_ushort v{FILT+3}, v{X+7}, s[36:39], 0 offen offset:8
""")
    srd(e, 8, 4, 5, E * 256)
    srd(e, 16, 6, 7, NWG * TILE * 8)
    srd(e, 20, 6, 7, E * 2, WS_RAD)
    e("s_barrier")
    e(f"""
v_and_b32 v{X+8}, 1, v{VLANE}
v_cmp_eq_u32 s[4:5], v{X+8}, v{X+4}
v_bfe_u32 v{X+9}, v{VLANE}, 2, 1
v_cmp_eq_u32 vcc, 0, v{X+9}
s_and_b64 s[{MA}:{MA+1}], s[4:5], vcc
s_andn2_b64 s[{MB}:{MB+1}], s[4:5], vcc
v_bfe_u32 v{X+10}, v{VLANE}, 1, 1
v_lshlrev_b32 v{X+8}, 4, v{X+8}
v_mov_b32 v{X+11}, 0x3f80
v_lshlrev_b32 v{X+8}, v{X+8}, v{X+11}
v_lshrrev_b32 v{X+11}, 4, v{VLANE}
v_sub_u32 v{X+12}, v{X+11}, v{X+10}
v_bfe_u32 v{X+13}, v{VLANE}, 2, 2
v_lshl_add_u32 v{X+13}, v{X+12}, 2, v{X+13}
""")
    for u in range(2):
        for r in range(4):
            e(f"v_cmp_eq_u32 vcc, {8*u+r}, v{X+13}\ns_nop 1\nv_cndmask_b32 v{AU+4*u+r}, 0, v{X+8}, vcc")
    def self_slots(base):
        e(f"""
s_lshl_b32 s33, s2, 5
s_lshl_b32 s34, s3, 2
s_add_u32 s33, s33, s34
s_lshl_b32 s34, s3, 6
""")
        for k in range(2):
            r0, r1 = base + 2 * k, base + 2 * k + 1
            e(f"""
v_add_u32 v{VT0}, {64*k}, v{VLANE}
v_lshrrev_b32 v{VT1}, 2, v{VT0}
v_mul_u32_u24 v{VT1}, {STRIDE_ROWS}, v{VT1}
v_and_b32 v{r1}, 3, v{VT0}
v_add3_u32 v{VT1}, v{VT1}, v{r1}, s33
v_mul_hi_u32_u24 v{r1}, {M_CHUNK}, v{VT1}
v_lshl_or_b32 v{r0}, v{VT1}, 7, v{VT0}
v_add_u32 v{r1}, s34, v{r1}
v_lshlrev_b32 v{r0}, 1, v{r0}
v_lshlrev_b32 v{r1}, 18, v{r1}
v_or_b32 v{r0}, {hex(F_SELF)}, v{r0}
""")
    self_slots(68)
    e(f"""
v_and_b32 v{X+14}, 31, v{VLANE}
v_lshlrev_b32 v{X+14}, 1, v{X+14}
v_mul_u32_u24 v{X+15}, {TILE*8}, v{X+4}
v_mov_b32 v{VONE}, 8
s_mul_i32 s33, s3, {32*TILE*8}
s_mov_b32 s{S_MODE}, 0
s_waitcnt vmcnt(8) lgkmcnt(0)
s_lshl_b32 s{SE0}, s46, 16
s_and_b32 s{SE1}, s46, 0xffff0000
s_lshl_b32 s{SE2}, s47, 16
""")
    e(f"""
v_lshrrev_b32 v{X+16}, 16, v{VSE}
v_and_b32 v{X+17}, 0xffff, v{VSE}
v_sub_u32 v{X+16}, v{X+16}, v{X+17}
v_cmp_lt_u32 s[4:5], 64, v{X+16}
s_mov_b64 s[12:13], 0
s_mov_b64 s[14:15], 0
s_and_b32 s4, s4, 0xffff
s_and_b32 s5, s5, 0xffff
s_cmp_eq_u64 s[4:5], 0
s_cbranch_scc1 LM_noextra
v_mov_b32 v{X+17}, 128
v_cmp_gt_u32 vcc, v{X+16}, v{X+17}
s_bcnt1_i32_b64 s6, s[4:5]
s_cmp_gt_u32 s6, 2
s_cselect_b32 s{S_MODE}, 1, 0
s_cmp_lg_u64 vcc, 0
s_cselect_b32 s{S_MODE}, 1, s{S_MODE}
""")
    for k in range(2):
        if k:
            e("s_cmp_eq_u64 s[4:5], 0\ns_cbranch_scc1 LM_noextra")
        e(f"""
s_ff1_i32_b64 s6, s[4:5]
s_bitset0_b64 s[4:5], s6
v_readlane_b32 s7, v{VSE}, s6
s_and_b32 s34, s6, 15
s_lshr_b32 s6, s6, 5
s_lshl_b32 s34, s34, 1
s_add_u32 s6, s6, s34
s_mul_i32 s6, s6, {TILE*8}
s_add_u32 s6, s6, s33
s_and_b32 s34, s7, 0xffff
s_lshr_b32 s7, s7, 16
s_add_u32 s34, s34, 64
v_add_u32 v{X+17}, s34, v{VLANE}
v_cmp_gt_u32 s[{12+2*k}:{13+2*k}], s7, v{X+17}
v_lshlrev_b32 v{X+17}, 3, v{X+17}
s_mov_b64 exec, s[{12+2*k}:{13+2*k}]
buffer_load_dwordx2 v[{64+2*k}:{65+2*k}], v{X+17}, s[16:19], s6 offen {o['seg_ld']}
s_mov_b64 exec, -1
""")
    e("LM_noextra:")
    for i in range(16):
        t, en = X + 16 + 2 * (i & 1), X + 17 + 2 * (i & 1)
        e(f"""
v_mov_b32_dpp v{t}, v{VSE} row_newbcast:{i} row_mask:0xf bank_mask:0xf
v_lshrrev_b32 v{en}, 16, v{t}
v_and_b32 v{t}, 0xffff, v{t}
v_add_u32 v{t}, v{t}, v{X+14}
v_cmp_lt_u32 s[{SM+4*i}:{SM+4*i+1}], v{t}, v{en}
v_subrev_u32 v{en}, 1, v{en}
v_cmp_lt_i32 s[{SM+4*i+2}:{SM+4*i+3}], v{t}, v{en}
v_lshl_add_u32 v{t}, v{t}, 3, v{X+15}
s_mov_b64 exec, s[{SM+4*i}:{SM+4*i+1}]
buffer_load_dwordx4 v[{4*i}:{4*i+3}], v{t}, s[16:19], s33 offen {o['seg_ld']}
s_mov_b64 exec, -1
s_add_u32 s33, s33, {2*TILE*8}
""")
    e("s_waitcnt vmcnt(16)")
    for i in range(4):
        e(f"v_lshl_or_b32 v{W+i}, v{FILT+i}, 16, v{W+i}")

    def setexec(m):
        if m == "all":
            e("s_mov_b64 exec, -1")
        elif m == "lo16":
            e("s_mov_b64 exec, 0xffff")
        else:
            e(f"s_mov_b64 exec, s[{m}:{m+1}]")

    def phase1(slots):
        for (m, r, a, wait) in slots:
            if wait is not None:
                e(f"s_waitcnt vmcnt({wait})")
            setexec(m)
            e(f"v_lshrrev_b32 v{a}, 16, v{r+1}\nds_add_u32 v{a}, v{VONE} offset:{L_HIST}")
        e("s_mov_b64 exec, -1\ns_waitcnt lgkmcnt(0)\ns_barrier")

    def phase2(slots, lead=4):
        ops = []
        n = len(slots)
        for s in range(n + lead):
            if s < n:
                m, r, a, _ = slots[s]
                setexec(m)
                e(f"ds_add_rtn_u32 v{a}, v{a}, v{VONE} offset:{L_HIST}")
                ops.append(("A", s))
            if s >= lead:
                m, r, a, _ = slots[s - lead]
                younger = len(ops) - 1 - ops.index(("A", s - lead))
                assert younger <= 15
                setexec(m)
                e(f"s_waitcnt lgkmcnt({younger})\nds_write_b64 v{a}, v[{r}:{r+1}] offset:{L_REC}")
                ops.append(("W", s - lead))
        e("s_mov_b64 exec, -1")

    def scan_exchange(flagged):
        e(f"""
s_lshl_b32 s4, s3, 8
{f"v_add_u32 v{X+1}, s{S_BASE}, v{VLANE}" if flagged else f"v_mov_b32 v{X+1}, v{VLANE}"}
v_and_b32 v{X+1}, {NCH-1}, v{X+1}
v_lshl_add_u32 v{X+1}, v{X+1}, 2, s4
ds_read_b32 v{X+2}, v{X+1} offset:{L_HIST}
s_mul_i32 s5, s3, {LCAP*8}
s_waitcnt lgkmcnt(0)
v_mov_b32 v{X+3}, v{X+2}
""")
        wave_scan(e, X + 3)
        e(f"""
v_sub_u32 v{X+2}, v{X+3}, v{X+2}
v_readlane_b32 s{S_N}, v{X+3}, 63
v_add_u32 v{X+2}, s5, v{X+2}
ds_write_b32 v{X+1}, v{X+2} offset:{L_HIST}
s_lshr_b32 s{S_N}, s{S_N}, 3
s_mov_b32 s6, s{S_N}
""")
        if flagged:
            e(f"s_cmp_lg_u32 s{S_MODE}, 0\ns_cselect_b32 s6, 0x7fffffff, s6")
        e(f"""
s_lshl_b32 s4, s3, 2
v_mov_b32 v{X+2}, s4
v_mov_b32 v{X+3}, s6
ds_write_b32 v{X+2}, v{X+3} offset:{L_N}
v_mov_b32 v{X+1}, 0
s_waitcnt lgkmcnt(0)
s_barrier
ds_read_b128 v[{X+4}:{X+7}], v{X+1} offset:{L_N}
ds_read_b128 v[{X+8}:{X+11}], v{X+1} offset:{L_N+16}
s_waitcnt lgkmcnt(0)
v_max3_u32 v{X+4}, v{X+4}, v{X+5}, v{X+6}
v_max3_u32 v{X+7}, v{X+7}, v{X+8}, v{X+9}
v_max3_u32 v{X+4}, v{X+4}, v{X+10}, v{X+11}
v_max_u32 v{X+4}, v{X+4}, v{X+7}
s_nop 0
v_readfirstlane_b32 s{S_NIT}, v{X+4}
""")

    fast = [("all", 68, 72, None), ("lo16", 70, 73, None)]
    for i in range(16):
        fast.append((SM + 4 * i, 4 * i, 74 + 2 * i, 15 - i))
        fast.append((SM + 4 * i + 2, 4 * i + 2, 75 + 2 * i, None))
    fast += [(12, 64, 106, None), (14, 66, 107, None)]
    stamp(e, o, VAB)
    phase1(fast)
    if o["pf2"]:
        e(f"s_lshl_b32 s4, s3, 10\ns_add_u32 s4, s4, s{S_TOT}\nv_lshlrev_b32 v{X+16}, 4, v{VLANE}")
        for i in range(o["pf2"]):
            e(f"buffer_load_dwordx4 v[{X+24}:{X+27}], v{X+16}, s[8:11], s4 offen\ns_add_u32 s4, s4, {32*8192}")
    stamp(e, o, VCUR)
    scan_exchange(True)
    stamp(e, o, VNXT)
    e(f"s_cmp_gt_u32 s{S_NIT}, {LCAP}\ns_cbranch_scc1 LM_slow")
    phase2(fast)
    for i in range(2 * DPW):
        if not (i < 108):
            e(f"v_mov_b32 v{ACC+i}, 0")
    e("s_waitcnt lgkmcnt(0)")
    for i in range(108):
        e(f"v_mov_b32 v{ACC+i}, 0")

    e(f"""
LM_tail:
s_add_u32 s{S_NIT}, s{S_NIT}, {G-1}
s_and_b32 s{S_NIT}, s{S_NIT}, {-G}
s_mul_i32 s5, s3, {LCAP*8}
v_mov_b32 v{X+2}, {hex(DUMMY_REC)}
LM_tailloop:
v_add_u32 v{X}, s{S_N}, v{VLANE}
v_cmp_gt_u32 vcc, s{S_NIT}, v{X}
v_lshl_add_u32 v{X+1}, v{X}, 3, s5
s_mov_b64 exec, vcc
ds_write_b32 v{X+1}, v{X+2} offset:{L_REC}
s_mov_b64 exec, -1
s_add_u32 s{S_N}, s{S_N}, 64
s_cmp_lt_u32 s{S_N}, s{S_NIT}
s_cbranch_scc1 LM_tailloop
v_and_b32 v{X}, 15, v{VLANE}
v_lshrrev_b32 v{X+1}, 4, v{VLANE}
v_lshl_add_u32 v{X}, v{X}, 2, v{X+1}
s_add_u32 s5, s5, {L_REC}
v_lshl_add_u32 v{VRA}, v{X}, 3, s5
s_lshl_b32 s4, s3, 9
s_add_u32 s4, s4, {L_STG}
v_lshl_add_u32 v{VSW}, v{X}, 3, s4
v_bfe_u32 v{X}, v{VLANE}, 3, 2
v_bfe_u32 v{X+1}, v{VLANE}, 1, 1
v_lshl_add_u32 v{X}, v{X}, 1, v{X+1}
v_lshl_add_u32 v{VAD}, v{X}, 3, s4
s_waitcnt lgkmcnt(0)
s_barrier
""")
    if o["stamps"]:
        for k, r in enumerate((VAA, VAB, VCUR, VNXT)):
            e(f"v_readfirstlane_b32 s{92+k}, v{r}")
        stamp(e, o, VAA)
        e(f"s_nop 0\nv_readfirstlane_b32 s96, v{VAA}")

    def adr():
        e(f"v_cndmask_b32 v{VAA}, 0, v{VAD}, s[{MA}:{MA+1}]\nv_cndmask_b32 v{VAB}, 0, v{VAD}, s[{MB}:{MB+1}]")

    def readA(b):
        e(f"ds_read_b64 v[{A}:{A+1}], v{VAA} offset:{b*64}\nds_read_b64 v[{A+2}:{A+3}], v{VAB} offset:{b*64}")

    def filt():
        e(f"v_mfma_f32_32x32x16_bf16 v[{FILT}:{FILT+15}], v[{A}:{A+3}], v[{W}:{W+3}], 0")

    def loads(b):
        for i, t in enumerate((VT0, VT1)):
            e(f"v_or_b32_dpp v{t}, v{VCLEAN}, v{VQ} row_newbcast:{2*b+i} row_mask:0xf bank_mask:0xf")
            e(f"buffer_load_dwordx4 v[{ROW+b*8+4*i}:{ROW+b*8+4*i+3}], v{t}, s[8:11], 0 offen {o['row_ld']}")

    def half_on():
        e("s_mov_b32 exec_lo, 0x00ff00ff\ns_mov_b32 exec_hi, 0x00ff00ff")

    def gather(dst, rec):
        e(f"v_bfe_u32 v{dst}, v{rec}, 8, 18\nv_lshlrev_b32 v{dst}, 1, v{dst}")
        e(f"buffer_load_ushort v{dst}, v{dst}, s[20:23], 0 offen")

    def jit(rec, rad):
        t = UNP
        e(f"""
v_lshlrev_b32 v{VTH}, 16, v{VTH}
v_mul_f32 v{t}, s{SE0}, v{VTH}
v_mul_f32 v{t+1}, s{SE1}, v{VTH}
v_mul_f32 v{t+2}, s{SE2}, v{VTH}
v_cvt_pk_bf16_f32 v{t+1}, v{t}, v{t+1}
v_cvt_pk_bf16_f32 v{t+2}, v{t+2}, v{t+2}
v_lshlrev_b32 v{t}, 16, v{t+1}
v_and_b32 v{t+1}, 0xffff0000, v{t+1}
v_and_b32 v{t+2}, 0xffff0000, v{t+2}
""")
        for k in range(3):
            e(f"v_mul_f32 v{t+3+k}, {hex(C_HI)}, v{t+k}")
        for k in range(3):
            e(f"v_fract_f32 v{t+3+k}, v{t+3+k}")
        for k in range(3):
            e(f"v_fmac_f32 v{t+3+k}, {hex(C_LO)}, v{t+k}")
        for k in range(3):
            e(f"v_cos_f32 v{t+3+k}, v{t+3+k}")
        e(f"""
v_lshlrev_b32 v{t+6}, 16, v{rad}
v_cvt_pk_bf16_f32 v{t+1}, v{t+3}, v{t+4}
v_cvt_pk_bf16_f32 v{t+2}, v{t+5}, v{t+5}
v_cmp_gt_u32 vcc, {hex(F_DUMMY)}, v{rec}
v_lshlrev_b32 v{t}, 16, v{t+1}
v_and_b32 v{t+1}, 0xffff0000, v{t+1}
v_and_b32 v{t+2}, 0xffff0000, v{t+2}
v_mul_f32 v{t}, v{t}, v{t+6}
v_mul_f32 v{t+1}, v{t+1}, v{t+6}
v_mul_f32 v{t+2}, v{t+2}, v{t+6}
v_ashrrev_i32 v{t+3}, 31, v{rec}
v_cvt_pk_bf16_f32 v{t}, v{t}, v{t+1}
v_cvt_pk_bf16_f32 v{t+1}, v{t+2}, 0
v_and_b32 v{t+3}, v{t+3}, v{t+6}
v_cndmask_b32 v{t}, 0, v{t}, vcc
v_cndmask_b32 v{t+1}, v{t+3}, v{t+1}, vcc
ds_write_b64 v{VSW}, v[{t}:{t+1}]
v_xor_b32 v{VSW}, 256, v{VSW}
""")

    def batch(b, steady):
        if steady:
            cnt = 2 * NB - 2 if b == 0 else 2 * NB - 1
        else:
            cnt = 2 * NB - 1 if b == 0 else 2 * (NB - 1 - b)
        e(f"s_waitcnt vmcnt({cnt})")
        for i in range(2):
            for u in range(2):
                d = UNP + 8 * i + 4 * u
                e(f"v_mfma_f32_16x16x32_bf16 v[{d}:{d+3}], v[{AU+4*u}:{AU+4*u+3}], v[{ROW+b*8+4*i}:{ROW+b*8+4*i+3}], 0")
        if steady:
            loads(b)
        for j in range(8):
            t = b * 8 + j
            e(f"v_readlane_b32 s{SI+j}, v{VCUR}, {16*(t&3)+(t>>2)}")
        if steady and b == NB - 1:
            e(f"""
v_mov_b32 v{VCUR}, v{VNXT}
v_mov_b32 v{VNXT}, v{VN2}
v_and_b32 v{VCLEAN}, {hex(ROWMASK)}, v{VN2}
v_add_u32 v{VRA}, {G*8}, v{VRA}
ds_read_b32 v{VN2}, v{VRA} offset:{2*G*8}
""")
        for j in range(8):
            e(f"s_set_gpr_idx_on s{SI}, gpr_idx(SRC2,DST)" if j == 0 else f"s_set_gpr_idx_idx s{SI+j}")
            e(f"v_pk_fma_f32 v[{ACC}:{ACC+1}], v[{UNP+2*j}:{UNP+2*j+1}], v[{FILT+2*j}:{FILT+2*j+1}], v[{ACC}:{ACC+1}]")
        e("s_set_gpr_idx_off")
        if steady or b < NB - 1:
            e(f"s_waitcnt lgkmcnt({1 if steady and b == NB - 1 else 0})")
            filt()
            if steady and b == NB - 2:
                e(f"v_xor_b32 v{VAD}, 256, v{VAD}")
                adr()
            if steady or b < NB - 2:
                readA((b + 2) % NB)
        if steady and b == 0:
            half_on()
            jit(VNXT, VRAD)
            gather(VRAD, VN2)
            e(f"s_mov_b64 exec, -1\nds_read_b32 v{VTH}, v{VRA} offset:{2*G*8+4}")

    e(f"""
ds_read_b32 v{VCUR}, v{VRA}
ds_read_b32 v{VNXT}, v{VRA} offset:{G*8}
ds_read_b32 v{VTH}, v{VRA} offset:4
ds_read_b32 v{VN2}, v{VRA} offset:{2*G*8}
""")
    adr()
    e(f"s_waitcnt lgkmcnt(0)\nv_and_b32 v{VCLEAN}, {hex(ROWMASK)}, v{VCUR}")
    half_on()
    gather(FILT, VCUR)
    e("s_mov_b64 exec, -1")
    loads(0)
    half_on()
    gather(VRAD, VNXT)
    e("s_mov_b64 exec, -1")
    for b in range(1, NB):
        loads(b)
    e(f"v_and_b32 v{VCLEAN}, {hex(ROWMASK)}, v{VNXT}\ns_waitcnt vmcnt({2*NB+1})")
    half_on()
    jit(VCUR, FILT)
    e(f"s_mov_b64 exec, -1\nds_read_b32 v{VTH}, v{VRA} offset:{G*8+4}")
    readA(0)
    e("s_waitcnt lgkmcnt(0)")
    filt()
    readA(1)
    e(f"s_cmp_le_u32 s{S_NIT}, {G}\ns_cbranch_scc1 LM_drain\n.p2align 6\nLM_loop:")
    for b in range(NB):
        batch(b, True)
    e(f"""
s_barrier
s_sub_u32 s{S_NIT}, s{S_NIT}, {G}
s_cmp_gt_u32 s{S_NIT}, {G}
s_cbranch_scc1 LM_loop
LM_drain:
""")
    for b in range(NB):
        batch(b, False)
    e(f"""
s_waitcnt lgkmcnt(0)
s_cmp_eq_u32 s{S_MODE}, 0
s_cbranch_scc1 LM_out
s_add_u32 s{S_BASE}, s{S_BASE}, {RMAX}
s_cmp_lt_u32 s{S_BASE}, s{S_TOT}
s_cbranch_scc1 LM_round
LM_out:
s_load_dwordx2 s[4:5], s[0:1], 72
""")
    stamp(e, o, VAA)
    e(f"""
s_lshl_b32 s33, s2, 5
s_lshl_b32 s34, s3, 2
s_add_u32 s33, s33, s34
s_lshl_b32 s33, s33, 8
v_lshlrev_b32 v{VT0}, 4, v{VLANE}
s_waitcnt lgkmcnt(0)
""")
    srd(e, 12, 4, 5, E * 256)
    for i in range(DPW // 4):
        y = ROW + 4 * (i % 4)
        for j in range(4):
            a = ACC + 8 * i + 2 * j
            e(f"v_cvt_pk_bf16_f32 v{y+j}, v{a}, v{a+1}")
        e(f"""
s_nop 1
v_permlane16_swap_b32 v{y}, v{y+1}
v_permlane16_swap_b32 v{y+2}, v{y+3}
s_nop 1
v_permlane32_swap_b32 v{y}, v{y+2}
v_permlane32_swap_b32 v{y+1}, v{y+3}
buffer_store_dwordx4 v[{y}:{y+3}], v{VT0}, s[12:15], s33 offen {o['out_st']}
s_add_u32 s33, s33, {STRIDE_ROWS*256}
""")
    if o["stamps"]:
        for k in range(5):
            e(f"v_mov_b32 v{8+k}, s{92+k}")
    stamps_out(e, o, [8, 9, 10, 11, 12, VAA, VAB], 33 << 20, NW)
    e("LM_end:\ns_endpgm")

    e(f"""
LM_slow:
s_waitcnt vmcnt(0)
s_mov_b32 s{S_MODE}, 1
s_lshl_b32 s4, s3, 7
v_and_b32 v{X}, 15, v{VLANE}
v_lshrrev_b32 v{X+1}, 5, v{VLANE}
v_lshl_add_u32 v{X}, v{X}, 1, v{X+1}
v_lshl_add_u32 v{X}, v{X}, 2, s4
ds_write_b32 v{X}, v{VSE} offset:{L_SEG}
v_lshlrev_b32 v{X+1}, 4, v{VLANE}
s_waitcnt lgkmcnt(0)
s_barrier
ds_read_b128 v[{X+4}:{X+7}], v{X+1} offset:{L_SEG}
v_mul_u32_u24 v{X+2}, {4*TILE}, v{VLANE}
s_waitcnt lgkmcnt(0)
""")
    for k in range(4):
        e(f"""
v_lshrrev_b32 v{X+8+k}, 16, v{X+4+k}
v_and_b32 v{X+4+k}, 0xffff, v{X+4+k}
v_sub_u32 v{X+8+k}, v{X+8+k}, v{X+4+k}
""")
    e(f"""
v_add_u32 v{X+9}, v{X+8}, v{X+9}
v_add_u32 v{X+10}, v{X+9}, v{X+10}
v_add_u32 v{X+11}, v{X+10}, v{X+11}
v_mov_b32 v{X+3}, v{X+11}
""")
    wave_scan(e, X + 3)
    e(f"""
v_sub_u32 v{X+12}, v{X+3}, v{X+11}
v_readlane_b32 s{S_TOT}, v{X+3}, 63
v_add_u32 v{X+13}, v{X+12}, v{X+8}
v_add_u32 v{X+14}, v{X+12}, v{X+9}
v_add_u32 v{X+15}, v{X+12}, v{X+10}
ds_write_b128 v{X+1}, v[{X+12}:{X+15}] offset:{L_P}
""")
    for k in range(4):
        e(f"""
v_sub_u32 v{X+4+k}, v{X+4+k}, v{X+12+k}
v_add_u32 v{X+4+k}, v{X+4+k}, v{X+2}
v_add_u32 v{X+2}, {TILE}, v{X+2}
""")
    e(f"ds_write_b128 v{X+1}, v[{X+4}:{X+7}] offset:{L_Q}")
    for i in range(2 * DPW):
        e(f"v_mov_b32 v{ACC+i}, 0")
    SR = X + 12
    SA = SR + 2 * (RSLOTS + 2)
    assert SA + RSLOTS + 2 <= ROW + G
    e(f"""
s_mov_b32 s{S_BASE}, 0
LM_round:
s_lshl_b32 s4, s3, 6
v_add_u32 v{X}, s4, v{VLANE}
v_lshlrev_b32 v{X+1}, 2, v{X}
v_mov_b32 v{X+2}, 0
v_mov_b32 v{VONE}, 8
ds_write_b32 v{X+1}, v{X+2} offset:{L_HIST}
v_add_u32 v{X}, s{S_BASE}, v{X}
""")
    for j in range(RSLOTS):
        e(f"v_cmp_gt_u32 s[{SM+2*j}:{SM+2*j+1}], s{S_TOT}, v{X}\nv_mov_b32 v{X+3}, 0")
        for st in (128, 64, 32, 16, 8, 4, 2, 1):
            e(f"""
ds_read_b32 v{X+4}, v{X+3} offset:{L_P+4*st}
v_add_u32 v{X+5}, {4*st}, v{X+3}
s_waitcnt lgkmcnt(0)
v_cmp_le_u32 vcc, v{X+4}, v{X}
s_nop 1
v_cndmask_b32 v{X+3}, v{X+3}, v{X+5}, vcc
""")
        e(f"""
ds_read_b32 v{X+4}, v{X+3} offset:{L_Q}
s_waitcnt lgkmcnt(0)
v_add_lshl_u32 v{X+4}, v{X+4}, v{X}, 3
s_mov_b64 exec, s[{SM+2*j}:{SM+2*j+1}]
buffer_load_dwordx2 v[{SR+2*j}:{SR+2*j+1}], v{X+4}, s[16:19], 0 offen
s_mov_b64 exec, -1
v_add_u32 v{X}, 512, v{X}
""")
    self_slots(SR + 2 * RSLOTS)
    m0 = SM + 2 * RSLOTS
    e(f"""
s_cmp_eq_u32 s{S_BASE}, 0
s_cselect_b64 s[{m0}:{m0+1}], -1, 0
s_cselect_b32 s{m0+2}, 0xffff, 0
s_mov_b32 s{m0+3}, 0
s_waitcnt vmcnt(0) lgkmcnt(0)
s_barrier
""")
    slow = [(SM + 2 * j, SR + 2 * j, SA + j, None) for j in range(RSLOTS + 2)]
    phase1(slow)
    scan_exchange(False)
    phase2(slow)
    e("s_branch LM_tail")
    return e.text()


def gen_pf(o):
    e = Asm()
    fl = "" if o["pre"] == "pf" else o["pre"]
    e(f"""
dn_pf_kernel:
s_cmp_ge_u32 s2, {NWG}
s_cbranch_scc1 LF_end
s_load_dwordx2 s[4:5], s[0:1], {o["presrc"]}
v_lshlrev_b32 v1, 4, v0
s_waitcnt lgkmcnt(0)
""")
    srd(e, 8, 4, 5, E * 256, o["preoff"] << 20)
    e("s_mul_i32 s4, s2, 16384")
    for i in range(10):
        e(f"buffer_load_dwordx4 v[{8+4*i}:{11+4*i}], v1, s[8:11], s4 offen {fl}\ns_add_u32 s4, s4, {250*16384}")
    e("s_waitcnt vmcnt(0)\nLF_end:\ns_endpgm")
    return e.text()


HEADER = """; DimeNet angular message passing on gfx950.
"""


def kd(name, vgpr):
    return f""".p2align 6
.amdhsa_kernel {name}
  .amdhsa_next_free_vgpr {vgpr}
  .amdhsa_next_free_sgpr 102
  .amdhsa_accum_offset {vgpr}
  .amdhsa_group_segment_fixed_size 0
  .amdhsa_kernarg_size 96
  .amdhsa_user_sgpr_count 2
  .amdhsa_user_sgpr_kernarg_segment_ptr 1
  .amdhsa_system_sgpr_workgroup_id_x 1
  .amdhsa_float_denorm_mode_32 3
.end_amdhsa_kernel
"""


def generate(**kw):
    o = dict(DEFAULTS)
    o.update(kw)
    s = HEADER
    if o["pre"]:
        s += f"; @launch kernel=dn_pf_kernel grid=({NWG},1,1) block=(1024,1,1) lds=0\n"
    s += f"; @launch kernel={PART} grid=({NWG},1,1) block=(1024,1,1) lds={P_LDS}\n"
    s += f"; @launch kernel={MAIN} grid=({NWG},1,1) block=(512,1,1) lds={L_LDS}\n"
    for _ in range(o["post"]):
        s += f"; @launch kernel=dn_nop_kernel grid=({NWG},1,1) block=(64,1,1) lds=0\n"
    s += '.amdgcn_target "amdgcn-amd-amdhsa--gfx950"\n.text\n'
    extra = []
    if o["pre"]:
        extra.append(("dn_pf_kernel", gen_pf(o)))
    if o["post"]:
        extra.append(("dn_nop_kernel", "dn_nop_kernel:\n    s_endpgm\n"))
    for name, body in [(PART, gen_part(o)), (MAIN, gen_main(o))] + extra:
        s += f".globl {name}\n.p2align 8\n.type {name},@function\n{body}"
    s += '.section .rodata,"a"\n' + kd(PART, 120) + kd(MAIN, 256)
    for name, _ in extra:
        s += kd(name, 64)
    return s


if __name__ == "__main__":
    out = sys.argv[1]
    kw = {}
    for a in sys.argv[2:]:
        k, v = a.split("=", 1)
        kw[k] = int(v) if v.lstrip("-").isdigit() else v.replace("_", " ")
    open(out, "w").write(generate(**kw))
```

```python
import math
import os
import struct
import sys

MAIN = "standalone__molecular_angular_dimenet__graph_kernel"
PART = "dn_part_kernel"

E, T = 160000, 2560000
NWG = 250
NBK = 256
TILE = T // NWG
NW = 8
DPW = 80
CH_SHIFT = 11
CH_ROWS = 1 << CH_SHIFT
NCH = 160000 // CH_ROWS + 1
NBIN = 128
NB = 4
G = NB * 8
STRIDE_ROWS = NBK * NW * 4
FULL_BK = (E - (DPW // 4 - 1) * STRIDE_ROWS) // 32

TCAP = TILE + 256
T_OFF = TCAP * 4
TS = TCAP * 6
WS_REC = 0
WS_OFF = NWG * TS
WS_RAD = WS_OFF + NWG * 1024

P_HIST, P_OFF, P_REC = 0, 1024, 2048
P_LDS = P_REC + 4 * 16384

SG = 2 * G
RPC = int(os.environ.get('RPC', 3520))
RROWS = 9 * RPC
RBYTES = RROWS * 2
RPW = RPC * 2 // NW
RH0 = 7 * RPC
LCAP = 1664
L_ZERO = 0
L_STG = 1024
L_HIST = L_STG + NW * 1024
L_N = L_HIST + NW * NBIN * 4
L_SEG = L_N + 64
L_P = L_SEG + 1024
L_Q = L_P + 1024
L_RING = L_Q + 1024
L_TH = L_RING + RBYTES + 128
L_REC = L_TH + NW * LCAP * 2
L_TRASH = L_REC + NW * LCAP * 4
L_LDS = L_TRASH + 1024
SPW = 912
CBIAS = 24576
RSLOTS = 3
RMAX = RSLOTS * 512
RAD_BYTES = 2 * (E + RH0 + (LCAP // G + 1) * RPC)
assert RMAX + DPW <= LCAP and LCAP % SG == 0 and L_LDS <= 163840 and L_REC % 16 == 0 and L_RING % 16 == 0
assert L_TH % 16 == 0 and RPW % 16 == 0 and L_RING < 65536
assert 0 <= L_REC - 2 * CBIAS < 65536 and 0 <= L_TH - CBIAS < 65536

F_SELF = 0xC0000000
F_DUMMY = 0x80000000
ROWMASK = 0x03FFFF00
DUMMY_REC = F_DUMMY | ROWMASK
assert TS % 128 == 0 and TS <= 4 * 16384 and E % 32 == 0
KEY_SHIFT = 8 + CH_SHIFT
M_STRETCH = (CH_ROWS << 16) // E


def f2u(x):
    return struct.unpack("<I", struct.pack("<f", x))[0]


def u2f(u):
    return struct.unpack("<f", struct.pack("<I", u))[0]


INV2PI = 1.0 / (2.0 * math.pi)
C_HI = f2u(INV2PI) & 0xFFFFFF00
C_LO = f2u(INV2PI - u2f(C_HI))

DEFAULTS = dict(pf1=0, pf1s=0, pf1pos=2, pf1e=0, pf2=8, pf0=0, ss=0, spf=0, nomid=0, jl=1, order=0, prio=2, acc="pk", drop="", cyc=0, hz=0, nojit=0, nobar=0, dummyrow=0, nodma=0, target=1440, rot=10, jifirst=1, pre="", presrc=0, preoff=0, post=0, in_flags="nt", rec_st="sc1", seg_ld="", row_ld="", out_st="sc1", stamps=0)


class Asm:
    def __init__(self):
        self.l = []

    def __call__(self, s):
        for line in s.strip("\n").split("\n"):
            line = line.strip()
            if not line:
                continue
            if line.endswith(":") or line.startswith("."):
                self.l.append(line)
            else:
                self.l.append("    " + line)

    def text(self):
        return "\n".join(self.l) + "\n"


def srd(e, d, lo, hi, nbytes, add=None):
    if add is None:
        e(f"s_mov_b32 s{d}, s{lo}\ns_mov_b32 s{d+1}, s{hi}")
    else:
        e(f"s_add_u32 s{d}, s{lo}, {add}\ns_addc_u32 s{d+1}, s{hi}, 0")
    e(f"s_mov_b32 s{d+2}, {nbytes}\ns_mov_b32 s{d+3}, 0x20000")


def wave_scan(e, v):
    for ctl in ("row_shr:1 row_mask:0xf", "row_shr:2 row_mask:0xf", "row_shr:4 row_mask:0xf",
                "row_shr:8 row_mask:0xf", "row_bcast:15 row_mask:0xa", "row_bcast:31 row_mask:0xc"):
        e(f"s_nop 1\nv_add_u32_dpp v{v}, v{v}, v{v} {ctl} bank_mask:0xf")


def stamp(e, o, v):
    if o["stamps"]:
        e(f"s_memrealtime vcc\ns_waitcnt lgkmcnt(0)\nv_mov_b32 v{v}, vcc_lo")


def stamps_out(e, o, regs, region, nwaves):
    if not o["stamps"]:
        return
    e("s_waitcnt vmcnt(0)")
    stamp(e, o, regs[-1])
    e("s_load_dwordx2 s[4:5], s[0:1], 88\ns_waitcnt lgkmcnt(0)")
    srd(e, 12, 4, 5, NBK * nwaves * 32, region)
    srd(e, 16, 4, 5, 64, 32 << 20)
    e(f"s_mul_i32 s4, s2, {nwaves}\ns_add_u32 s4, s4, s3\ns_lshl_b32 s4, s4, 5\nv_mov_b32 v0, s4")
    for k, r in enumerate(regs):
        e(f"buffer_store_dword v{r}, v0, s[12:15], 0 offen offset:{4*k}")
    if o["stamps"] == 2 and nwaves == NW:
        e(f"""
s_load_dwordx2 s[6:7], s[0:1], 80
v_mov_b32 v0, 0
s_and_b32 s4, s2, 127
s_or_b32 s4, s4, s3
s_cmp_lg_u32 s4, 0
s_cbranch_scc1 LM_end
s_lshr_b32 s4, s2, 2
s_waitcnt vmcnt(0) lgkmcnt(0)
""")
        srd(e, 20, 6, 7, 256)
        e("buffer_load_dword v1, v0, s[16:19], 0 offen sc0 sc1\nv_mov_b32 v0, s4\ns_waitcnt vmcnt(0)\ns_mov_b64 exec, 1")
        for k, r in enumerate(regs):
            e(f"v_sub_u32 v{r}, v{r}, v1\nbuffer_store_dword v{r}, v0, s[20:23], 0 offen offset:{4*k}")


def gen_part(o):
    e = Asm()
    fl = o["in_flags"]
    JI, KJ, TH = 4, 16, 28
    VD = 33
    U, REM, HA, RK = 36, 46, 56, 66
    S = 76
    PFD = 92
    ST = 96
    e(f"""
{PART}:
s_cmp_ge_u32 s2, {NWG}
s_cbranch_scc1 LP_end
s_load_dwordx8 s[12:19], s[0:1], 8
s_load_dwordx2 s[20:21], s[0:1], 40
s_load_dwordx2 s[22:23], s[0:1], 88
s_load_dwordx2 s[26:27], s[0:1], 0
""")
    stamp(e, o, ST)
    e(f"""
v_lshlrev_b32 v1, 4, v0
v_lshlrev_b32 v2, 3, v0
v_lshlrev_b32 v3, 2, v0
v_lshlrev_b32 v34, 1, v0
v_mov_b32 v35, 0
ds_write_b32 v3, v35
v_lshrrev_b32 v35, 6, v0
s_mul_i32 s4, s2, {TILE*4}
s_mul_i32 s5, s2, {TILE*2}
s_mul_i32 s6, s2, {TS}
v_readfirstlane_b32 s3, v35
s_mul_i32 s7, s2, {E//NWG*2}
s_lshl_b32 s8, s2, 10
s_mov_b32 s9, 16384
s_mov_b32 s10, 32768
s_mov_b32 s11, 8192
s_waitcnt lgkmcnt(0)
s_load_dword s24, s[20:21], 0
""")
    srd(e, 28, 18, 19, TILE * 4, "s4")
    e(f"""
buffer_load_dwordx4 v[{JI}:{JI+3}], v1, s[28:31], 0 offen {fl}
buffer_load_dwordx4 v[{JI+4}:{JI+7}], v1, s[28:31], s9 offen {fl}
buffer_load_dwordx2 v[{JI+8}:{JI+9}], v2, s[28:31], s10 offen {fl}
""")
    srd(e, 32, 16, 17, TILE * 4, "s4")
    srd(e, 36, 14, 15, TILE * 2, "s5")
    srd(e, 48, 12, 13, E // NWG * 2, "s7")

    def rest_loads():
        e(f"""
buffer_load_ushort v{VD}, v34, s[48:51], 0 offen
buffer_load_dwordx4 v[{KJ}:{KJ+3}], v1, s[32:35], 0 offen {fl}
buffer_load_dwordx2 v[{TH}:{TH+1}], v2, s[36:39], 0 offen {fl}
buffer_load_dwordx4 v[{KJ+4}:{KJ+7}], v1, s[32:35], s9 offen {fl}
buffer_load_dwordx2 v[{TH+2}:{TH+3}], v2, s[36:39], s11 offen {fl}
buffer_load_dwordx2 v[{KJ+8}:{KJ+9}], v2, s[32:35], s10 offen {fl}
buffer_load_dword v{TH+4}, v3, s[36:39], s9 offen {fl}
""")
    if not o["jifirst"]:
        rest_loads()
    npf = o["pf1"]

    def prefetch(start, n):
        srd(e, 56, 26, 27, E * 256)
        e(f"s_lshl_b32 s60, s2, 14\ns_add_u32 s60, s60, {start * NWG * 16384}")
        for i in range(n):
            e(f"buffer_load_dwordx4 v[{PFD}:{PFD+3}], v1, s[56:59], s60 offen\ns_add_u32 s60, s60, {NWG*16384}")
    srd(e, 40, 22, 23, TS, "s6")
    e(f"s_add_u32 s8, s8, {WS_OFF}")
    srd(e, 44, 22, 23, NBK * 4, "s8")
    e(f"s_add_u32 s7, s7, {WS_RAD}")
    srd(e, 52, 22, 23, E // NWG * 2, "s7")
    e(f"s_add_u32 s7, s7, {E*2}")
    srd(e, 64, 22, 23, E // NWG * 2, "s7")
    e(f"""
s_mov_b32 s25, 0x380
s_mov_b32 s61, 0xf8
v_mov_b32 v35, 4
s_barrier
""")
    if o["jifirst"]:
        e(f"s_waitcnt vmcnt({o['jifirst'] - 1})")
        rest_loads()
    for k in range(10):
        if k in (0, 4, 8):
            e(f"s_waitcnt vmcnt({9 - k // 4})")
        e(f"""
v_lshlrev_b32 v{U+k}, 2, v{JI+k}
v_lshrrev_b32 v{HA+k}, 6, v{JI+k}
v_bfi_b32 v{HA+k}, s25, v{U+k}, v{HA+k}
v_and_b32 v{HA+k}, 0x3fc, v{HA+k}
ds_add_rtn_u32 v{RK+k}, v{HA+k}, v35 offset:{P_HIST}
""")
    for k in range(10):
        e(f"""
v_lshl_add_u32 v{U+k}, v{JI+k}, 23, v{JI+k}
v_lshrrev_b32 v{JI+k}, 10, v{JI+k}
v_add_u32 v{U+k}, v{U+k}, v{U+k}
v_and_b32 v{U+k}, 0x1c000006, v{U+k}
v_and_or_b32 v{U+k}, v{JI+k}, s61, v{U+k}
""")
    e("s_waitcnt lgkmcnt(0)\ns_barrier")
    stamp(e, o, ST + 1)
    e(f"""
v_and_b32 v{S+12}, 63, v0
v_lshlrev_b32 v{S+12}, 4, v{S+12}
s_cmp_lg_u32 s3, 0
s_cbranch_scc1 LP_noscan
s_setprio 3
ds_read_b128 v[{S}:{S+3}], v{S+12} offset:{P_HIST}
s_waitcnt lgkmcnt(0)
""")
    for k in range(4):
        e(f"v_add_u32 v{S+8+k}, 4, v{S+k}\nv_and_b32 v{S+8+k}, -8, v{S+8+k}")
    e(f"""
v_add_u32 v{S+9}, v{S+8}, v{S+9}
v_add_u32 v{S+10}, v{S+9}, v{S+10}
v_add_u32 v{S+11}, v{S+10}, v{S+11}
v_mov_b32 v{S+13}, v{S+11}
""")
    wave_scan(e, S + 13)
    e(f"""
v_sub_u32 v{S+4}, v{S+13}, v{S+11}
v_add_u32 v{S+5}, v{S+4}, v{S+8}
v_add_u32 v{S+6}, v{S+4}, v{S+9}
v_add_u32 v{S+7}, v{S+4}, v{S+10}
ds_write_b128 v{S+12}, v[{S+4}:{S+7}] offset:{P_OFF}
""")
    for k in range(4):
        e(f"v_add_u32 v{S+k}, v{S+k}, v{S+4+k}\nv_lshrrev_b32 v{S+4+k}, 2, v{S+4+k}\nv_lshl_or_b32 v{S+k}, v{S+k}, 14, v{S+4+k}")
    e("LP_noscan:")
    e(f"""
s_waitcnt lgkmcnt(0)
s_barrier
s_setprio 0
""")
    for k in range(10):
        e(f"ds_read_b32 v{HA+k}, v{HA+k} offset:{P_OFF}")
    for k in range(10):
        e(f"s_waitcnt lgkmcnt({9-k})\nv_add_u32 v{HA+k}, v{HA+k}, v{RK+k}\nv_lshrrev_b32 v{RK+k}, 1, v{HA+k}")
    stamp(e, o, ST + 2)
    for k in range(10):
        if k in (0, 4, 8):
            e(f"s_waitcnt vmcnt({4 - k // 2})")
        e(f"""
v_lshl_or_b32 v{KJ+k}, v{KJ+k}, 8, v{U+k}
ds_write_b32 v{HA+k}, v{KJ+k} offset:{P_REC}
ds_write_b16{'_d16_hi' if k & 1 else ''} v{RK+k}, v{TH+k//2} offset:{P_REC+T_OFF}
""")
    e(f"""
s_lshl_b32 s24, s24, 16
v_lshlrev_b32 v{VD}, 16, v{VD}
v_mul_f32 v{S+8}, s24, v{VD}
v_cvt_pk_bf16_f32 v{S+8}, v{S+8}, v{S+8}
v_lshlrev_b32 v{S+8}, 16, v{S+8}
v_mul_f32 v{S+9}, {hex(C_HI)}, v{S+8}
v_fract_f32 v{S+9}, v{S+9}
v_fmac_f32 v{S+9}, {hex(C_LO)}, v{S+8}
v_sin_f32 v{S+9}, v{S+9}
v_rcp_f32 v{VD}, v{VD}
v_cvt_pk_bf16_f32 v{S+9}, v{S+9}, v{S+9}
v_lshlrev_b32 v{S+9}, 16, v{S+9}
v_mul_f32 v{S+9}, v{S+9}, v{VD}
v_cvt_pk_bf16_f32 v{S+9}, v{S+9}, v{S+9}
""")
    if npf:
        prefetch(o["pf1s"], npf)
    e(f"""
buffer_store_short v{S+9}, v34, s[52:55], 0 offen
buffer_store_short v{S+9}, v34, s[64:67], 0 offen
s_cmp_lg_u32 s3, 0
s_cbranch_scc1 LP_nooff
""")
    e(f"""
buffer_store_dwordx4 v[{S}:{S+3}], v{S+12}, s[44:47], 0 offen
LP_nooff:
v_add_u32 v2, 16384, v1
v_add_u32 v3, 32768, v1
v_add_u32 v34, 49152, v1
s_waitcnt lgkmcnt(0)
s_barrier
""")
    stamp(e, o, ST + 3)
    for j in range(4):
        e(f"ds_read_b128 v[{4+4*j}:{7+4*j}], v1 offset:{P_REC+j*16384}")
    for j, a in enumerate((1, 2, 3, 34)):
        e(f"s_waitcnt lgkmcnt({3-j})")
        e(f"buffer_store_dwordx4 v[{4+4*j}:{7+4*j}], v{a}, s[40:43], 0 offen {o['rec_st']}")
    if o["pf1e"]:
        prefetch(o["pf1s"] + npf, o["pf1e"])
    stamps_out(e, o, [ST, ST + 1, ST + 2, ST + 3, ST + 4], 32 << 20, 16)
    e("LP_end:\ns_endpgm")
    return e.text()


def gen_main(o):
    e = Asm()
    TARGET = o["target"]
    ACC, ROW = 0, 160
    FILT = ROW + G
    UNP = FILT + 16
    A = UNP + 16
    W = A + 4
    AU = W + 4
    (VPK, VNXT, VCLEAN, VTA, VTH, VRAD, VRA, VL16, VAA, VAB, VQ, VT0, VT1, VSW, VLANE, VSE) = range(AU + 8, AU + 24)
    VCUR = VPK
    assert VSE <= 255
    SI = 36
    SM = 36
    X = ROW
    VONE = VRAD
    SE0, SE1, SE2 = 30, 31, 32
    S_NIT, S_N, S_MODE = 28, 29, 35
    S_TOT, S_BASE = 100, 101
    MA, MB = 24, 26
    S_R0, S_OFF, S_SEL, S_LO, S_SPAN, S_DSRC, S_DDST, S_DLIM, S_OOW, S_PF = 44, 45, 46, 47, 48, 49, 50, 51, 52, 54
    S_OUT = 55

    e(f"""
{MAIN}:
s_cmp_ge_u32 s2, {NBK}
s_cbranch_scc1 LM_end
s_load_dwordx2 s[4:5], s[0:1], 0
s_load_dwordx2 s[6:7], s[0:1], 88
s_load_dwordx4 s[40:43], s[0:1], 56
s_load_dwordx2 s[44:45], s[0:1], 48
""")
    stamp(e, o, VAA)
    e(f"""
v_lshrrev_b32 v{X}, 6, v0
v_and_b32 v{VLANE}, 63, v0
v_lshlrev_b32 v{X+1}, 2, v0
v_readfirstlane_b32 s3, v{X}
v_mov_b32 v{X+2}, 0
ds_write_b32 v{X+1}, v{X+2} offset:{L_HIST}
ds_write_b32 v{X+1}, v{X+2} offset:{L_HIST+2048}
ds_write_b32 v{X+1}, v{X+2} offset:{L_ZERO}
s_and_b32 s33, s2, 7
s_lshr_b32 s34, s2, 3
s_lshl_b32 s{S_TOT}, s34, 13
s_mul_i32 s{S_BASE}, s33, {o["rot"]}
s_lshl_b32 s33, s33, 5
s_add_u32 s34, s34, s33
v_and_b32 v{X+3}, 15, v{VLANE}
v_lshlrev_b32 v{VQ}, 4, v{X+3}
v_lshrrev_b32 v{X+4}, 5, v{VLANE}
v_lshrrev_b32 v{X+11}, 4, v{VLANE}
v_and_b32 v{X+5}, 7, v{VLANE}
v_lshl_add_u32 v{X+5}, v{X+5}, 2, v{X+11}
s_lshl_b32 s33, s3, 15
s_lshl_b32 s34, s34, 2
s_add_u32 s33, s33, s34
v_lshl_add_u32 v{X+6}, v{X+5}, 10, s33
s_waitcnt lgkmcnt(0)
""")
    srd(e, 24, 6, 7, NWG * 1024, WS_OFF)
    e(f"buffer_load_dword v{VSE}, v{X+6}, s[24:27], 0 offen")
    srd(e, 8, 4, 5, o["hz"] if o["hz"] else E * 256)
    srd(e, 16, 6, 7, NWG * TS)
    srd(e, 20, 6, 7, RAD_BYTES, WS_RAD)
    e(f"""
v_lshlrev_b32 v{VL16}, 4, v{VLANE}
s_mul_i32 s5, s{S_BASE}, {CH_ROWS*256}
s_lshl_b32 s4, s3, 10
s_add_u32 s4, s4, s5
s_add_u32 s{S_TOT}, s4, s{S_TOT}
""")
    pfop = f"buffer_load_dwordx4 v[{X+24}:{X+27}], v{VL16}, s[8:11], s{S_TOT} offen\ns_add_u32 s{S_TOT}, s{S_TOT}, {32*8192}"
    for _ in range(o["pf0"]):
        e(pfop)

    def prefill():
        for base, per, val in ((L_REC, LCAP * 4, F_DUMMY | ((E - 1) << 8) if o["dummyrow"] else DUMMY_REC), (L_TH, LCAP * 2, 0)):
            e(f"s_mul_i32 s4, s3, {per}\ns_add_u32 s4, s4, {base}\nv_lshl_add_u32 v{VT0}, v{VLANE}, 4, s4")
            r = A if val else UNP
            for k in range(4):
                e(f"v_mov_b32 v{r+k}, {hex(val)}")
            n = per // 1024
            for k in range(n):
                e(f"ds_write_b128 v{VT0}, v[{r}:{r+3}] offset:{1024*k}")
            rest = per % 1024 // 16
            if rest:
                assert rest <= 32
                e(f"s_mov_b64 exec, {hex((1 << rest) - 1) if rest < 32 else '0xffffffff'}")
                if rest == 32:
                    e("s_mov_b32 exec_hi, 0")
                e(f"ds_write_b128 v{VT0}, v[{r}:{r+3}] offset:{1024*n}\ns_mov_b64 exec, -1")
    e(f"s_load_dwordx2 s[{SE0}:{SE0+1}], s[44:45], 0")
    srd(e, 12, 40, 41, 768)
    srd(e, 36, 42, 43, 256)
    e(f"""
v_bfe_u32 v{X+7}, v{VLANE}, 4, 1
v_lshl_add_u32 v{X+7}, v{X+7}, 1, v{X+4}
v_lshl_add_u32 v{X+7}, v{X+7}, 1, v{VQ}
buffer_load_ushort v{W}, v{X+7}, s[12:15], 0 offen
buffer_load_ushort v{FILT}, v{X+7}, s[12:15], 0 offen offset:256
buffer_load_ushort v{W+1}, v{X+7}, s[12:15], 0 offen offset:512
buffer_load_ushort v{FILT+1}, v{X+7}, s[36:39], 0 offen
buffer_load_ushort v{W+2}, v{X+7}, s[12:15], 0 offen offset:8
buffer_load_ushort v{FILT+2}, v{X+7}, s[12:15], 0 offen offset:264
buffer_load_ushort v{W+3}, v{X+7}, s[12:15], 0 offen offset:520
buffer_load_ushort v{FILT+3}, v{X+7}, s[36:39], 0 offen offset:8
""")
    prefill()
    def self_slots(r0, th):
        e(f"""
s_lshl_b32 s33, s2, 5
s_lshl_b32 s34, s3, 2
s_add_u32 s33, s33, s34
s_lshl_b32 s34, s3, 26
s_or_b32 s34, s34, {hex(F_SELF)}
v_mov_b32 v{th}, 0
""")
        for k in range(2):
            e(f"""
v_add_u32 v{VT0}, {64*k}, v{VLANE}
v_lshrrev_b32 v{VT1}, 2, v{VT0}
v_mul_u32_u24 v{VT1}, {STRIDE_ROWS}, v{VT1}
v_and_b32 v{r0+k}, 3, v{VT0}
v_add3_u32 v{VT1}, v{VT1}, v{r0+k}, s33
v_lshl_or_b32 v{r0+k}, v{VT1}, 7, v{VT0}
v_lshlrev_b32 v{r0+k}, 1, v{r0+k}
v_or_b32 v{r0+k}, s34, v{r0+k}
""")
        e(f"s_cmp_lt_u32 s2, {FULL_BK}\ns_cselect_b32 s34, 16, 12\ns_bfm_b32 s34, s34, 0")
    FR, FT, FX, FS, FA, FK = 0, 32, 48, 52, 56, 92
    e(f"""
v_lshlrev_b32 v{X+14}, 2, v{X+3}
v_mul_u32_u24 v{X+15}, {TS}, v{X+11}
v_add_u32 v{X+13}, {T_OFF}, v{X+15}
v_mov_b32 v{VONE}, 4
s_mul_i32 s33, s3, {32*TS}
s_mov_b32 s{S_MODE}, 0
s_waitcnt vmcnt({o["pf0"] + 8})
""")
    if o["ss"]:
        stamp(e, o, VAB)
    e(f"""
v_lshrrev_b32 v{X+16}, 16, v{VSE}
v_and_b32 v{X+17}, 0xffff, v{VSE}
v_sub_u32 v{X+16}, v{X+16}, v{X+17}
v_cmp_lt_u32 s[4:5], 64, v{X+16}
s_mov_b64 s[12:13], 0
s_mov_b64 s[14:15], 0
s_and_b32 s4, s4, 0x00ff00ff
s_and_b32 s5, s5, 0x00ff00ff
s_cmp_eq_u64 s[4:5], 0
s_cbranch_scc1 LM_noextra
v_mov_b32 v{X+17}, 128
v_cmp_gt_u32 vcc, v{X+16}, v{X+17}
s_bcnt1_i32_b64 s6, s[4:5]
s_cmp_gt_u32 s6, 2
s_cselect_b32 s{S_MODE}, 1, 0
s_cmp_lg_u64 vcc, 0
s_cselect_b32 s{S_MODE}, 1, s{S_MODE}
""")
    for k in range(2):
        if k:
            e("s_cmp_eq_u64 s[4:5], 0\ns_cbranch_scc1 LM_noextra")
        e(f"""
s_ff1_i32_b64 s6, s[4:5]
s_bitset0_b64 s[4:5], s6
v_readlane_b32 s7, v{VSE}, s6
s_and_b32 s34, s6, 7
s_lshr_b32 s6, s6, 4
s_lshl_b32 s34, s34, 2
s_add_u32 s6, s6, s34
s_mul_i32 s6, s6, {TS}
s_add_u32 s6, s6, s33
s_and_b32 s34, s7, 0xffff
s_lshr_b32 s7, s7, 16
s_add_u32 s34, s34, 64
v_add_u32 v{X+17}, s34, v{VLANE}
v_cmp_gt_u32 s[{12+2*k}:{13+2*k}], s7, v{X+17}
v_lshlrev_b32 v{X+18}, 2, v{X+17}
v_lshlrev_b32 v{X+17}, 1, v{X+17}
v_add_u32 v{X+17}, {T_OFF}, v{X+17}
s_mov_b64 exec, s[{12+2*k}:{13+2*k}]
buffer_load_dword v{FX+2*k}, v{X+18}, s[16:19], s6 offen
buffer_load_ushort v{FX+2*k+1}, v{X+17}, s[16:19], s6 offen
s_mov_b64 exec, -1
""")
    e("LM_noextra:")
    for i in range(8):
        t, en, ta = X + 16 + 3 * (i & 1), X + 17 + 3 * (i & 1), X + 18 + 3 * (i & 1)
        m = SM + 8 * i
        e(f"""
v_mov_b32_dpp v{t}, v{VSE} row_newbcast:{i} row_mask:0xf bank_mask:0xf
v_lshrrev_b32 v{en}, 16, v{t}
v_and_b32 v{t}, 0xffff, v{t}
v_add_u32 v{t}, v{t}, v{X+14}
v_sub_u32 v{en}, v{en}, v{t}
v_cmp_lt_i32 s[{m}:{m+1}], 0, v{en}
v_lshl_add_u32 v{ta}, v{t}, 1, v{X+13}
v_lshl_add_u32 v{t}, v{t}, 2, v{X+15}
v_cmp_lt_i32 s[{m+2}:{m+3}], 1, v{en}
v_cmp_lt_i32 s[{m+4}:{m+5}], 2, v{en}
v_cmp_lt_i32 s[{m+6}:{m+7}], 3, v{en}
s_mov_b64 exec, s[{m}:{m+1}]
buffer_load_dwordx4 v[{FR+4*i}:{FR+4*i+3}], v{t}, s[16:19], s33 offen {o['seg_ld']}
buffer_load_dwordx2 v[{FT+2*i}:{FT+2*i+1}], v{ta}, s[16:19], s33 offen {o['seg_ld']}
s_mov_b64 exec, -1
s_add_u32 s33, s33, {4*TS}
""")
    if o["ss"]:
        stamp(e, o, VCUR)
    e(f"""
v_and_b32 v{X+8}, 1, v{VLANE}
v_cmp_eq_u32 s[4:5], v{X+8}, v{X+4}
v_bfe_u32 v{X+9}, v{VLANE}, 2, 1
v_cmp_eq_u32 vcc, 0, v{X+9}
s_and_b64 s[{MA}:{MA+1}], s[4:5], vcc
s_andn2_b64 s[{MB}:{MB+1}], s[4:5], vcc
v_bfe_u32 v{X+10}, v{VLANE}, 1, 1
v_lshlrev_b32 v{X+8}, 4, v{X+8}
v_mov_b32 v{X+12}, 0x3f80
v_lshlrev_b32 v{X+8}, v{X+8}, v{X+12}
v_sub_u32 v{X+12}, v{X+11}, v{X+10}
v_bfe_u32 v{X+13}, v{VLANE}, 2, 2
v_lshl_add_u32 v{X+13}, v{X+12}, 2, v{X+13}
""")
    for u in range(2):
        for r in range(4):
            e(f"v_cmp_eq_u32 vcc, {8*u+r}, v{X+13}\ns_nop 1\nv_cndmask_b32 v{AU+4*u+r}, 0, v{X+8}, vcc")
    self_slots(FS, FS + 2)
    e(f"""
s_waitcnt lgkmcnt(0)
s_lshl_b32 s{SE2}, s{SE1}, 16
s_and_b32 s{SE1}, s{SE0}, 0xffff0000
s_lshl_b32 s{SE0}, s{SE0}, 16
s_barrier
""")

    def setexec(m):
        if m == "all":
            e("s_mov_b64 exec, -1")
        elif m == "lo16":
            e("s_mov_b32 exec_lo, s34\ns_mov_b32 exec_hi, 0")
        else:
            e(f"s_mov_b64 exec, s[{m}:{m+1}]")

    def phase1(slots):
        for (m, r, th, hi, a, k, wait) in slots:
            if wait is not None:
                e(f"s_waitcnt vmcnt({wait})")
            setexec(m)
            e(f"""
v_lshrrev_b32 v{a}, {KEY_SHIFT-2}, v{r}
v_and_b32 v{a}, {hex(NW*NBIN*4-4)}, v{a}
ds_add_rtn_u32 v{k}, v{a}, v{VONE} offset:{L_HIST}
""")
        e("s_mov_b64 exec, -1\ns_waitcnt vmcnt(0) lgkmcnt(0)\ns_barrier")

    def phase2(slots, side=(), lead=4):
        ops = []
        n = len(slots)
        side = list(side)
        for s in range(n + lead):
            if s < n:
                m, r, th, hi, a, k, _ = slots[s]
                setexec(m)
                e(f"ds_read_b32 v{a}, v{a} offset:{L_HIST}")
                ops.append(("A", s))
            if side and s % 2 == 1:
                e("s_mov_b64 exec, -1")
                e(side.pop(0))
            if s >= lead:
                m, r, th, hi, a, k, _ = slots[s - lead]
                younger = len(ops) - 1 - ops.index(("A", s - lead))
                assert younger <= 15
                setexec(m)
                e(f"""
s_waitcnt lgkmcnt({younger})
v_add_u32 v{a}, v{a}, v{k}
ds_write_b32 v{a}, v{r} offset:{L_REC - 2*CBIAS}
v_lshrrev_b32 v{k}, 1, v{a}
ds_write_b16{"_d16_hi" if hi else ""} v{k}, v{th} offset:{L_TH - CBIAS}
""")
                ops += [("W", s - lead), ("T", s - lead)]
        e("s_mov_b64 exec, -1")
        for x in side:
            e(x)

    def scan_exchange(flagged):
        e(f"s_lshl_b32 s4, s3, 9\nv_mov_b32 v{X+7}, {NBIN-1}")
        for k in range(2):
            e(f"""
v_lshl_add_u32 v{X+4+k}, v{VLANE}, 1, {k}
{f"v_add_u32 v{X+k}, s{S_BASE}, v{X+4+k}" if flagged else f"v_mov_b32 v{X+k}, v{X+4+k}"}
v_subrev_u32 v{X+6}, {NCH}, v{X+k}
v_cmp_gt_u32 vcc, {NCH}, v{X+4+k}
v_min_u32 v{X+k}, v{X+k}, v{X+6}
s_nop 0
v_cndmask_b32 v{X+k}, v{X+7}, v{X+k}, vcc
v_lshl_add_u32 v{X+k}, v{X+k}, 2, s4
ds_read_b32 v{X+2+k}, v{X+k} offset:{L_HIST}
""")
        e(f"""
s_mul_i32 s5, s3, {LCAP*4}
s_add_u32 s5, s5, {2*CBIAS}
s_waitcnt lgkmcnt(0)
v_add_u32 v{X+3}, v{X+2}, v{X+3}
v_mov_b32 v{X+6}, v{X+3}
""")
        wave_scan(e, X + 6)
        e(f"""
v_sub_u32 v{X+3}, v{X+6}, v{X+3}
v_readlane_b32 s{S_N}, v{X+6}, 63
v_add_u32 v{X+3}, s5, v{X+3}
v_add_u32 v{X+2}, v{X+3}, v{X+2}
s_lshr_b32 s{S_N}, s{S_N}, 2
s_mov_b32 s6, s{S_N}
""")
        if flagged:
            e(f"""
s_max_u32 s6, s6, {TARGET}
s_sub_u32 s7, s6, s{S_N}
s_mul_i32 s7, s7, {M_STRETCH}
v_mul_u32_u24 v{X+4}, s7, v{X+4}
v_mul_u32_u24 v{X+5}, s7, v{X+5}
v_lshrrev_b32 v{X+4}, 16, v{X+4}
v_lshrrev_b32 v{X+5}, 16, v{X+5}
v_lshl_add_u32 v{X+3}, v{X+4}, 2, v{X+3}
v_lshl_add_u32 v{X+2}, v{X+5}, 2, v{X+2}
s_cmp_lg_u32 s{S_MODE}, 0
s_cselect_b32 s6, 0x7fffffff, s6
""")
        e(f"""
ds_write_b32 v{X}, v{X+3} offset:{L_HIST}
ds_write_b32 v{X+1}, v{X+2} offset:{L_HIST}
s_lshl_b32 s4, s3, 2
v_mov_b32 v{X+4}, s4
v_mov_b32 v{X+5}, s6
ds_write_b32 v{X+4}, v{X+5} offset:{L_N}
v_mov_b32 v{X+6}, 0
s_waitcnt lgkmcnt(0)
s_barrier
ds_read_b128 v[{X}:{X+3}], v{X+6} offset:{L_N}
ds_read_b128 v[{X+8}:{X+11}], v{X+6} offset:{L_N+16}
s_waitcnt lgkmcnt(0)
v_max3_u32 v{X}, v{X}, v{X+1}, v{X+2}
v_max3_u32 v{X+3}, v{X+3}, v{X+8}, v{X+9}
v_max3_u32 v{X}, v{X}, v{X+10}, v{X+11}
v_max_u32 v{X}, v{X}, v{X+3}
s_nop 0
v_readfirstlane_b32 s{S_NIT}, v{X}
""")

    fast = [("all", FS, FS + 2, 0, FA, FK, None), ("lo16", FS + 1, FS + 2, 0, FA + 1, FK + 1, None)]
    for i in range(8):
        for j in range(4):
            n = len(fast)
            fast.append((SM + 8 * i + 2 * j, FR + 4 * i + j, FT + 2 * i + j // 2, j & 1, FA + n, FK + n, 15 - 2 * i if j == 0 else None))
    fast += [(12, FX, FX + 1, 0, FA + 34, FK + 34, None), (14, FX + 2, FX + 3, 0, FA + 35, FK + 35, None)]
    if not o["ss"]:
        stamp(e, o, VAB)
    phase1(fast)
    for i in range(4):
        e(f"v_lshl_or_b32 v{W+i}, v{FILT+i}, 16, v{W+i}")
    stamp(e, o, VNXT if o["ss"] else VCUR)
    scan_exchange(True)
    if not o["ss"]:
        stamp(e, o, VNXT)
    e(f"""
s_cmp_gt_u32 s{S_NIT}, {LCAP}
s_cbranch_scc1 LM_slow
s_mul_i32 s6, s{S_BASE}, {CH_ROWS*2}
s_mul_i32 s4, s3, {RPW}
s_add_u32 s6, s6, s4
s_add_u32 s7, s4, {L_RING}
""")
    side = [f"""
s_mov_b32 m0, s7
s_add_u32 s7, s7, {RPC*2}
buffer_load_dwordx4 v{VL16}, s[20:23], s6 offen lds
s_add_u32 s6, s6, {RPC*2}
"""] * (RH0 // RPC)
    side += [pfop] * o["pf2"]
    phase2(fast, side)

    e(f"""
LM_tail:
s_load_dwordx2 s[12:13], s[0:1], 72
s_add_u32 s{S_NIT}, s{S_NIT}, {G-1}
s_and_b32 s{S_NIT}, s{S_NIT}, {-G}
s_mul_i32 s5, s3, {LCAP*4}
s_mul_i32 s{S_R0}, s{S_BASE}, {CH_ROWS}
s_cmp_lg_u32 s{S_MODE}, 0
s_cselect_b32 s{S_R0}, 0, s{S_R0}
s_cselect_b32 s{S_SPAN}, 0, {RROWS - 64 - RPC}
s_mov_b32 s{S_LO}, {RH0 + RPC + 64 - RROWS}
s_mov_b32 s{S_OFF}, {(2 * (RH0 + RPC) + 128) % RBYTES}
s_mov_b32 s{S_SEL}, 0x0c040c00
s_mul_i32 s4, s3, {RPW}
s_add_u32 s{S_DLIM}, s4, {L_RING + RBYTES}
s_add_u32 s{S_DDST}, s4, {L_RING + 2 * RH0}
s_lshl_b32 s{S_DSRC}, s{S_R0}, 1
s_add_u32 s{S_DSRC}, s{S_DSRC}, s4
s_add_u32 s{S_DSRC}, s{S_DSRC}, {2 * RH0}
s_lshl_b32 s{S_PF}, s2, 3
s_add_u32 s{S_PF}, s{S_PF}, s3
s_mul_i32 s{S_PF}, s{S_PF}, {SPW}
s_add_u32 s{S_PF}, s{S_PF}, {o["spf"] * 256}
v_lshlrev_b32 v{VL16}, 4, v{VLANE}
v_and_b32 v{X}, 15, v{VLANE}
v_lshrrev_b32 v{X+1}, 4, v{VLANE}
v_lshl_add_u32 v{X}, v{X}, 2, v{X+1}
s_lshr_b32 s6, s5, 1
s_add_u32 s5, s5, {L_REC}
s_add_u32 s6, s6, {L_TH}
v_lshl_add_u32 v{VRA}, v{X}, 2, s5
v_lshl_add_u32 v{VTA}, v{X}, 1, s6
s_lshl_b32 s4, s3, 10
s_add_u32 s4, s4, {L_STG}
v_lshl_add_u32 v{VSW}, v{X}, 3, s4
v_bfe_u32 v{X}, v{VLANE}, 3, 2
v_bfe_u32 v{X+1}, v{VLANE}, 1, 1
v_lshl_add_u32 v{X}, v{X}, 1, v{X+1}
v_lshl_add_u32 v{X}, v{X}, 3, s4
s_lshl_b32 s{S_OUT}, s2, 5
s_lshl_b32 s4, s3, 2
s_add_u32 s{S_OUT}, s{S_OUT}, s4
s_lshl_b32 s{S_OUT}, s{S_OUT}, 8
s_mov_b32 s14, {E*256}
s_mov_b32 s15, 0x20000
s_waitcnt vmcnt({o["pf2"]}) lgkmcnt(0)
s_barrier
""")

    if o["stamps"]:
        for k, r in enumerate((VAA, VAB, VCUR, VNXT)):
            e(f"v_readfirstlane_b32 s{92+k}, v{r}")
        stamp(e, o, VAA)
        e(f"s_nop 0\nv_readfirstlane_b32 s96, v{VAA}\ns_mov_b32 s97, 0")
        if o["cyc"]:
            e("s_memtime s[98:99]\ns_waitcnt lgkmcnt(0)")

    def readA(b):
        e(f"ds_read_b64 v[{A}:{A+1}], v{VAA} offset:{b*64}\nds_read_b64 v[{A+2}:{A+3}], v{VAB} offset:{b*64}")

    def filt():
        if "m" not in o["drop"]:
            e(f"v_mfma_f32_32x32x16_bf16 v[{FILT}:{FILT+15}], v[{A}:{A+3}], v[{W}:{W+3}], 0")

    def loads(rb, lane):
        for i, t in enumerate((VT0, VT1)):
            e(f"v_or_b32_dpp v{t}, v{VCLEAN}, v{VQ} row_newbcast:{lane+i} row_mask:0xf bank_mask:0xf")
            e(f"buffer_load_dwordx4 v[{ROW+rb*8+4*i}:{ROW+rb*8+4*i+3}], v{t}, s[8:11], 0 offen {o['row_ld']}")

    def next_records(off):
        e(f"ds_read_b32 v{VNXT}, v{VRA} offset:{off*4}\nds_read_u16 v{VTH}, v{VTA} offset:{off*2}")

    def pack():
        e(f"""
v_mov_b32_dpp v{VPK}, v{VNXT} row_shl:1 row_mask:0xf bank_mask:0xf
v_perm_b32 v{VPK}, v{VPK}, v{VNXT}, s{S_SEL}
v_or_b32 v{VPK}, 0xc000c000, v{VPK}
""")

    def lookup():
        e(f"""
v_bfe_u32 v{VT0}, v{VNXT}, 8, 18
v_subrev_u32 v{VT0}, s{S_R0}, v{VT0}
v_add_u32 v{VT1}, {E}, v{VT0}
v_min_u32 v{VT0}, v{VT0}, v{VT1}
v_subrev_u32 v{VT0}, s{S_LO}, v{VT0}
v_lshl_add_u32 v{VT1}, v{VT0}, 1, s{S_OFF}
v_cmp_le_u32 s[{S_OOW}:{S_OOW+1}], s{S_SPAN}, v{VT0}
v_subrev_u32 v{VT0}, {RBYTES}, v{VT1}
v_min_u32 v{VT1}, v{VT0}, v{VT1}
v_cmp_le_i32 vcc, {hex(F_SELF)}, v{VNXT}
ds_read_u16 v{VRAD}, v{VT1} offset:{L_RING}
s_and_b64 s[{S_OOW}:{S_OOW+1}], s[{S_OOW}:{S_OOW+1}], vcc
""")

    def fallback(label, wait=True):
        e(f"""
s_cmp_eq_u64 s[{S_OOW}:{S_OOW+1}], 0
s_cbranch_scc1 {label}
s_waitcnt lgkmcnt(0)
s_mov_b64 exec, s[{S_OOW}:{S_OOW+1}]
v_bfe_u32 v{VRAD}, v{VNXT}, 8, 18
v_lshlrev_b32 v{VRAD}, 1, v{VRAD}
buffer_load_ushort v{VRAD}, v{VRAD}, s[20:23], 0 offen
s_mov_b64 exec, -1
{"s_waitcnt vmcnt(0)" if wait else ""}
{"s_add_u32 s97, s97, 1" if o["stamps"] and not o["cyc"] else ""}
{label}:
""")

    def ring_dma():
        e(f"s_mov_b32 m0, s{S_DDST}\ns_add_u32 s{S_DDST}, s{S_DDST}, {RPC*2}")
        e(f"buffer_load_dwordx4 v{VL16}, s[20:23], s{S_DSRC} offen lds")

    def ring_advance():
        e(f"""
s_cmp_ge_u32 s{S_DDST}, s{S_DLIM}
s_cselect_b32 s4, {RBYTES}, 0
s_sub_u32 s{S_DDST}, s{S_DDST}, s4
s_add_u32 s{S_DSRC}, s{S_DSRC}, {RPC*2}
""")

    def window_advance():
        e(f"""
s_add_u32 s{S_LO}, s{S_LO}, {2*RPC}
s_add_u32 s{S_OFF}, s{S_OFF}, {4*RPC}
s_cmp_ge_u32 s{S_OFF}, {RBYTES}
s_cselect_b32 s4, {RBYTES}, 0
s_sub_u32 s{S_OFF}, s{S_OFF}, s4
""")

    J = (VTH, VSE, VLANE)
    t = UNP

    jl = o["jl"]

    def jit_angles():
        if jl >= 3:
            e(f"""
v_lshlrev_b32 v{J[0]}, 16, v{VTH}
v_mul_f32 v{t}, 0x40400000, v{J[0]}
v_cvt_pk_bf16_f32 v{t}, v{t}, v{t}
v_and_b32 v{J[2]}, 0xffff0000, v{t}
""")
            return
        e(f"""
v_lshlrev_b32 v{VTH}, 16, v{VTH}
v_mul_f32 v{t}, s{SE0}, v{VTH}
v_mul_f32 v{t+1}, s{SE1}, v{VTH}
v_mul_f32 v{t+2}, s{SE2}, v{VTH}
v_cvt_pk_bf16_f32 v{t+1}, v{t}, v{t+1}
v_cvt_pk_bf16_f32 v{t+2}, v{t+2}, v{t+2}
v_lshlrev_b32 v{J[0]}, 16, v{t+1}
v_and_b32 v{J[1]}, 0xffff0000, v{t+1}
v_and_b32 v{J[2]}, 0xffff0000, v{t+2}
""")

    KS = (0, 2) if jl >= 3 else (0, 1, 2)

    def jit_reduce():
        if jl >= 1:
            for k in KS:
                e(f"v_mul_f32 v{J[k]}, 0.15915494, v{J[k]}")
            for k in KS:
                e(f"v_fract_f32 v{J[k]}, v{J[k]}")
            return
        for k in KS:
            e(f"v_mul_f32 v{t+k}, {hex(C_HI)}, v{J[k]}")
        for k in KS:
            e(f"v_fract_f32 v{t+k}, v{t+k}")
        for k in KS:
            e(f"v_fmamk_f32 v{J[k]}, v{J[k]}, {hex(C_LO)}, v{t+k}")

    def jit_cos():
        for k in KS:
            e(f"v_cos_f32 v{J[k]}, v{J[k]}")
        if jl >= 3:
            e(f"v_add_f32 v{J[1]}, v{J[0]}, v{J[0]}\nv_fma_f32 v{J[1]}, v{J[1]}, v{J[0]}, -1.0")
        if jl < 2:
            e(f"""
s_nop 0
v_cvt_pk_bf16_f32 v{J[1]}, v{J[0]}, v{J[1]}
v_cvt_pk_bf16_f32 v{J[2]}, v{J[2]}, v{J[2]}
""")

    def jit_store():
        e(f"""
v_lshlrev_b32 v{VRAD}, 16, v{VRAD}
v_ashrrev_i32 v{t+3}, 31, v{VNXT}
v_bfe_i32 v{t+4}, v{VNXT}, 30, 1
v_bfi_b32 v{t+3}, v{t+3}, 0, v{VRAD}
v_and_b32 v{t+4}, v{t+4}, v{VRAD}
""")
        if jl < 2:
            e(f"""
v_lshlrev_b32 v{J[0]}, 16, v{J[1]}
v_and_b32 v{J[1]}, 0xffff0000, v{J[1]}
v_and_b32 v{J[2]}, 0xffff0000, v{J[2]}
""")
        e(f"""
v_mul_f32 v{t}, v{J[0]}, v{t+3}
v_mul_f32 v{t+1}, v{J[1]}, v{t+3}
v_mul_f32 v{t+2}, v{J[2]}, v{t+3}
v_cvt_pk_bf16_f32 v{t}, v{t}, v{t+1}
v_cvt_pk_bf16_f32 v{t+1}, v{t+2}, v{t+4}
ds_write_b64 v{VSW}, v[{t}:{t+1}]
v_xor_b32 v{VSW}, 512, v{VSW}
""")

    NBS = 2 * NB

    def lanes(b):
        for g in range(4):
            e(f"v_readlane_b32 s{SI+g}, v{VPK}, {16*g+2*b}")

    def batch(b, steady):
        rb = b % NB
        last = rb == NB - 1
        if steady:
            cnt = 2 * NB - 2 if rb in (0, NB - 1) else 2 * NB - 1
            if o["spf"] and 1 <= b <= NB:
                cnt += 1
        else:
            cnt = 2 * (NB - 1 - rb)
        e(f"s_waitcnt vmcnt({cnt})")
        for i in range(2):
            for u in range(2):
                d = UNP + 8 * i + 4 * u
                if "u" not in o["drop"]:
                    e(f"v_mfma_f32_16x16x32_bf16 v[{d}:{d+3}], v[{AU+4*u}:{AU+4*u+3}], v[{ROW+rb*8+4*i}:{ROW+rb*8+4*i+3}], 0")
        if o["prio"] == 2:
            e("s_setprio 1")
        if o["prio"] == 3:
            e("s_setprio 0")
        if steady and rb == 0 and "d" not in o["drop"]:
            ring_dma()
        if steady and "l" not in o["drop"]:
            loads(rb, 2 * ((b + NB) % NBS))
            if o["spf"] and b == 0:
                e(f"""
s_mov_b32 m0, {L_TRASH}
v_add_u32 v{VT0}, s{S_PF}, v{VL16}
buffer_load_dwordx4 v{VT0}, s[8:11], 0 offen lds
s_add_u32 s{S_PF}, s{S_PF}, {NBK * NW * SPW}
""")
        else:
            e("s_nop 3")
        for j in range(8):
            if j == 0:
                e(f"s_set_gpr_idx_on s{SI}, gpr_idx(SRC2,DST)")
            elif "i" in o["drop"]:
                pass
            elif j < 4:
                e(f"s_mov_b32 m0, s{SI+j}")
            else:
                e(f"s_lshr_b32 m0, s{SI+j-4}, 16")
            if "f" in o["drop"]:
                pass
            elif o["acc"] == "pk":
                e(f"v_pk_fma_f32 v[{ACC}:{ACC+1}], v[{UNP+2*j}:{UNP+2*j+1}], v[{FILT+2*j}:{FILT+2*j+1}], v[{ACC}:{ACC+1}]")
            else:
                e(f"v_fmac_f32 v{ACC}, v{UNP+2*j}, v{FILT+2*j}\nv_fmac_f32 v{ACC+1}, v{UNP+2*j+1}, v{FILT+2*j+1}")
        e("s_set_gpr_idx_off")
        if o["prio"] == 2:
            e("s_setprio 0")
        if o["prio"] == 3:
            e("s_setprio 1")
        if not steady and last:
            return
        e("s_waitcnt lgkmcnt(0)")
        filt()
        if steady and b == NBS - 2:
            e(f"v_xor_b32 v{VAA}, 512, v{VAA}\nv_xor_b32 v{VAB}, 512, v{VAB}")
        if steady or rb < NB - 2:
            readA((b + 2) % NBS)
        if steady and b == NBS - 1:
            pack()
            e(f"v_add_u32 v{VRA}, {SG*4}, v{VRA}\nv_add_u32 v{VTA}, {SG*2}, v{VTA}")
            next_records(SG)
        lanes((b + 1) % NBS)
        if not steady:
            return
        if rb == 0:
            ring_advance()
        if b == 0:
            lookup()
            window_advance()
            fallback("LM_inwin", wait=False)
        if b == NB - 1:
            e(f"v_and_b32 v{VCLEAN}, {hex(ROWMASK)}, v{VNXT}")
        if not o["nojit"]:
            piece = {1: jit_angles, 2: jit_reduce, 3: jit_cos, 4: jit_store}.get(b)
            if b == NB:
                e(f"s_waitcnt vmcnt({2*NB+1})")
            if piece:
                piece()

    next_records(0)
    e(f"""
v_cndmask_b32 v{VAA}, 0, v{X}, s[{MA}:{MA+1}]
v_cndmask_b32 v{VAB}, 0, v{X}, s[{MB}:{MB+1}]
s_waitcnt lgkmcnt(0)
v_and_b32 v{VCLEAN}, {hex(ROWMASK)}, v{VNXT}
""")
    lookup()
    for b in range(NB):
        loads(b, 2 * b)
    pack()
    e("s_waitcnt lgkmcnt(0)")
    fallback("LM_inwin0")
    jit_angles()
    jit_reduce()
    jit_cos()
    jit_store()
    readA(0)
    e("s_waitcnt lgkmcnt(0)")
    filt()
    next_records(SG)
    readA(1)
    e(f"s_cmp_lg_u32 s{S_MODE}, 0\ns_cbranch_scc1 LM_keepacc")
    for i in range(2 * DPW):
        e(f"v_mov_b32 v{ACC+i}, 0")
    e("LM_keepacc:")
    if o["prio"] == 1:
        e("s_cmp_lt_u32 s3, 4\ns_cbranch_scc1 LM_prio\ns_setprio 1\nLM_prio:")
    lanes(0)
    e(f"s_cmp_le_u32 s{S_NIT}, {G}\ns_cbranch_scc1 LM_drainA\n.p2align 6\nLM_loop:")
    bar = "" if o["nobar"] else "s_barrier"
    for b in range(NB):
        batch(b, True)
    e(f"""
s_sub_u32 s{S_NIT}, s{S_NIT}, {G}
{'' if o['nomid'] else bar}
s_cmp_le_u32 s{S_NIT}, {G}
s_cbranch_scc1 LM_drainB
""")
    for b in range(NB, NBS):
        batch(b, True)
    e(f"""
s_sub_u32 s{S_NIT}, s{S_NIT}, {G}
{bar}
s_cmp_gt_u32 s{S_NIT}, {G}
s_cbranch_scc1 LM_loop
LM_drainA:
""")
    for b in range(NB):
        batch(b, False)
    e("s_branch LM_drained\nLM_drainB:")
    for b in range(NB, NBS):
        batch(b, False)
    e(f"LM_drained:\nv_lshrrev_b32 v{VLANE}, 4, v{VL16}")
    e(f"""
s_waitcnt lgkmcnt(0)
s_cmp_eq_u32 s{S_MODE}, 0
s_cbranch_scc1 LM_out
s_add_u32 s{S_BASE}, s{S_BASE}, {RMAX}
s_cmp_lt_u32 s{S_BASE}, s{S_TOT}
s_cbranch_scc1 LM_round
LM_out:
""")
    if o["cyc"]:
        e("s_memtime s[6:7]\ns_waitcnt lgkmcnt(0)\ns_sub_u32 s97, s6, s98")
    stamp(e, o, VAA)
    for k in range(DPW // 16):
        y0 = (UNP, ROW, ROW + 16)[k % 3]
        for i in range(4):
            for j in range(4):
                a = ACC + 32 * k + 8 * i + 2 * j
                e(f"v_cvt_pk_bf16_f32 v{y0+4*i+j}, v{a}, v{a+1}")
        for i in range(4):
            y = y0 + 4 * i
            e(f"v_permlane16_swap_b32 v{y}, v{y+1}\nv_permlane16_swap_b32 v{y+2}, v{y+3}")
        for i in range(4):
            y = y0 + 4 * i
            if 4 * k + i == DPW // 4 - 1:
                e(f"s_cmp_ge_u32 s2, {FULL_BK}\ns_cbranch_scc1 LM_stored")
            e(f"""
v_permlane32_swap_b32 v{y}, v{y+2}
v_permlane32_swap_b32 v{y+1}, v{y+3}
buffer_store_dwordx4 v[{y}:{y+3}], v{VL16}, s[12:15], s{S_OUT} offen {o['out_st']}
s_add_u32 s{S_OUT}, s{S_OUT}, {STRIDE_ROWS*256}
""")
    e("LM_stored:")
    if o["stamps"]:
        for k in range(6):
            e(f"v_mov_b32 v{8+k}, s{92+k}")
    stamps_out(e, o, [8, 9, 10, 11, 12, VAA, 13, VAB], 33 << 20, NW)
    e("LM_end:\ns_endpgm")

    e(f"""
LM_slow:
s_mov_b32 s{S_MODE}, 1
s_lshl_b32 s4, s3, 7
v_and_b32 v{X}, 7, v{VLANE}
v_lshrrev_b32 v{X+1}, 4, v{VLANE}
v_lshl_add_u32 v{X}, v{X}, 2, v{X+1}
v_lshl_add_u32 v{X}, v{X}, 2, s4
ds_write_b32 v{X}, v{VSE} offset:{L_SEG}
v_lshlrev_b32 v{X+1}, 4, v{VLANE}
s_waitcnt lgkmcnt(0)
s_barrier
ds_read_b128 v[{X+4}:{X+7}], v{X+1} offset:{L_SEG}
s_waitcnt lgkmcnt(0)
""")
    for k in range(4):
        e(f"""
v_lshrrev_b32 v{X+8+k}, 16, v{X+4+k}
v_and_b32 v{X+4+k}, 0xffff, v{X+4+k}
v_sub_u32 v{X+8+k}, v{X+8+k}, v{X+4+k}
""")
    e(f"""
v_add_u32 v{X+9}, v{X+8}, v{X+9}
v_add_u32 v{X+10}, v{X+9}, v{X+10}
v_add_u32 v{X+11}, v{X+10}, v{X+11}
v_mov_b32 v{X+3}, v{X+11}
""")
    wave_scan(e, X + 3)
    e(f"""
v_sub_u32 v{X+12}, v{X+3}, v{X+11}
v_readlane_b32 s{S_TOT}, v{X+3}, 63
v_add_u32 v{X+13}, v{X+12}, v{X+8}
v_add_u32 v{X+14}, v{X+12}, v{X+9}
v_add_u32 v{X+15}, v{X+12}, v{X+10}
ds_write_b128 v{X+1}, v[{X+12}:{X+15}] offset:{L_P}
""")
    for k in range(4):
        e(f"v_sub_u32 v{X+4+k}, v{X+4+k}, v{X+12+k}")
    e(f"ds_write_b128 v{X+1}, v[{X+4}:{X+7}] offset:{L_Q}")
    for i in range(2 * DPW):
        e(f"v_mov_b32 v{ACC+i}, 0")
    SR = X + 12
    STH = SR + RSLOTS + 2
    SA = STH + RSLOTS + 1
    SK = SA + RSLOTS + 2
    assert SK + RSLOTS + 2 <= ROW + G
    e(f"""
s_mov_b32 s{S_BASE}, 0
LM_round:
s_lshl_b32 s4, s3, 6
v_add_u32 v{X}, s4, v{VLANE}
v_lshlrev_b32 v{X+1}, 2, v{X}
v_mov_b32 v{X+2}, 0
v_mov_b32 v{VONE}, 4
ds_write_b32 v{X+1}, v{X+2} offset:{L_HIST}
ds_write_b32 v{X+1}, v{X+2} offset:{L_HIST+2048}
v_add_u32 v{X}, s{S_BASE}, v{X}
""")
    prefill()
    for j in range(RSLOTS):
        e(f"v_cmp_gt_u32 s[{SM+2*j}:{SM+2*j+1}], s{S_TOT}, v{X}\nv_mov_b32 v{X+3}, 0")
        for st in (128, 64, 32, 16, 8, 4, 2, 1):
            e(f"""
ds_read_b32 v{X+4}, v{X+3} offset:{L_P+4*st}
v_add_u32 v{X+5}, {4*st}, v{X+3}
s_waitcnt lgkmcnt(0)
v_cmp_le_u32 vcc, v{X+4}, v{X}
s_nop 1
v_cndmask_b32 v{X+3}, v{X+3}, v{X+5}, vcc
""")
        e(f"""
ds_read_b32 v{X+4}, v{X+3} offset:{L_Q}
v_mul_u32_u24 v{X+3}, {TS//4}, v{X+3}
s_waitcnt lgkmcnt(0)
v_add_u32 v{X+4}, v{X+4}, v{X}
v_lshl_add_u32 v{X+5}, v{X+4}, 2, v{X+3}
v_lshl_add_u32 v{X+4}, v{X+4}, 1, v{X+3}
v_add_u32 v{X+4}, {T_OFF}, v{X+4}
s_mov_b64 exec, s[{SM+2*j}:{SM+2*j+1}]
buffer_load_dword v{SR+j}, v{X+5}, s[16:19], 0 offen
buffer_load_ushort v{STH+j}, v{X+4}, s[16:19], 0 offen
s_mov_b64 exec, -1
v_add_u32 v{X}, 512, v{X}
""")
    self_slots(SR + RSLOTS, STH + RSLOTS)
    m0 = SM + 2 * RSLOTS
    e(f"""
s_cmp_eq_u32 s{S_BASE}, 0
s_cselect_b64 s[{m0}:{m0+1}], -1, 0
s_cselect_b32 s{m0+2}, s34, 0
s_mov_b32 s{m0+3}, 0
s_waitcnt vmcnt(0) lgkmcnt(0)
s_barrier
""")
    slow = [(SM + 2 * j, SR + j, STH + min(j, RSLOTS), 0, SA + j, SK + j, None) for j in range(RSLOTS + 2)]
    phase1(slow)
    scan_exchange(False)
    phase2(slow)
    e("s_branch LM_tail")
    return e.text()


def gen_pf(o):
    e = Asm()
    fl = "" if o["pre"] == "pf" else o["pre"]
    e(f"""
dn_pf_kernel:
s_cmp_ge_u32 s2, {NWG}
s_cbranch_scc1 LF_end
s_load_dwordx2 s[4:5], s[0:1], {o["presrc"]}
v_lshlrev_b32 v1, 4, v0
s_waitcnt lgkmcnt(0)
""")
    srd(e, 8, 4, 5, E * 256, o["preoff"] << 20)
    e("s_mul_i32 s4, s2, 16384")
    for i in range(10):
        e(f"buffer_load_dwordx4 v[{8+4*i}:{11+4*i}], v1, s[8:11], s4 offen {fl}\ns_add_u32 s4, s4, {250*16384}")
    e("s_waitcnt vmcnt(0)\nLF_end:\ns_endpgm")
    return e.text()


HEADER = """; DimeNet angular message passing on gfx950.
"""


def kd(name, vgpr):
    return f""".p2align 6
.amdhsa_kernel {name}
  .amdhsa_next_free_vgpr {vgpr}
  .amdhsa_next_free_sgpr 102
  .amdhsa_accum_offset {vgpr}
  .amdhsa_group_segment_fixed_size 0
  .amdhsa_kernarg_size 96
  .amdhsa_user_sgpr_count 2
  .amdhsa_user_sgpr_kernarg_segment_ptr 1
  .amdhsa_system_sgpr_workgroup_id_x 1
  .amdhsa_float_denorm_mode_32 3
.end_amdhsa_kernel
"""


def generate(**kw):
    o = dict(DEFAULTS)
    o.update(kw)
    s = HEADER
    if o["pre"]:
        s += f"; @launch kernel=dn_pf_kernel grid=({NWG},1,1) block=(1024,1,1) lds=0\n"
    s += f"; @launch kernel={PART} grid=({NWG},1,1) block=(1024,1,1) lds={P_LDS}\n"
    s += f"; @launch kernel={MAIN} grid=({NBK},1,1) block=(512,1,1) lds={L_LDS}\n"
    for _ in range(o["post"]):
        s += f"; @launch kernel=dn_nop_kernel grid=({NWG},1,1) block=(64,1,1) lds=0\n"
    s += '.amdgcn_target "amdgcn-amd-amdhsa--gfx950"\n.text\n'
    extra = []
    if o["pre"]:
        extra.append(("dn_pf_kernel", gen_pf(o)))
    if o["post"]:
        extra.append(("dn_nop_kernel", "dn_nop_kernel:\n    s_endpgm\n"))
    for name, body in [(PART, gen_part(o)), (MAIN, gen_main(o))] + extra:
        s += f".globl {name}\n.p2align 8\n.type {name},@function\n{body}"
    s += '.section .rodata,"a"\n' + kd(PART, 104) + kd(MAIN, 256)
    for name, _ in extra:
        s += kd(name, 64)
    return s


if __name__ == "__main__":
    out = sys.argv[1]
    kw = {}
    for a in sys.argv[2:]:
        k, v = a.split("=", 1)
        kw[k] = int(v) if v.lstrip("-").isdigit() else v.replace("_", " ")
    open(out, "w").write(generate(**kw))
```

```python
import math
import os
import struct
import sys

MAIN = "standalone__molecular_angular_dimenet__graph_kernel"
PART = "dn_part_kernel"

E, T = 160000, 2560000
NWG = 250
NBK = 256
TILE = T // NWG
NW = 8
DPW = 80
CH_SHIFT = 11
CH_ROWS = 1 << CH_SHIFT
NCH = 160000 // CH_ROWS + 1
NBIN = 128
NB = 4
G = NB * 8
STRIDE_ROWS = NBK * NW * 4
FULL_BK = (E - (DPW // 4 - 1) * STRIDE_ROWS) // 32

TCAP = TILE + 256
T_OFF = TCAP * 4
TS = TCAP * 6
WS_REC = 0
WS_OFF = NWG * TS
WS_RAD = WS_OFF + NWG * 1024

P_HIST, P_OFF, P_REC = 0, 1024, 2048
P_LDS = P_REC + 4 * 16384

SG = 2 * G
RPC = int(os.environ.get('RPC', 3520))
RROWS = 9 * RPC
RBYTES = RROWS * 2
RPW = RPC * 2 // NW
RH0 = 7 * RPC
LCAP = 1664
L_ZERO = 0
L_STG = 1024
L_HIST = L_STG + NW * 1024
L_N = L_HIST + NW * NBIN * 4
L_SEG = L_N + 64
L_P = L_SEG + 1024
L_Q = L_P + 1024
L_RING = L_Q + 1024
L_TH = L_RING + RBYTES + 128
L_REC = L_TH + NW * LCAP * 2
L_TRASH = L_REC + NW * LCAP * 4
L_LDS = L_TRASH + 1024
SPW = 896
CBIAS = 24576
RSLOTS = 3
RMAX = RSLOTS * 512
RAD_BYTES = 2 * (E + RH0 + (LCAP // G + 1) * RPC)
assert RMAX + DPW <= LCAP and LCAP % SG == 0 and L_LDS <= 163840 and L_REC % 16 == 0 and L_RING % 16 == 0
assert L_TH % 16 == 0 and RPW % 16 == 0 and L_RING < 65536
assert 0 <= L_REC - 2 * CBIAS < 65536 and 0 <= L_TH - CBIAS < 65536

F_SELF = 0xC0000000
F_DUMMY = 0x80000000
ROWMASK = 0x03FFFF00
DUMMY_REC = F_DUMMY | ROWMASK
assert TS % 128 == 0 and TS <= 4 * 16384 and E % 32 == 0
KEY_SHIFT = 8 + CH_SHIFT
M_STRETCH = (CH_ROWS << 16) // E


def f2u(x):
    return struct.unpack("<I", struct.pack("<f", x))[0]


def u2f(u):
    return struct.unpack("<f", struct.pack("<I", u))[0]


INV2PI = 1.0 / (2.0 * math.pi)
C_HI = f2u(INV2PI) & 0xFFFFFF00
C_LO = f2u(INV2PI - u2f(C_HI))

DEFAULTS = dict(pf1=0, pf1s=0, pf1pos=2, pf1e=0, pf2=8, pf0=0, ss=0, spf=0, nomid=0, jl=1, order=0, prio=2, acc="pk", drop="", cyc=0, hz=0, nojit=0, nobar=0, dummyrow=0, nodma=0, target=1440, rot=10, rotsh=0, jifirst=1, pre="", presrc=0, preoff=0, post=0, in_flags="nt", rec_st="sc1", seg_ld="", row_ld="", out_st="sc1", stamps=0)


class Asm:
    def __init__(self):
        self.l = []

    def __call__(self, s):
        for line in s.strip("\n").split("\n"):
            line = line.strip()
            if not line:
                continue
            if line.endswith(":") or line.startswith("."):
                self.l.append(line)
            else:
                self.l.append("    " + line)

    def text(self):
        return "\n".join(self.l) + "\n"


def srd(e, d, lo, hi, nbytes, add=None):
    if add is None:
        e(f"s_mov_b32 s{d}, s{lo}\ns_mov_b32 s{d+1}, s{hi}")
    else:
        e(f"s_add_u32 s{d}, s{lo}, {add}\ns_addc_u32 s{d+1}, s{hi}, 0")
    e(f"s_mov_b32 s{d+2}, {nbytes}\ns_mov_b32 s{d+3}, 0x20000")


def wave_scan(e, v):
    for ctl in ("row_shr:1 row_mask:0xf", "row_shr:2 row_mask:0xf", "row_shr:4 row_mask:0xf",
                "row_shr:8 row_mask:0xf", "row_bcast:15 row_mask:0xa", "row_bcast:31 row_mask:0xc"):
        e(f"s_nop 1\nv_add_u32_dpp v{v}, v{v}, v{v} {ctl} bank_mask:0xf")


def stamp(e, o, v):
    if o["stamps"]:
        e(f"s_memrealtime vcc\ns_waitcnt lgkmcnt(0)\nv_mov_b32 v{v}, vcc_lo")


def stamps_out(e, o, regs, region, nwaves):
    if not o["stamps"]:
        return
    e("s_waitcnt vmcnt(0)")
    stamp(e, o, regs[-1])
    e("s_load_dwordx2 s[4:5], s[0:1], 88\ns_waitcnt lgkmcnt(0)")
    srd(e, 12, 4, 5, NBK * nwaves * 32, region)
    srd(e, 16, 4, 5, 64, 32 << 20)
    e(f"s_mul_i32 s4, s2, {nwaves}\ns_add_u32 s4, s4, s3\ns_lshl_b32 s4, s4, 5\nv_mov_b32 v0, s4")
    for k, r in enumerate(regs):
        e(f"buffer_store_dword v{r}, v0, s[12:15], 0 offen offset:{4*k}")
    if o["stamps"] == 2 and nwaves == NW:
        e(f"""
s_load_dwordx2 s[6:7], s[0:1], 80
v_mov_b32 v0, 0
s_or_b32 s4, s2, s3
s_cmp_lg_u32 s4, 0
s_cbranch_scc1 LM_end
s_lshr_b32 s4, s2, 2
s_waitcnt vmcnt(0) lgkmcnt(0)
""")
        srd(e, 20, 6, 7, 256)
        e("buffer_load_dword v1, v0, s[16:19], 0 offen sc0 sc1")
        e("buffer_load_dwordx4 v[20:23], v0, s[16:19], 0 offen offset:4 sc0 sc1\ns_waitcnt vmcnt(0)\ns_mov_b64 exec, 1")
        for k, r in enumerate(list(regs) + [20, 21, 22, 23]):
            e(f"v_sub_u32 v{r}, v{r}, v1\nbuffer_store_dword v{r}, v0, s[20:23], 0 offen offset:{4*k}")


def gen_part(o):
    e = Asm()
    fl = o["in_flags"]
    JI, KJ, TH = 4, 16, 28
    VD = 33
    U, REM, HA, RK = 36, 46, 56, 66
    S = 76
    PFD = 92
    ST = 96
    e(f"""
{PART}:
s_cmp_ge_u32 s2, {NWG}
s_cbranch_scc1 LP_end
s_load_dwordx8 s[12:19], s[0:1], 8
s_load_dwordx2 s[20:21], s[0:1], 40
s_load_dwordx2 s[22:23], s[0:1], 88
s_load_dwordx2 s[26:27], s[0:1], 0
""")
    stamp(e, o, ST)
    e(f"""
v_lshlrev_b32 v1, 4, v0
v_lshlrev_b32 v2, 3, v0
v_lshlrev_b32 v3, 2, v0
v_lshlrev_b32 v34, 1, v0
v_mov_b32 v35, 0
ds_write_b32 v3, v35
v_lshrrev_b32 v35, 6, v0
s_mul_i32 s4, s2, {TILE*4}
s_mul_i32 s5, s2, {TILE*2}
s_mul_i32 s6, s2, {TS}
v_readfirstlane_b32 s3, v35
s_mul_i32 s7, s2, {E//NWG*2}
s_lshl_b32 s8, s2, 10
s_mov_b32 s9, 16384
s_mov_b32 s10, 32768
s_mov_b32 s11, 8192
s_waitcnt lgkmcnt(0)
s_load_dword s24, s[20:21], 0
""")
    srd(e, 28, 18, 19, TILE * 4, "s4")
    e(f"""
buffer_load_dwordx4 v[{JI}:{JI+3}], v1, s[28:31], 0 offen {fl}
buffer_load_dwordx4 v[{JI+4}:{JI+7}], v1, s[28:31], s9 offen {fl}
buffer_load_dwordx2 v[{JI+8}:{JI+9}], v2, s[28:31], s10 offen {fl}
""")
    srd(e, 32, 16, 17, TILE * 4, "s4")
    srd(e, 36, 14, 15, TILE * 2, "s5")
    srd(e, 48, 12, 13, E // NWG * 2, "s7")

    def rest_loads():
        e(f"""
buffer_load_ushort v{VD}, v34, s[48:51], 0 offen
buffer_load_dwordx4 v[{KJ}:{KJ+3}], v1, s[32:35], 0 offen {fl}
buffer_load_dwordx2 v[{TH}:{TH+1}], v2, s[36:39], 0 offen {fl}
buffer_load_dwordx4 v[{KJ+4}:{KJ+7}], v1, s[32:35], s9 offen {fl}
buffer_load_dwordx2 v[{TH+2}:{TH+3}], v2, s[36:39], s11 offen {fl}
buffer_load_dwordx2 v[{KJ+8}:{KJ+9}], v2, s[32:35], s10 offen {fl}
buffer_load_dword v{TH+4}, v3, s[36:39], s9 offen {fl}
""")
    if not o["jifirst"]:
        rest_loads()
    npf = o["pf1"]

    def prefetch(start, n):
        srd(e, 56, 26, 27, E * 256)
        e(f"s_lshl_b32 s60, s2, 14\ns_add_u32 s60, s60, {start * NWG * 16384}")
        for i in range(n):
            e(f"buffer_load_dwordx4 v[{PFD}:{PFD+3}], v1, s[56:59], s60 offen\ns_add_u32 s60, s60, {NWG*16384}")
    srd(e, 40, 22, 23, TS, "s6")
    e(f"s_add_u32 s8, s8, {WS_OFF}")
    srd(e, 44, 22, 23, NBK * 4, "s8")
    e(f"s_add_u32 s7, s7, {WS_RAD}")
    srd(e, 52, 22, 23, E // NWG * 2, "s7")
    e(f"s_add_u32 s7, s7, {E*2}")
    srd(e, 64, 22, 23, E // NWG * 2, "s7")
    e(f"""
s_mov_b32 s25, 0x380
s_mov_b32 s61, 0xf8
v_mov_b32 v35, 4
s_barrier
""")
    if o["jifirst"]:
        e(f"s_waitcnt vmcnt({o['jifirst'] - 1})")
        rest_loads()
    for k in range(10):
        if k in (0, 4, 8):
            e(f"s_waitcnt vmcnt({9 - k // 4})")
        e(f"""
v_lshlrev_b32 v{U+k}, 2, v{JI+k}
v_lshrrev_b32 v{HA+k}, 6, v{JI+k}
v_bfi_b32 v{HA+k}, s25, v{U+k}, v{HA+k}
v_and_b32 v{HA+k}, 0x3fc, v{HA+k}
ds_add_rtn_u32 v{RK+k}, v{HA+k}, v35 offset:{P_HIST}
""")
    for k in range(10):
        e(f"""
v_lshl_add_u32 v{U+k}, v{JI+k}, 23, v{JI+k}
v_lshrrev_b32 v{JI+k}, 10, v{JI+k}
v_add_u32 v{U+k}, v{U+k}, v{U+k}
v_and_b32 v{U+k}, 0x1c000006, v{U+k}
v_and_or_b32 v{U+k}, v{JI+k}, s61, v{U+k}
""")
    e("s_waitcnt lgkmcnt(0)\ns_barrier")
    stamp(e, o, ST + 1)
    e(f"""
v_and_b32 v{S+12}, 63, v0
v_lshlrev_b32 v{S+12}, 4, v{S+12}
s_cmp_lg_u32 s3, 0
s_cbranch_scc1 LP_noscan
s_setprio 3
ds_read_b128 v[{S}:{S+3}], v{S+12} offset:{P_HIST}
s_waitcnt lgkmcnt(0)
""")
    for k in range(4):
        e(f"v_add_u32 v{S+8+k}, 4, v{S+k}\nv_and_b32 v{S+8+k}, -8, v{S+8+k}")
    e(f"""
v_add_u32 v{S+9}, v{S+8}, v{S+9}
v_add_u32 v{S+10}, v{S+9}, v{S+10}
v_add_u32 v{S+11}, v{S+10}, v{S+11}
v_mov_b32 v{S+13}, v{S+11}
""")
    wave_scan(e, S + 13)
    e(f"""
v_sub_u32 v{S+4}, v{S+13}, v{S+11}
v_add_u32 v{S+5}, v{S+4}, v{S+8}
v_add_u32 v{S+6}, v{S+4}, v{S+9}
v_add_u32 v{S+7}, v{S+4}, v{S+10}
ds_write_b128 v{S+12}, v[{S+4}:{S+7}] offset:{P_OFF}
""")
    for k in range(4):
        e(f"v_add_u32 v{S+k}, v{S+k}, v{S+4+k}\nv_lshrrev_b32 v{S+4+k}, 2, v{S+4+k}\nv_lshl_or_b32 v{S+k}, v{S+k}, 14, v{S+4+k}")
    e("LP_noscan:")
    e(f"""
s_waitcnt lgkmcnt(0)
s_barrier
s_setprio 0
""")
    for k in range(10):
        e(f"ds_read_b32 v{HA+k}, v{HA+k} offset:{P_OFF}")
    for k in range(10):
        e(f"s_waitcnt lgkmcnt({9-k})\nv_add_u32 v{HA+k}, v{HA+k}, v{RK+k}\nv_lshrrev_b32 v{RK+k}, 1, v{HA+k}")
    stamp(e, o, ST + 2)
    for k in range(10):
        if k in (0, 4, 8):
            e(f"s_waitcnt vmcnt({4 - k // 2})")
        e(f"""
v_lshl_or_b32 v{KJ+k}, v{KJ+k}, 8, v{U+k}
ds_write_b32 v{HA+k}, v{KJ+k} offset:{P_REC}
ds_write_b16{'_d16_hi' if k & 1 else ''} v{RK+k}, v{TH+k//2} offset:{P_REC+T_OFF}
""")
    e(f"""
s_lshl_b32 s24, s24, 16
v_lshlrev_b32 v{VD}, 16, v{VD}
v_mul_f32 v{S+8}, s24, v{VD}
v_cvt_pk_bf16_f32 v{S+8}, v{S+8}, v{S+8}
v_lshlrev_b32 v{S+8}, 16, v{S+8}
v_mul_f32 v{S+9}, {hex(C_HI)}, v{S+8}
v_fract_f32 v{S+9}, v{S+9}
v_fmac_f32 v{S+9}, {hex(C_LO)}, v{S+8}
v_sin_f32 v{S+9}, v{S+9}
v_rcp_f32 v{VD}, v{VD}
v_cvt_pk_bf16_f32 v{S+9}, v{S+9}, v{S+9}
v_lshlrev_b32 v{S+9}, 16, v{S+9}
v_mul_f32 v{S+9}, v{S+9}, v{VD}
v_cvt_pk_bf16_f32 v{S+9}, v{S+9}, v{S+9}
""")
    if npf:
        prefetch(o["pf1s"], npf)
    e(f"""
buffer_store_short v{S+9}, v34, s[52:55], 0 offen
buffer_store_short v{S+9}, v34, s[64:67], 0 offen
s_cmp_lg_u32 s3, 0
s_cbranch_scc1 LP_nooff
""")
    e(f"""
buffer_store_dwordx4 v[{S}:{S+3}], v{S+12}, s[44:47], 0 offen
LP_nooff:
v_add_u32 v2, 16384, v1
v_add_u32 v3, 32768, v1
v_add_u32 v34, 49152, v1
s_waitcnt lgkmcnt(0)
s_barrier
""")
    stamp(e, o, ST + 3)
    for j in range(4):
        e(f"ds_read_b128 v[{4+4*j}:{7+4*j}], v1 offset:{P_REC+j*16384}")
    for j, a in enumerate((1, 2, 3, 34)):
        e(f"s_waitcnt lgkmcnt({3-j})")
        e(f"buffer_store_dwordx4 v[{4+4*j}:{7+4*j}], v{a}, s[40:43], 0 offen {o['rec_st']}")
    if o["pf1e"]:
        prefetch(o["pf1s"] + npf, o["pf1e"])
    stamps_out(e, o, [ST, ST + 1, ST + 2, ST + 3, ST + 4], 32 << 20, 16)
    e("LP_end:\ns_endpgm")
    return e.text()


def gen_main(o):
    e = Asm()
    TARGET = o["target"]
    ACC, ROW = 0, 160
    FILT = ROW + G
    UNP = FILT + 16
    A = UNP + 16
    W = A + 4
    AU = W + 4
    (VPK, VNXT, VCLEAN, VTA, VTH, VRAD, VRA, VL16, VAA, VAB, VQ, VT0, VT1, VSW, VLANE, VSE) = range(AU + 8, AU + 24)
    VCUR = VPK
    assert VSE <= 255
    SI = 36
    SM = 36
    X = ROW
    VONE = VRAD
    SE0, SE1, SE2 = 30, 31, 32
    S_NIT, S_N, S_MODE = 28, 29, 35
    S_TOT, S_BASE = 100, 101
    MA, MB = 24, 26
    S_R0, S_OFF, S_SEL, S_LO, S_SPAN, S_DSRC, S_DDST, S_DLIM, S_OOW, S_PF = 44, 45, 46, 47, 48, 49, 50, 51, 52, 54
    S_OUT = 55

    e(f"""
{MAIN}:
s_cmp_ge_u32 s2, {NBK}
s_cbranch_scc1 LM_end
s_load_dwordx2 s[4:5], s[0:1], 0
s_load_dwordx2 s[6:7], s[0:1], 88
s_load_dwordx4 s[40:43], s[0:1], 56
s_load_dwordx2 s[44:45], s[0:1], 48
""")
    stamp(e, o, VAA)
    e(f"""
v_lshrrev_b32 v{X}, 6, v0
v_and_b32 v{VLANE}, 63, v0
v_lshlrev_b32 v{X+1}, 2, v0
v_readfirstlane_b32 s3, v{X}
v_mov_b32 v{X+2}, 0
ds_write_b32 v{X+1}, v{X+2} offset:{L_HIST}
ds_write_b32 v{X+1}, v{X+2} offset:{L_HIST+2048}
ds_write_b32 v{X+1}, v{X+2} offset:{L_ZERO}
s_and_b32 s33, s2, 7
s_lshr_b32 s34, s2, 3
s_lshl_b32 s{S_TOT}, s34, 13
s_lshr_b32 s{S_BASE}, s33, {o["rotsh"]}
s_mul_i32 s{S_BASE}, s{S_BASE}, {o["rot"]}
s_lshl_b32 s33, s33, 5
s_add_u32 s34, s34, s33
v_and_b32 v{X+3}, 15, v{VLANE}
v_lshlrev_b32 v{VQ}, 4, v{X+3}
v_lshrrev_b32 v{X+4}, 5, v{VLANE}
v_lshrrev_b32 v{X+11}, 4, v{VLANE}
v_and_b32 v{X+5}, 7, v{VLANE}
v_lshl_add_u32 v{X+5}, v{X+5}, 2, v{X+11}
s_lshl_b32 s33, s3, 15
s_lshl_b32 s34, s34, 2
s_add_u32 s33, s33, s34
v_lshl_add_u32 v{X+6}, v{X+5}, 10, s33
s_waitcnt lgkmcnt(0)
""")
    srd(e, 24, 6, 7, NWG * 1024, WS_OFF)
    e(f"buffer_load_dword v{VSE}, v{X+6}, s[24:27], 0 offen")
    srd(e, 8, 4, 5, o["hz"] if o["hz"] else E * 256)
    srd(e, 16, 6, 7, NWG * TS)
    srd(e, 20, 6, 7, RAD_BYTES, WS_RAD)
    e(f"""
v_lshlrev_b32 v{VL16}, 4, v{VLANE}
s_mul_i32 s5, s{S_BASE}, {CH_ROWS*256}
s_lshl_b32 s4, s3, 10
s_add_u32 s4, s4, s5
s_add_u32 s{S_TOT}, s4, s{S_TOT}
""")
    pfop = f"buffer_load_dwordx4 v[{X+24}:{X+27}], v{VL16}, s[8:11], s{S_TOT} offen\ns_add_u32 s{S_TOT}, s{S_TOT}, {32*8192}"
    for _ in range(o["pf0"]):
        e(pfop)

    def prefill():
        for base, per, val in ((L_REC, LCAP * 4, F_DUMMY | ((E - 1) << 8) if o["dummyrow"] else DUMMY_REC), (L_TH, LCAP * 2, 0)):
            e(f"s_mul_i32 s4, s3, {per}\ns_add_u32 s4, s4, {base}\nv_lshl_add_u32 v{VT0}, v{VLANE}, 4, s4")
            r = A if val else UNP
            for k in range(4):
                e(f"v_mov_b32 v{r+k}, {hex(val)}")
            n = per // 1024
            for k in range(n):
                e(f"ds_write_b128 v{VT0}, v[{r}:{r+3}] offset:{1024*k}")
            rest = per % 1024 // 16
            if rest:
                assert rest <= 32
                e(f"s_mov_b64 exec, {hex((1 << rest) - 1) if rest < 32 else '0xffffffff'}")
                if rest == 32:
                    e("s_mov_b32 exec_hi, 0")
                e(f"ds_write_b128 v{VT0}, v[{r}:{r+3}] offset:{1024*n}\ns_mov_b64 exec, -1")
    e(f"s_load_dwordx2 s[{SE0}:{SE0+1}], s[44:45], 0")
    srd(e, 12, 40, 41, 768)
    srd(e, 36, 42, 43, 256)
    e(f"""
v_bfe_u32 v{X+7}, v{VLANE}, 4, 1
v_lshl_add_u32 v{X+7}, v{X+7}, 1, v{X+4}
v_lshl_add_u32 v{X+7}, v{X+7}, 1, v{VQ}
buffer_load_ushort v{W}, v{X+7}, s[12:15], 0 offen
buffer_load_ushort v{FILT}, v{X+7}, s[12:15], 0 offen offset:256
buffer_load_ushort v{W+1}, v{X+7}, s[12:15], 0 offen offset:512
buffer_load_ushort v{FILT+1}, v{X+7}, s[36:39], 0 offen
buffer_load_ushort v{W+2}, v{X+7}, s[12:15], 0 offen offset:8
buffer_load_ushort v{FILT+2}, v{X+7}, s[12:15], 0 offen offset:264
buffer_load_ushort v{W+3}, v{X+7}, s[12:15], 0 offen offset:520
buffer_load_ushort v{FILT+3}, v{X+7}, s[36:39], 0 offen offset:8
""")
    prefill()
    def self_slots(r0, th):
        e(f"""
s_lshl_b32 s33, s2, 5
s_lshl_b32 s34, s3, 2
s_add_u32 s33, s33, s34
s_lshl_b32 s34, s3, 26
s_or_b32 s34, s34, {hex(F_SELF)}
v_mov_b32 v{th}, 0
""")
        for k in range(2):
            e(f"""
v_add_u32 v{VT0}, {64*k}, v{VLANE}
v_lshrrev_b32 v{VT1}, 2, v{VT0}
v_mul_u32_u24 v{VT1}, {STRIDE_ROWS}, v{VT1}
v_and_b32 v{r0+k}, 3, v{VT0}
v_add3_u32 v{VT1}, v{VT1}, v{r0+k}, s33
v_lshl_or_b32 v{r0+k}, v{VT1}, 7, v{VT0}
v_lshlrev_b32 v{r0+k}, 1, v{r0+k}
v_or_b32 v{r0+k}, s34, v{r0+k}
""")
        e(f"s_cmp_lt_u32 s2, {FULL_BK}\ns_cselect_b32 s34, 16, 12\ns_bfm_b32 s34, s34, 0")
    FR, FT, FX, FS, FA, FK = 0, 32, 48, 52, 56, 92
    e(f"""
v_lshlrev_b32 v{X+14}, 2, v{X+3}
v_mul_u32_u24 v{X+15}, {TS}, v{X+11}
v_add_u32 v{X+13}, {T_OFF}, v{X+15}
v_mov_b32 v{VONE}, 4
s_mul_i32 s33, s3, {32*TS}
s_mov_b32 s{S_MODE}, 0
s_waitcnt vmcnt({o["pf0"] + 8})
""")
    if o["ss"]:
        stamp(e, o, VAB)
    e(f"""
v_lshrrev_b32 v{X+16}, 16, v{VSE}
v_and_b32 v{X+17}, 0xffff, v{VSE}
v_sub_u32 v{X+16}, v{X+16}, v{X+17}
v_cmp_lt_u32 s[4:5], 64, v{X+16}
s_mov_b64 s[12:13], 0
s_mov_b64 s[14:15], 0
s_and_b32 s4, s4, 0x00ff00ff
s_and_b32 s5, s5, 0x00ff00ff
s_cmp_eq_u64 s[4:5], 0
s_cbranch_scc1 LM_noextra
v_mov_b32 v{X+17}, 128
v_cmp_gt_u32 vcc, v{X+16}, v{X+17}
s_bcnt1_i32_b64 s6, s[4:5]
s_cmp_gt_u32 s6, 2
s_cselect_b32 s{S_MODE}, 1, 0
s_cmp_lg_u64 vcc, 0
s_cselect_b32 s{S_MODE}, 1, s{S_MODE}
""")
    for k in range(2):
        if k:
            e("s_cmp_eq_u64 s[4:5], 0\ns_cbranch_scc1 LM_noextra")
        e(f"""
s_ff1_i32_b64 s6, s[4:5]
s_bitset0_b64 s[4:5], s6
v_readlane_b32 s7, v{VSE}, s6
s_and_b32 s34, s6, 7
s_lshr_b32 s6, s6, 4
s_lshl_b32 s34, s34, 2
s_add_u32 s6, s6, s34
s_mul_i32 s6, s6, {TS}
s_add_u32 s6, s6, s33
s_and_b32 s34, s7, 0xffff
s_lshr_b32 s7, s7, 16
s_add_u32 s34, s34, 64
v_add_u32 v{X+17}, s34, v{VLANE}
v_cmp_gt_u32 s[{12+2*k}:{13+2*k}], s7, v{X+17}
v_lshlrev_b32 v{X+18}, 2, v{X+17}
v_lshlrev_b32 v{X+17}, 1, v{X+17}
v_add_u32 v{X+17}, {T_OFF}, v{X+17}
s_mov_b64 exec, s[{12+2*k}:{13+2*k}]
buffer_load_dword v{FX+2*k}, v{X+18}, s[16:19], s6 offen
buffer_load_ushort v{FX+2*k+1}, v{X+17}, s[16:19], s6 offen
s_mov_b64 exec, -1
""")
    e("LM_noextra:")
    for i in range(8):
        t, en, ta = X + 16 + 3 * (i & 1), X + 17 + 3 * (i & 1), X + 18 + 3 * (i & 1)
        m = SM + 8 * i
        e(f"""
v_mov_b32_dpp v{t}, v{VSE} row_newbcast:{i} row_mask:0xf bank_mask:0xf
v_lshrrev_b32 v{en}, 16, v{t}
v_and_b32 v{t}, 0xffff, v{t}
v_add_u32 v{t}, v{t}, v{X+14}
v_sub_u32 v{en}, v{en}, v{t}
v_cmp_lt_i32 s[{m}:{m+1}], 0, v{en}
v_lshl_add_u32 v{ta}, v{t}, 1, v{X+13}
v_lshl_add_u32 v{t}, v{t}, 2, v{X+15}
v_cmp_lt_i32 s[{m+2}:{m+3}], 1, v{en}
v_cmp_lt_i32 s[{m+4}:{m+5}], 2, v{en}
v_cmp_lt_i32 s[{m+6}:{m+7}], 3, v{en}
s_mov_b64 exec, s[{m}:{m+1}]
buffer_load_dwordx4 v[{FR+4*i}:{FR+4*i+3}], v{t}, s[16:19], s33 offen {o['seg_ld']}
buffer_load_dwordx2 v[{FT+2*i}:{FT+2*i+1}], v{ta}, s[16:19], s33 offen {o['seg_ld']}
s_mov_b64 exec, -1
s_add_u32 s33, s33, {4*TS}
""")
    if o["ss"]:
        stamp(e, o, VCUR)
    e(f"""
v_and_b32 v{X+8}, 1, v{VLANE}
v_cmp_eq_u32 s[4:5], v{X+8}, v{X+4}
v_bfe_u32 v{X+9}, v{VLANE}, 2, 1
v_cmp_eq_u32 vcc, 0, v{X+9}
s_and_b64 s[{MA}:{MA+1}], s[4:5], vcc
s_andn2_b64 s[{MB}:{MB+1}], s[4:5], vcc
v_bfe_u32 v{X+10}, v{VLANE}, 1, 1
v_lshlrev_b32 v{X+8}, 4, v{X+8}
v_mov_b32 v{X+12}, 0x3f80
v_lshlrev_b32 v{X+8}, v{X+8}, v{X+12}
v_sub_u32 v{X+12}, v{X+11}, v{X+10}
v_bfe_u32 v{X+13}, v{VLANE}, 2, 2
v_lshl_add_u32 v{X+13}, v{X+12}, 2, v{X+13}
""")
    for u in range(2):
        for r in range(4):
            e(f"v_cmp_eq_u32 vcc, {8*u+r}, v{X+13}\ns_nop 1\nv_cndmask_b32 v{AU+4*u+r}, 0, v{X+8}, vcc")
    self_slots(FS, FS + 2)
    e(f"""
s_waitcnt lgkmcnt(0)
s_lshl_b32 s{SE2}, s{SE1}, 16
s_and_b32 s{SE1}, s{SE0}, 0xffff0000
s_lshl_b32 s{SE0}, s{SE0}, 16
s_barrier
""")

    def setexec(m):
        if m == "all":
            e("s_mov_b64 exec, -1")
        elif m == "lo16":
            e("s_mov_b32 exec_lo, s34\ns_mov_b32 exec_hi, 0")
        else:
            e(f"s_mov_b64 exec, s[{m}:{m+1}]")

    def phase1(slots):
        for (m, r, th, hi, a, k, wait) in slots:
            if wait is not None:
                e(f"s_waitcnt vmcnt({wait})")
            setexec(m)
            e(f"""
v_lshrrev_b32 v{a}, {KEY_SHIFT-2}, v{r}
v_and_b32 v{a}, {hex(NW*NBIN*4-4)}, v{a}
ds_add_rtn_u32 v{k}, v{a}, v{VONE} offset:{L_HIST}
""")
        e("s_mov_b64 exec, -1\ns_waitcnt vmcnt(0) lgkmcnt(0)\ns_barrier")

    def phase2(slots, side=(), lead=4):
        ops = []
        n = len(slots)
        side = list(side)
        for s in range(n + lead):
            if s < n:
                m, r, th, hi, a, k, _ = slots[s]
                setexec(m)
                e(f"ds_read_b32 v{a}, v{a} offset:{L_HIST}")
                ops.append(("A", s))
            if side and s % 2 == 1:
                e("s_mov_b64 exec, -1")
                e(side.pop(0))
            if s >= lead:
                m, r, th, hi, a, k, _ = slots[s - lead]
                younger = len(ops) - 1 - ops.index(("A", s - lead))
                assert younger <= 15
                setexec(m)
                e(f"""
s_waitcnt lgkmcnt({younger})
v_add_u32 v{a}, v{a}, v{k}
ds_write_b32 v{a}, v{r} offset:{L_REC - 2*CBIAS}
v_lshrrev_b32 v{k}, 1, v{a}
ds_write_b16{"_d16_hi" if hi else ""} v{k}, v{th} offset:{L_TH - CBIAS}
""")
                ops += [("W", s - lead), ("T", s - lead)]
        e("s_mov_b64 exec, -1")
        for x in side:
            e(x)

    def scan_exchange(flagged):
        e(f"s_lshl_b32 s4, s3, 9\nv_mov_b32 v{X+7}, {NBIN-1}")
        for k in range(2):
            e(f"""
v_lshl_add_u32 v{X+4+k}, v{VLANE}, 1, {k}
{f"v_add_u32 v{X+k}, s{S_BASE}, v{X+4+k}" if flagged else f"v_mov_b32 v{X+k}, v{X+4+k}"}
v_subrev_u32 v{X+6}, {NCH}, v{X+k}
v_cmp_gt_u32 vcc, {NCH}, v{X+4+k}
v_min_u32 v{X+k}, v{X+k}, v{X+6}
s_nop 0
v_cndmask_b32 v{X+k}, v{X+7}, v{X+k}, vcc
v_lshl_add_u32 v{X+k}, v{X+k}, 2, s4
ds_read_b32 v{X+2+k}, v{X+k} offset:{L_HIST}
""")
        e(f"""
s_mul_i32 s5, s3, {LCAP*4}
s_add_u32 s5, s5, {2*CBIAS}
s_waitcnt lgkmcnt(0)
v_add_u32 v{X+3}, v{X+2}, v{X+3}
v_mov_b32 v{X+6}, v{X+3}
""")
        wave_scan(e, X + 6)
        e(f"""
v_sub_u32 v{X+3}, v{X+6}, v{X+3}
v_readlane_b32 s{S_N}, v{X+6}, 63
v_add_u32 v{X+3}, s5, v{X+3}
v_add_u32 v{X+2}, v{X+3}, v{X+2}
s_lshr_b32 s{S_N}, s{S_N}, 2
s_mov_b32 s6, s{S_N}
""")
        if flagged:
            e(f"""
s_max_u32 s6, s6, {TARGET}
s_sub_u32 s7, s6, s{S_N}
s_mul_i32 s7, s7, {M_STRETCH}
v_mul_u32_u24 v{X+4}, s7, v{X+4}
v_mul_u32_u24 v{X+5}, s7, v{X+5}
v_lshrrev_b32 v{X+4}, 16, v{X+4}
v_lshrrev_b32 v{X+5}, 16, v{X+5}
v_lshl_add_u32 v{X+3}, v{X+4}, 2, v{X+3}
v_lshl_add_u32 v{X+2}, v{X+5}, 2, v{X+2}
s_cmp_lg_u32 s{S_MODE}, 0
s_cselect_b32 s6, 0x7fffffff, s6
""")
        e(f"""
ds_write_b32 v{X}, v{X+3} offset:{L_HIST}
ds_write_b32 v{X+1}, v{X+2} offset:{L_HIST}
s_lshl_b32 s4, s3, 2
v_mov_b32 v{X+4}, s4
v_mov_b32 v{X+5}, s6
ds_write_b32 v{X+4}, v{X+5} offset:{L_N}
v_mov_b32 v{X+6}, 0
s_waitcnt lgkmcnt(0)
s_barrier
ds_read_b128 v[{X}:{X+3}], v{X+6} offset:{L_N}
ds_read_b128 v[{X+8}:{X+11}], v{X+6} offset:{L_N+16}
s_waitcnt lgkmcnt(0)
v_max3_u32 v{X}, v{X}, v{X+1}, v{X+2}
v_max3_u32 v{X+3}, v{X+3}, v{X+8}, v{X+9}
v_max3_u32 v{X}, v{X}, v{X+10}, v{X+11}
v_max_u32 v{X}, v{X}, v{X+3}
s_nop 0
v_readfirstlane_b32 s{S_NIT}, v{X}
""")

    fast = [("all", FS, FS + 2, 0, FA, FK, None), ("lo16", FS + 1, FS + 2, 0, FA + 1, FK + 1, None)]
    for i in range(8):
        for j in range(4):
            n = len(fast)
            fast.append((SM + 8 * i + 2 * j, FR + 4 * i + j, FT + 2 * i + j // 2, j & 1, FA + n, FK + n, 15 - 2 * i if j == 0 else None))
    fast += [(12, FX, FX + 1, 0, FA + 34, FK + 34, None), (14, FX + 2, FX + 3, 0, FA + 35, FK + 35, None)]
    if not o["ss"]:
        stamp(e, o, VAB)
    phase1(fast)
    for i in range(4):
        e(f"v_lshl_or_b32 v{W+i}, v{FILT+i}, 16, v{W+i}")
    stamp(e, o, VNXT if o["ss"] else VCUR)
    scan_exchange(True)
    if not o["ss"]:
        stamp(e, o, VNXT)
    e(f"""
s_cmp_gt_u32 s{S_NIT}, {LCAP}
s_cbranch_scc1 LM_slow
s_mul_i32 s6, s{S_BASE}, {CH_ROWS*2}
s_mul_i32 s4, s3, {RPW}
s_add_u32 s6, s6, s4
s_add_u32 s7, s4, {L_RING}
""")
    side = [f"""
s_mov_b32 m0, s7
s_add_u32 s7, s7, {RPC*2}
buffer_load_dwordx4 v{VL16}, s[20:23], s6 offen lds
s_add_u32 s6, s6, {RPC*2}
"""] * (RH0 // RPC)
    side += [pfop] * o["pf2"]
    phase2(fast, side)

    e(f"""
LM_tail:
s_load_dwordx2 s[12:13], s[0:1], 72
s_add_u32 s{S_NIT}, s{S_NIT}, {G-1}
s_and_b32 s{S_NIT}, s{S_NIT}, {-G}
s_mul_i32 s5, s3, {LCAP*4}
s_mul_i32 s{S_R0}, s{S_BASE}, {CH_ROWS}
s_cmp_lg_u32 s{S_MODE}, 0
s_cselect_b32 s{S_R0}, 0, s{S_R0}
s_cselect_b32 s{S_SPAN}, 0, {RROWS - 64 - RPC}
s_mov_b32 s{S_LO}, {RH0 + RPC + 64 - RROWS}
s_mov_b32 s{S_OFF}, {(2 * (RH0 + RPC) + 128) % RBYTES}
s_mov_b32 s{S_SEL}, 0x0c040c00
s_mul_i32 s4, s3, {RPW}
s_add_u32 s{S_DLIM}, s4, {L_RING + RBYTES}
s_add_u32 s{S_DDST}, s4, {L_RING + 2 * RH0}
s_lshl_b32 s{S_DSRC}, s{S_R0}, 1
s_add_u32 s{S_DSRC}, s{S_DSRC}, s4
s_add_u32 s{S_DSRC}, s{S_DSRC}, {2 * RH0}
s_lshl_b32 s{S_PF}, s2, 3
s_add_u32 s{S_PF}, s{S_PF}, s3
s_mul_i32 s{S_PF}, s{S_PF}, {SPW}
s_add_u32 s{S_PF}, s{S_PF}, {o["spf"] * 256}
v_lshlrev_b32 v{VL16}, 4, v{VLANE}
v_and_b32 v{X}, 15, v{VLANE}
v_lshrrev_b32 v{X+1}, 4, v{VLANE}
v_lshl_add_u32 v{X}, v{X}, 2, v{X+1}
s_lshr_b32 s6, s5, 1
s_add_u32 s5, s5, {L_REC}
s_add_u32 s6, s6, {L_TH}
v_lshl_add_u32 v{VRA}, v{X}, 2, s5
v_lshl_add_u32 v{VTA}, v{X}, 1, s6
s_lshl_b32 s4, s3, 10
s_add_u32 s4, s4, {L_STG}
v_lshl_add_u32 v{VSW}, v{X}, 3, s4
v_bfe_u32 v{X}, v{VLANE}, 3, 2
v_bfe_u32 v{X+1}, v{VLANE}, 1, 1
v_lshl_add_u32 v{X}, v{X}, 1, v{X+1}
v_lshl_add_u32 v{X}, v{X}, 3, s4
s_lshl_b32 s{S_OUT}, s2, 5
s_lshl_b32 s4, s3, 2
s_add_u32 s{S_OUT}, s{S_OUT}, s4
s_lshl_b32 s{S_OUT}, s{S_OUT}, 8
s_mov_b32 s14, {E*256}
s_mov_b32 s15, 0x20000
s_waitcnt vmcnt({o["pf2"]}) lgkmcnt(0)
s_barrier
""")

    if o["stamps"]:
        for k, r in enumerate((VAA, VAB, VCUR, VNXT)):
            e(f"v_readfirstlane_b32 s{92+k}, v{r}")
        stamp(e, o, VAA)
        e(f"s_nop 0\nv_readfirstlane_b32 s96, v{VAA}\ns_mov_b32 s97, 0")
        if o["cyc"]:
            e("s_memtime s[98:99]\ns_waitcnt lgkmcnt(0)")

    def readA(b):
        e(f"ds_read_b64 v[{A}:{A+1}], v{VAA} offset:{b*64}\nds_read_b64 v[{A+2}:{A+3}], v{VAB} offset:{b*64}")

    def filt():
        if "m" not in o["drop"]:
            e(f"v_mfma_f32_32x32x16_bf16 v[{FILT}:{FILT+15}], v[{A}:{A+3}], v[{W}:{W+3}], 0")

    def loads(rb, lane):
        for i, t in enumerate((VT0, VT1)):
            e(f"v_or_b32_dpp v{t}, v{VCLEAN}, v{VQ} row_newbcast:{lane+i} row_mask:0xf bank_mask:0xf")
            e(f"buffer_load_dwordx4 v[{ROW+rb*8+4*i}:{ROW+rb*8+4*i+3}], v{t}, s[8:11], 0 offen {o['row_ld']}")

    def next_records(off):
        e(f"ds_read_b32 v{VNXT}, v{VRA} offset:{off*4}\nds_read_u16 v{VTH}, v{VTA} offset:{off*2}")

    def pack():
        e(f"""
v_mov_b32_dpp v{VPK}, v{VNXT} row_shl:1 row_mask:0xf bank_mask:0xf
v_perm_b32 v{VPK}, v{VPK}, v{VNXT}, s{S_SEL}
v_or_b32 v{VPK}, 0xc000c000, v{VPK}
""")

    def lookup():
        e(f"""
v_bfe_u32 v{VT0}, v{VNXT}, 8, 18
v_subrev_u32 v{VT0}, s{S_R0}, v{VT0}
v_add_u32 v{VT1}, {E}, v{VT0}
v_min_u32 v{VT0}, v{VT0}, v{VT1}
v_subrev_u32 v{VT0}, s{S_LO}, v{VT0}
v_lshl_add_u32 v{VT1}, v{VT0}, 1, s{S_OFF}
v_cmp_le_u32 s[{S_OOW}:{S_OOW+1}], s{S_SPAN}, v{VT0}
v_subrev_u32 v{VT0}, {RBYTES}, v{VT1}
v_min_u32 v{VT1}, v{VT0}, v{VT1}
v_cmp_le_i32 vcc, {hex(F_SELF)}, v{VNXT}
ds_read_u16 v{VRAD}, v{VT1} offset:{L_RING}
s_and_b64 s[{S_OOW}:{S_OOW+1}], s[{S_OOW}:{S_OOW+1}], vcc
""")

    def fallback(label, wait=True):
        e(f"""
s_cmp_eq_u64 s[{S_OOW}:{S_OOW+1}], 0
s_cbranch_scc1 {label}
s_waitcnt lgkmcnt(0)
s_mov_b64 exec, s[{S_OOW}:{S_OOW+1}]
v_bfe_u32 v{VRAD}, v{VNXT}, 8, 18
v_lshlrev_b32 v{VRAD}, 1, v{VRAD}
buffer_load_ushort v{VRAD}, v{VRAD}, s[20:23], 0 offen
s_mov_b64 exec, -1
{"s_waitcnt vmcnt(0)" if wait else ""}
{"s_add_u32 s97, s97, 1" if o["stamps"] and not o["cyc"] else ""}
{label}:
""")

    def ring_dma():
        e(f"s_mov_b32 m0, s{S_DDST}\ns_add_u32 s{S_DDST}, s{S_DDST}, {RPC*2}")
        e(f"buffer_load_dwordx4 v{VL16}, s[20:23], s{S_DSRC} offen lds")

    def ring_advance():
        e(f"""
s_cmp_ge_u32 s{S_DDST}, s{S_DLIM}
s_cselect_b32 s4, {RBYTES}, 0
s_sub_u32 s{S_DDST}, s{S_DDST}, s4
s_add_u32 s{S_DSRC}, s{S_DSRC}, {RPC*2}
""")

    def window_advance():
        e(f"""
s_add_u32 s{S_LO}, s{S_LO}, {2*RPC}
s_add_u32 s{S_OFF}, s{S_OFF}, {4*RPC}
s_cmp_ge_u32 s{S_OFF}, {RBYTES}
s_cselect_b32 s4, {RBYTES}, 0
s_sub_u32 s{S_OFF}, s{S_OFF}, s4
""")

    J = (VTH, VSE, VLANE)
    t = UNP

    jl = o["jl"]

    def jit_angles():
        if jl >= 3:
            e(f"""
v_lshlrev_b32 v{J[0]}, 16, v{VTH}
v_mul_f32 v{t}, 0x40400000, v{J[0]}
v_cvt_pk_bf16_f32 v{t}, v{t}, v{t}
v_and_b32 v{J[2]}, 0xffff0000, v{t}
""")
            return
        e(f"""
v_lshlrev_b32 v{VTH}, 16, v{VTH}
v_mul_f32 v{t}, s{SE0}, v{VTH}
v_mul_f32 v{t+1}, s{SE1}, v{VTH}
v_mul_f32 v{t+2}, s{SE2}, v{VTH}
v_cvt_pk_bf16_f32 v{t+1}, v{t}, v{t+1}
v_cvt_pk_bf16_f32 v{t+2}, v{t+2}, v{t+2}
v_lshlrev_b32 v{J[0]}, 16, v{t+1}
v_and_b32 v{J[1]}, 0xffff0000, v{t+1}
v_and_b32 v{J[2]}, 0xffff0000, v{t+2}
""")

    KS = (0, 2) if jl >= 3 else (0, 1, 2)

    def jit_reduce():
        if jl >= 1:
            for k in KS:
                e(f"v_mul_f32 v{J[k]}, 0.15915494, v{J[k]}")
            for k in KS:
                e(f"v_fract_f32 v{J[k]}, v{J[k]}")
            return
        for k in KS:
            e(f"v_mul_f32 v{t+k}, {hex(C_HI)}, v{J[k]}")
        for k in KS:
            e(f"v_fract_f32 v{t+k}, v{t+k}")
        for k in KS:
            e(f"v_fmamk_f32 v{J[k]}, v{J[k]}, {hex(C_LO)}, v{t+k}")

    def jit_cos():
        for k in KS:
            e(f"v_cos_f32 v{J[k]}, v{J[k]}")
        if jl >= 3:
            e(f"v_add_f32 v{J[1]}, v{J[0]}, v{J[0]}\nv_fma_f32 v{J[1]}, v{J[1]}, v{J[0]}, -1.0")
        if jl < 2:
            e(f"""
s_nop 0
v_cvt_pk_bf16_f32 v{J[1]}, v{J[0]}, v{J[1]}
v_cvt_pk_bf16_f32 v{J[2]}, v{J[2]}, v{J[2]}
""")

    def jit_store():
        e(f"""
v_lshlrev_b32 v{VRAD}, 16, v{VRAD}
v_ashrrev_i32 v{t+3}, 31, v{VNXT}
v_bfe_i32 v{t+4}, v{VNXT}, 30, 1
v_bfi_b32 v{t+3}, v{t+3}, 0, v{VRAD}
v_and_b32 v{t+4}, v{t+4}, v{VRAD}
""")
        if jl < 2:
            e(f"""
v_lshlrev_b32 v{J[0]}, 16, v{J[1]}
v_and_b32 v{J[1]}, 0xffff0000, v{J[1]}
v_and_b32 v{J[2]}, 0xffff0000, v{J[2]}
""")
        e(f"""
v_mul_f32 v{t}, v{J[0]}, v{t+3}
v_mul_f32 v{t+1}, v{J[1]}, v{t+3}
v_mul_f32 v{t+2}, v{J[2]}, v{t+3}
v_cvt_pk_bf16_f32 v{t}, v{t}, v{t+1}
v_cvt_pk_bf16_f32 v{t+1}, v{t+2}, v{t+4}
ds_write_b64 v{VSW}, v[{t}:{t+1}]
v_xor_b32 v{VSW}, 512, v{VSW}
""")

    NBS = 2 * NB

    def lanes(b):
        for g in range(4):
            e(f"v_readlane_b32 s{SI+g}, v{VPK}, {16*g+2*b}")

    def batch(b, steady):
        rb = b % NB
        last = rb == NB - 1
        if steady:
            cnt = 2 * NB - 2 if rb in (0, NB - 1) else 2 * NB - 1
            if o["spf"] and 1 <= b <= NB:
                cnt += 1
        else:
            cnt = 2 * (NB - 1 - rb)
        e(f"s_waitcnt vmcnt({cnt})")
        for i in range(2):
            for u in range(2):
                d = UNP + 8 * i + 4 * u
                if "u" not in o["drop"]:
                    e(f"v_mfma_f32_16x16x32_bf16 v[{d}:{d+3}], v[{AU+4*u}:{AU+4*u+3}], v[{ROW+rb*8+4*i}:{ROW+rb*8+4*i+3}], 0")
        if o["prio"] == 2:
            e("s_setprio 1")
        if o["prio"] == 3:
            e("s_setprio 0")
        if steady and rb == 0 and "d" not in o["drop"]:
            ring_dma()
        if steady and "l" not in o["drop"]:
            loads(rb, 2 * ((b + NB) % NBS))
            if o["spf"] and b == 0:
                e(f"""
s_mov_b32 m0, {L_TRASH}
v_add_u32 v{VT0}, s{S_PF}, v{VL16}
buffer_load_dwordx4 v{VT0}, s[8:11], 0 offen lds
s_add_u32 s{S_PF}, s{S_PF}, {NBK * NW * SPW}
""")
        else:
            e("s_nop 3")
        for j in range(8):
            if j == 0:
                e(f"s_set_gpr_idx_on s{SI}, gpr_idx(SRC2,DST)")
            elif "i" in o["drop"]:
                pass
            elif j < 4:
                e(f"s_mov_b32 m0, s{SI+j}")
            else:
                e(f"s_lshr_b32 m0, s{SI+j-4}, 16")
            if "f" in o["drop"]:
                pass
            elif o["acc"] == "pk":
                e(f"v_pk_fma_f32 v[{ACC}:{ACC+1}], v[{UNP+2*j}:{UNP+2*j+1}], v[{FILT+2*j}:{FILT+2*j+1}], v[{ACC}:{ACC+1}]")
            else:
                e(f"v_fmac_f32 v{ACC}, v{UNP+2*j}, v{FILT+2*j}\nv_fmac_f32 v{ACC+1}, v{UNP+2*j+1}, v{FILT+2*j+1}")
        e("s_set_gpr_idx_off")
        if o["prio"] == 2:
            e("s_setprio 0")
        if o["prio"] == 3:
            e("s_setprio 1")
        if not steady and last:
            return
        e("s_waitcnt lgkmcnt(0)")
        filt()
        if steady and b == NBS - 2:
            e(f"v_xor_b32 v{VAA}, 512, v{VAA}\nv_xor_b32 v{VAB}, 512, v{VAB}")
        if steady or rb < NB - 2:
            readA((b + 2) % NBS)
        if steady and b == NBS - 1:
            pack()
            e(f"v_add_u32 v{VRA}, {SG*4}, v{VRA}\nv_add_u32 v{VTA}, {SG*2}, v{VTA}")
            next_records(SG)
        lanes((b + 1) % NBS)
        if not steady:
            return
        if rb == 0:
            ring_advance()
        if b == 0:
            lookup()
            window_advance()
            fallback("LM_inwin", wait=False)
        if b == NB - 1:
            e(f"v_and_b32 v{VCLEAN}, {hex(ROWMASK)}, v{VNXT}")
        if not o["nojit"]:
            piece = {1: jit_angles, 2: jit_reduce, 3: jit_cos, 4: jit_store}.get(b)
            if b == NB:
                e(f"s_waitcnt vmcnt({2*NB+1})")
            if piece:
                piece()

    next_records(0)
    e(f"""
v_cndmask_b32 v{VAA}, 0, v{X}, s[{MA}:{MA+1}]
v_cndmask_b32 v{VAB}, 0, v{X}, s[{MB}:{MB+1}]
s_waitcnt lgkmcnt(0)
v_and_b32 v{VCLEAN}, {hex(ROWMASK)}, v{VNXT}
""")
    lookup()
    for b in range(NB):
        loads(b, 2 * b)
    pack()
    e("s_waitcnt lgkmcnt(0)")
    fallback("LM_inwin0")
    jit_angles()
    jit_reduce()
    jit_cos()
    jit_store()
    readA(0)
    e("s_waitcnt lgkmcnt(0)")
    filt()
    next_records(SG)
    readA(1)
    e(f"s_cmp_lg_u32 s{S_MODE}, 0\ns_cbranch_scc1 LM_keepacc")
    for i in range(2 * DPW):
        e(f"v_mov_b32 v{ACC+i}, 0")
    e("LM_keepacc:")
    if o["prio"] == 1:
        e("s_cmp_lt_u32 s3, 4\ns_cbranch_scc1 LM_prio\ns_setprio 1\nLM_prio:")
    lanes(0)
    e(f"s_cmp_le_u32 s{S_NIT}, {G}\ns_cbranch_scc1 LM_drainA\n.p2align 6\nLM_loop:")
    bar = "" if o["nobar"] else "s_barrier"
    for b in range(NB):
        batch(b, True)
    e(f"""
s_sub_u32 s{S_NIT}, s{S_NIT}, {G}
{'' if o['nomid'] else bar}
s_cmp_le_u32 s{S_NIT}, {G}
s_cbranch_scc1 LM_drainB
""")
    for b in range(NB, NBS):
        batch(b, True)
    e(f"""
s_sub_u32 s{S_NIT}, s{S_NIT}, {G}
{bar}
s_cmp_gt_u32 s{S_NIT}, {G}
s_cbranch_scc1 LM_loop
LM_drainA:
""")
    for b in range(NB):
        batch(b, False)
    e("s_branch LM_drained\nLM_drainB:")
    for b in range(NB, NBS):
        batch(b, False)
    e(f"LM_drained:\nv_lshrrev_b32 v{VLANE}, 4, v{VL16}")
    e(f"""
s_waitcnt lgkmcnt(0)
s_cmp_eq_u32 s{S_MODE}, 0
s_cbranch_scc1 LM_out
s_add_u32 s{S_BASE}, s{S_BASE}, {RMAX}
s_cmp_lt_u32 s{S_BASE}, s{S_TOT}
s_cbranch_scc1 LM_round
LM_out:
""")
    if o["cyc"]:
        e("s_memtime s[6:7]\ns_waitcnt lgkmcnt(0)\ns_sub_u32 s97, s6, s98")
    stamp(e, o, VAA)
    for k in range(DPW // 16):
        y0 = (UNP, ROW, ROW + 16)[k % 3]
        for i in range(4):
            for j in range(4):
                a = ACC + 32 * k + 8 * i + 2 * j
                e(f"v_cvt_pk_bf16_f32 v{y0+4*i+j}, v{a}, v{a+1}")
        for i in range(4):
            y = y0 + 4 * i
            e(f"v_permlane16_swap_b32 v{y}, v{y+1}\nv_permlane16_swap_b32 v{y+2}, v{y+3}")
        for i in range(4):
            y = y0 + 4 * i
            if 4 * k + i == DPW // 4 - 1:
                e(f"s_cmp_ge_u32 s2, {FULL_BK}\ns_cbranch_scc1 LM_stored")
            e(f"""
v_permlane32_swap_b32 v{y}, v{y+2}
v_permlane32_swap_b32 v{y+1}, v{y+3}
buffer_store_dwordx4 v[{y}:{y+3}], v{VL16}, s[12:15], s{S_OUT} offen {o['out_st']}
s_add_u32 s{S_OUT}, s{S_OUT}, {STRIDE_ROWS*256}
""")
    e("LM_stored:")
    if o["stamps"]:
        for k in range(6):
            e(f"v_mov_b32 v{8+k}, s{92+k}")
    stamps_out(e, o, [8, 9, 10, 11, 12, VAA, 13, VAB], 33 << 20, NW)
    e("LM_end:\ns_endpgm")

    e(f"""
LM_slow:
s_mov_b32 s{S_MODE}, 1
s_lshl_b32 s4, s3, 7
v_and_b32 v{X}, 7, v{VLANE}
v_lshrrev_b32 v{X+1}, 4, v{VLANE}
v_lshl_add_u32 v{X}, v{X}, 2, v{X+1}
v_lshl_add_u32 v{X}, v{X}, 2, s4
ds_write_b32 v{X}, v{VSE} offset:{L_SEG}
v_lshlrev_b32 v{X+1}, 4, v{VLANE}
s_waitcnt lgkmcnt(0)
s_barrier
ds_read_b128 v[{X+4}:{X+7}], v{X+1} offset:{L_SEG}
s_waitcnt lgkmcnt(0)
""")
    for k in range(4):
        e(f"""
v_lshrrev_b32 v{X+8+k}, 16, v{X+4+k}
v_and_b32 v{X+4+k}, 0xffff, v{X+4+k}
v_sub_u32 v{X+8+k}, v{X+8+k}, v{X+4+k}
""")
    e(f"""
v_add_u32 v{X+9}, v{X+8}, v{X+9}
v_add_u32 v{X+10}, v{X+9}, v{X+10}
v_add_u32 v{X+11}, v{X+10}, v{X+11}
v_mov_b32 v{X+3}, v{X+11}
""")
    wave_scan(e, X + 3)
    e(f"""
v_sub_u32 v{X+12}, v{X+3}, v{X+11}
v_readlane_b32 s{S_TOT}, v{X+3}, 63
v_add_u32 v{X+13}, v{X+12}, v{X+8}
v_add_u32 v{X+14}, v{X+12}, v{X+9}
v_add_u32 v{X+15}, v{X+12}, v{X+10}
ds_write_b128 v{X+1}, v[{X+12}:{X+15}] offset:{L_P}
""")
    for k in range(4):
        e(f"v_sub_u32 v{X+4+k}, v{X+4+k}, v{X+12+k}")
    e(f"ds_write_b128 v{X+1}, v[{X+4}:{X+7}] offset:{L_Q}")
    for i in range(2 * DPW):
        e(f"v_mov_b32 v{ACC+i}, 0")
    SR = X + 12
    STH = SR + RSLOTS + 2
    SA = STH + RSLOTS + 1
    SK = SA + RSLOTS + 2
    assert SK + RSLOTS + 2 <= ROW + G
    e(f"""
s_mov_b32 s{S_BASE}, 0
LM_round:
s_lshl_b32 s4, s3, 6
v_add_u32 v{X}, s4, v{VLANE}
v_lshlrev_b32 v{X+1}, 2, v{X}
v_mov_b32 v{X+2}, 0
v_mov_b32 v{VONE}, 4
ds_write_b32 v{X+1}, v{X+2} offset:{L_HIST}
ds_write_b32 v{X+1}, v{X+2} offset:{L_HIST+2048}
v_add_u32 v{X}, s{S_BASE}, v{X}
""")
    prefill()
    for j in range(RSLOTS):
        e(f"v_cmp_gt_u32 s[{SM+2*j}:{SM+2*j+1}], s{S_TOT}, v{X}\nv_mov_b32 v{X+3}, 0")
        for st in (128, 64, 32, 16, 8, 4, 2, 1):
            e(f"""
ds_read_b32 v{X+4}, v{X+3} offset:{L_P+4*st}
v_add_u32 v{X+5}, {4*st}, v{X+3}
s_waitcnt lgkmcnt(0)
v_cmp_le_u32 vcc, v{X+4}, v{X}
s_nop 1
v_cndmask_b32 v{X+3}, v{X+3}, v{X+5}, vcc
""")
        e(f"""
ds_read_b32 v{X+4}, v{X+3} offset:{L_Q}
v_mul_u32_u24 v{X+3}, {TS//4}, v{X+3}
s_waitcnt lgkmcnt(0)
v_add_u32 v{X+4}, v{X+4}, v{X}
v_lshl_add_u32 v{X+5}, v{X+4}, 2, v{X+3}
v_lshl_add_u32 v{X+4}, v{X+4}, 1, v{X+3}
v_add_u32 v{X+4}, {T_OFF}, v{X+4}
s_mov_b64 exec, s[{SM+2*j}:{SM+2*j+1}]
buffer_load_dword v{SR+j}, v{X+5}, s[16:19], 0 offen
buffer_load_ushort v{STH+j}, v{X+4}, s[16:19], 0 offen
s_mov_b64 exec, -1
v_add_u32 v{X}, 512, v{X}
""")
    self_slots(SR + RSLOTS, STH + RSLOTS)
    m0 = SM + 2 * RSLOTS
    e(f"""
s_cmp_eq_u32 s{S_BASE}, 0
s_cselect_b64 s[{m0}:{m0+1}], -1, 0
s_cselect_b32 s{m0+2}, s34, 0
s_mov_b32 s{m0+3}, 0
s_waitcnt vmcnt(0) lgkmcnt(0)
s_barrier
""")
    slow = [(SM + 2 * j, SR + j, STH + min(j, RSLOTS), 0, SA + j, SK + j, None) for j in range(RSLOTS + 2)]
    phase1(slow)
    scan_exchange(False)
    phase2(slow)
    e("s_branch LM_tail")
    return e.text()


def gen_pf(o):
    e = Asm()
    fl = "" if o["pre"] == "pf" else o["pre"]
    e(f"""
dn_pf_kernel:
s_cmp_ge_u32 s2, {NWG}
s_cbranch_scc1 LF_end
s_load_dwordx2 s[4:5], s[0:1], {o["presrc"]}
v_lshlrev_b32 v1, 4, v0
s_waitcnt lgkmcnt(0)
""")
    srd(e, 8, 4, 5, E * 256, o["preoff"] << 20)
    e("s_mul_i32 s4, s2, 16384")
    for i in range(10):
        e(f"buffer_load_dwordx4 v[{8+4*i}:{11+4*i}], v1, s[8:11], s4 offen {fl}\ns_add_u32 s4, s4, {250*16384}")
    e("s_waitcnt vmcnt(0)\nLF_end:\ns_endpgm")
    return e.text()


HEADER = """; DimeNet angular message passing on gfx950.
"""


def kd(name, vgpr):
    return f""".p2align 6
.amdhsa_kernel {name}
  .amdhsa_next_free_vgpr {vgpr}
  .amdhsa_next_free_sgpr 102
  .amdhsa_accum_offset {vgpr}
  .amdhsa_group_segment_fixed_size 0
  .amdhsa_kernarg_size 96
  .amdhsa_user_sgpr_count 2
  .amdhsa_user_sgpr_kernarg_segment_ptr 1
  .amdhsa_system_sgpr_workgroup_id_x 1
  .amdhsa_float_denorm_mode_32 3
.end_amdhsa_kernel
"""


def generate(**kw):
    o = dict(DEFAULTS)
    o.update(kw)
    s = HEADER
    if o["pre"]:
        s += f"; @launch kernel=dn_pf_kernel grid=({NWG},1,1) block=(1024,1,1) lds=0\n"
    s += f"; @launch kernel={PART} grid=({NWG},1,1) block=(1024,1,1) lds={P_LDS}\n"
    s += f"; @launch kernel={MAIN} grid=({NBK},1,1) block=(512,1,1) lds={L_LDS}\n"
    for _ in range(o["post"]):
        s += f"; @launch kernel=dn_nop_kernel grid=({NWG},1,1) block=(64,1,1) lds=0\n"
    s += '.amdgcn_target "amdgcn-amd-amdhsa--gfx950"\n.text\n'
    extra = []
    if o["pre"]:
        extra.append(("dn_pf_kernel", gen_pf(o)))
    if o["post"]:
        extra.append(("dn_nop_kernel", "dn_nop_kernel:\n    s_endpgm\n"))
    for name, body in [(PART, gen_part(o)), (MAIN, gen_main(o))] + extra:
        s += f".globl {name}\n.p2align 8\n.type {name},@function\n{body}"
    s += '.section .rodata,"a"\n' + kd(PART, 104) + kd(MAIN, 256)
    for name, _ in extra:
        s += kd(name, 64)
    return s


if __name__ == "__main__":
    out = sys.argv[1]
    kw = {}
    for a in sys.argv[2:]:
        k, v = a.split("=", 1)
        kw[k] = int(v) if v.lstrip("-").isdigit() else v.replace("_", " ")
    open(out, "w").write(generate(**kw))
```

```python
import math
import os
import struct
import sys

MAIN = "standalone__molecular_angular_dimenet__graph_kernel"
PART = "dn_part_kernel"

E, T = 160000, 2560000
NWG = int(os.environ.get('NWG', 250))
NBK = 256
TILE = T // NWG
PT = TILE // 10
NW = 8
DPW = 80
CH_SHIFT = 11
CH_ROWS = 1 << CH_SHIFT
NCH = 160000 // CH_ROWS + 1
NBIN = 128
NB = 4
G = NB * 8
STRIDE_ROWS = NBK * NW * 4
FULL_BK = (E - (DPW // 4 - 1) * STRIDE_ROWS) // 32

TCAP = -(-(TILE + 256) // 64) * 64
T_OFF = TCAP * 4
TS = TCAP * 6
WS_REC = 0
WS_OFF = NWG * TS
WS_RAD = WS_OFF + 256 * 2048

P_HIST, P_OFF, P_REC = 0, 1024, 2048
P_LDS = P_REC + 4 * 16384

SG = 2 * G
RPC = int(os.environ.get('RPC', 3520))
RROWS = 9 * RPC
RBYTES = RROWS * 2
RPW = RPC * 2 // NW
RH0 = 7 * RPC
LCAP = 1664
L_ZERO = 0
L_STG = 1024
L_HIST = L_STG + NW * 1024
L_N = L_HIST + NW * NBIN * 4
L_SEG = L_N + 64
L_P = L_SEG + 1024
L_Q = L_P + 1024
L_RING = L_Q + 1024
L_TH = L_RING + RBYTES + 128
L_REC = L_TH + NW * LCAP * 2
L_TRASH = L_REC + NW * LCAP * 4
L_LDS = L_TRASH + 1024
SPW = 896
CBIAS = 24576
RSLOTS = 3
RMAX = RSLOTS * 512
RAD_BYTES = 2 * (E + RH0 + (LCAP // G + 1) * RPC)
assert RMAX + DPW <= LCAP and LCAP % SG == 0 and L_LDS <= 163840 and L_REC % 16 == 0 and L_RING % 16 == 0
assert L_TH % 16 == 0 and RPW % 16 == 0 and L_RING < 65536
assert 0 <= L_REC - 2 * CBIAS < 65536 and 0 <= L_TH - CBIAS < 65536

F_SELF = 0xC0000000
F_DUMMY = 0x80000000
ROWMASK = 0x03FFFF00
DUMMY_REC = F_DUMMY | ROWMASK
assert TS % 128 == 0 and TS <= 4 * 16384 and E % 32 == 0
KEY_SHIFT = 8 + CH_SHIFT
M_STRETCH = (CH_ROWS << 16) // E


def f2u(x):
    return struct.unpack("<I", struct.pack("<f", x))[0]


def u2f(u):
    return struct.unpack("<f", struct.pack("<I", u))[0]


INV2PI = 1.0 / (2.0 * math.pi)
C_HI = f2u(INV2PI) & 0xFFFFFF00
C_LO = f2u(INV2PI - u2f(C_HI))

DEFAULTS = dict(pf1=0, pf1s=0, pf1pos=2, pf1e=0, fused=0, tmo=65536, pf2=8, pf3=0, pf0=0, ulate=0, aux_st="sc1", diagdelay=0, ss=0, spf=0, nomid=0, jl=1, order=0, prio=2, acc="pk", drop="", cyc=0, hz=0, nojit=0, nobar=0, dummyrow=0, nodma=0, target=1440, rot=10, rotsh=0, jifirst=1, pre="", presrc=0, preoff=0, post=0, in_flags="nt", rec_st="sc1", seg_ld="", row_ld="", out_st="sc1", stamps=0)


class Asm:
    def __init__(self):
        self.l = []

    def __call__(self, s):
        for line in s.strip("\n").split("\n"):
            line = line.strip()
            if not line:
                continue
            if line.endswith(":") or line.startswith("."):
                self.l.append(line)
            else:
                self.l.append("    " + line)

    def text(self):
        return "\n".join(self.l) + "\n"


def srd(e, d, lo, hi, nbytes, add=None):
    if add is None:
        e(f"s_mov_b32 s{d}, s{lo}\ns_mov_b32 s{d+1}, s{hi}")
    else:
        e(f"s_add_u32 s{d}, s{lo}, {add}\ns_addc_u32 s{d+1}, s{hi}, 0")
    e(f"s_mov_b32 s{d+2}, {nbytes}\ns_mov_b32 s{d+3}, 0x20000")


def wave_scan(e, v):
    for ctl in ("row_shr:1 row_mask:0xf", "row_shr:2 row_mask:0xf", "row_shr:4 row_mask:0xf",
                "row_shr:8 row_mask:0xf", "row_bcast:15 row_mask:0xa", "row_bcast:31 row_mask:0xc"):
        e(f"s_nop 1\nv_add_u32_dpp v{v}, v{v}, v{v} {ctl} bank_mask:0xf")


def stamp(e, o, v):
    if o["stamps"]:
        e(f"s_memrealtime vcc\ns_waitcnt lgkmcnt(0)\nv_mov_b32 v{v}, vcc_lo")


def stamps_out(e, o, regs, region, nwaves):
    if not o["stamps"]:
        return
    e("s_waitcnt vmcnt(0)")
    stamp(e, o, regs[-1])
    e("s_load_dwordx2 s[4:5], s[0:1], 88\ns_waitcnt lgkmcnt(0)")
    srd(e, 12, 4, 5, NBK * nwaves * 32, region)
    srd(e, 16, 4, 5, 64, 32 << 20)
    e(f"s_mul_i32 s4, s2, {nwaves}\ns_add_u32 s4, s4, s3\ns_lshl_b32 s4, s4, 5\nv_mov_b32 v0, s4")
    for k, r in enumerate(regs):
        e(f"buffer_store_dword v{r}, v0, s[12:15], 0 offen offset:{4*k}")
    if o["stamps"] == 2 and nwaves == NW:
        e(f"""
s_load_dwordx2 s[6:7], s[0:1], 80
v_mov_b32 v0, 0
s_or_b32 s4, s2, s3
s_cmp_lg_u32 s4, 0
s_cbranch_scc1 LM_end
s_lshr_b32 s4, s2, 2
s_waitcnt vmcnt(0) lgkmcnt(0)
""")
        srd(e, 20, 6, 7, 256)
        e("buffer_load_dword v1, v0, s[16:19], 0 offen sc0 sc1")
        e("buffer_load_dwordx4 v[20:23], v0, s[16:19], 0 offen offset:4 sc0 sc1\ns_waitcnt vmcnt(0)\ns_mov_b64 exec, 1")
        for k, r in enumerate(list(regs) + [20, 21, 22, 23]):
            e(f"v_sub_u32 v{r}, v{r}, v1\nbuffer_store_dword v{r}, v0, s[20:23], 0 offen offset:{4*k}")


def gen_part(o):
    e = Asm()
    fl = o["in_flags"]
    JI, KJ, TH = 4, 16, 28
    VD = 33
    U, REM, HA, RK = 36, 46, 56, 66
    S = 76
    PFD = 92
    ST = 96
    e(f"""
{PART}:
s_cmp_ge_u32 s2, {NWG}
s_cbranch_scc1 LP_end
s_load_dwordx8 s[12:19], s[0:1], 8
s_load_dwordx2 s[20:21], s[0:1], 40
s_load_dwordx2 s[22:23], s[0:1], 88
s_load_dwordx2 s[26:27], s[0:1], 0
""")
    stamp(e, o, ST)
    e(f"""
v_lshlrev_b32 v1, 4, v0
v_lshlrev_b32 v2, 3, v0
v_lshlrev_b32 v3, 2, v0
v_lshlrev_b32 v34, 1, v0
v_mov_b32 v35, 0
ds_write_b32 v3, v35
v_lshrrev_b32 v35, 6, v0
s_mul_i32 s4, s2, {TILE*4}
s_mul_i32 s5, s2, {TILE*2}
s_mul_i32 s6, s2, {TS}
v_readfirstlane_b32 s3, v35
s_mul_i32 s7, s2, {E//NWG*2}
s_lshl_b32 s8, s2, 10
s_mov_b32 s9, {PT*16}
s_mov_b32 s10, {PT*32}
s_mov_b32 s11, {PT*8}
v_cmp_gt_u32 vcc, {PT}, v0
s_waitcnt lgkmcnt(0)
s_load_dword s24, s[20:21], 0
""")
    srd(e, 28, 18, 19, TILE * 4, "s4")
    e(f"""
s_mov_b64 exec, vcc
buffer_load_dwordx4 v[{JI}:{JI+3}], v1, s[28:31], 0 offen {fl}
buffer_load_dwordx4 v[{JI+4}:{JI+7}], v1, s[28:31], s9 offen {fl}
buffer_load_dwordx2 v[{JI+8}:{JI+9}], v2, s[28:31], s10 offen {fl}
""")
    srd(e, 32, 16, 17, TILE * 4, "s4")
    srd(e, 36, 14, 15, TILE * 2, "s5")
    srd(e, 48, 12, 13, E // NWG * 2, "s7")

    def rest_loads():
        e(f"""
buffer_load_ushort v{VD}, v34, s[48:51], 0 offen
buffer_load_dwordx4 v[{KJ}:{KJ+3}], v1, s[32:35], 0 offen {fl}
buffer_load_dwordx2 v[{TH}:{TH+1}], v2, s[36:39], 0 offen {fl}
buffer_load_dwordx4 v[{KJ+4}:{KJ+7}], v1, s[32:35], s9 offen {fl}
buffer_load_dwordx2 v[{TH+2}:{TH+3}], v2, s[36:39], s11 offen {fl}
buffer_load_dwordx2 v[{KJ+8}:{KJ+9}], v2, s[32:35], s10 offen {fl}
buffer_load_dword v{TH+4}, v3, s[36:39], s9 offen {fl}
""")
    if not o["jifirst"]:
        rest_loads()
    npf = o["pf1"]

    def prefetch(start, n):
        srd(e, 56, 26, 27, E * 256)
        e(f"s_lshl_b32 s60, s2, 14\ns_add_u32 s60, s60, {start * NWG * 16384}")
        for i in range(n):
            e(f"buffer_load_dwordx4 v[{PFD}:{PFD+3}], v1, s[56:59], s60 offen\ns_add_u32 s60, s60, {NWG*16384}")
    srd(e, 40, 22, 23, TS, "s6")
    e(f"s_add_u32 s8, s8, {WS_OFF}")
    srd(e, 44, 22, 23, NBK * 4, "s8")
    e(f"s_add_u32 s7, s7, {WS_RAD}")
    srd(e, 52, 22, 23, E // NWG * 2, "s7")
    e(f"s_add_u32 s7, s7, {E*2}")
    srd(e, 64, 22, 23, E // NWG * 2, "s7")
    e(f"""
s_mov_b32 s25, 0x380
s_mov_b32 s61, 0xf8
v_mov_b32 v35, 4
s_barrier
""")
    if o["jifirst"]:
        e(f"s_waitcnt vmcnt({o['jifirst'] - 1})")
        rest_loads()
    for k in range(10):
        if k in (0, 4, 8):
            e(f"s_waitcnt vmcnt({9 - k // 4})")
        e(f"""
v_lshlrev_b32 v{U+k}, 2, v{JI+k}
v_lshrrev_b32 v{HA+k}, 6, v{JI+k}
v_bfi_b32 v{HA+k}, s25, v{U+k}, v{HA+k}
v_and_b32 v{HA+k}, 0x3fc, v{HA+k}
ds_add_rtn_u32 v{RK+k}, v{HA+k}, v35 offset:{P_HIST}
""")
    def low_bits():
        for k in range(10):
            e(f"""
v_lshl_add_u32 v{U+k}, v{JI+k}, 23, v{JI+k}
v_lshrrev_b32 v{JI+k}, 10, v{JI+k}
v_add_u32 v{U+k}, v{U+k}, v{U+k}
v_and_b32 v{U+k}, 0x1c000006, v{U+k}
v_and_or_b32 v{U+k}, v{JI+k}, s61, v{U+k}
""")
    if not o["ulate"]:
        low_bits()
    e("s_waitcnt lgkmcnt(0)\ns_barrier")
    stamp(e, o, ST + 1)
    e(f"""
v_and_b32 v{S+12}, 63, v0
v_lshlrev_b32 v{S+12}, 4, v{S+12}
s_cmp_lg_u32 s3, 0
s_cbranch_scc1 LP_noscan
s_setprio 3
ds_read_b128 v[{S}:{S+3}], v{S+12} offset:{P_HIST}
s_waitcnt lgkmcnt(0)
""")
    for k in range(4):
        e(f"v_add_u32 v{S+8+k}, 4, v{S+k}\nv_and_b32 v{S+8+k}, -8, v{S+8+k}")
    e(f"""
v_add_u32 v{S+9}, v{S+8}, v{S+9}
v_add_u32 v{S+10}, v{S+9}, v{S+10}
v_add_u32 v{S+11}, v{S+10}, v{S+11}
v_mov_b32 v{S+13}, v{S+11}
""")
    wave_scan(e, S + 13)
    e(f"""
v_sub_u32 v{S+4}, v{S+13}, v{S+11}
v_add_u32 v{S+5}, v{S+4}, v{S+8}
v_add_u32 v{S+6}, v{S+4}, v{S+9}
v_add_u32 v{S+7}, v{S+4}, v{S+10}
ds_write_b128 v{S+12}, v[{S+4}:{S+7}] offset:{P_OFF}
""")
    for k in range(4):
        e(f"v_add_u32 v{S+k}, v{S+k}, v{S+4+k}\nv_lshrrev_b32 v{S+4+k}, 2, v{S+4+k}\nv_lshl_or_b32 v{S+k}, v{S+k}, 14, v{S+4+k}")
    if o["ulate"]:
        e("s_waitcnt lgkmcnt(0)\ns_barrier\ns_setprio 0")
        low_bits()
        e("s_branch LP_offs\nLP_noscan:")
        low_bits()
        e("s_barrier\nLP_offs:")
    else:
        e("LP_noscan:\ns_waitcnt lgkmcnt(0)\ns_barrier\ns_setprio 0")
    for k in range(10):
        e(f"ds_read_b32 v{HA+k}, v{HA+k} offset:{P_OFF}")
    for k in range(10):
        e(f"s_waitcnt lgkmcnt({9-k})\nv_add_u32 v{HA+k}, v{HA+k}, v{RK+k}\nv_lshrrev_b32 v{RK+k}, 1, v{HA+k}")
    stamp(e, o, ST + 2)
    for k in range(10):
        if k in (0, 4, 8):
            e(f"s_waitcnt vmcnt({4 - k // 2})")
        e(f"""
v_lshl_or_b32 v{KJ+k}, v{KJ+k}, 8, v{U+k}
ds_write_b32 v{HA+k}, v{KJ+k} offset:{P_REC}
ds_write_b16{'_d16_hi' if k & 1 else ''} v{RK+k}, v{TH+k//2} offset:{P_REC+T_OFF}
""")
    e(f"""
s_lshl_b32 s24, s24, 16
v_lshlrev_b32 v{VD}, 16, v{VD}
v_mul_f32 v{S+8}, s24, v{VD}
v_cvt_pk_bf16_f32 v{S+8}, v{S+8}, v{S+8}
v_lshlrev_b32 v{S+8}, 16, v{S+8}
v_mul_f32 v{S+9}, {hex(C_HI)}, v{S+8}
v_fract_f32 v{S+9}, v{S+9}
v_fmac_f32 v{S+9}, {hex(C_LO)}, v{S+8}
v_sin_f32 v{S+9}, v{S+9}
v_rcp_f32 v{VD}, v{VD}
v_cvt_pk_bf16_f32 v{S+9}, v{S+9}, v{S+9}
v_lshlrev_b32 v{S+9}, 16, v{S+9}
v_mul_f32 v{S+9}, v{S+9}, v{VD}
v_cvt_pk_bf16_f32 v{S+9}, v{S+9}, v{S+9}
""")
    if npf:
        prefetch(o["pf1s"], npf)
    e(f"""
buffer_store_short v{S+9}, v34, s[52:55], 0 offen {o['aux_st']}
buffer_store_short v{S+9}, v34, s[64:67], 0 offen {o['aux_st']}
s_cmp_lg_u32 s3, 0
s_cbranch_scc1 LP_nooff
""")
    e(f"""
buffer_store_dwordx4 v[{S}:{S+3}], v{S+12}, s[44:47], 0 offen {o['aux_st']}
LP_nooff:
s_mov_b64 exec, -1
v_add_u32 v2, 16384, v1
v_add_u32 v3, 32768, v1
v_add_u32 v34, 49152, v1
s_waitcnt lgkmcnt(0)
s_barrier
""")
    stamp(e, o, ST + 3)
    for j in range(4):
        e(f"ds_read_b128 v[{4+4*j}:{7+4*j}], v1 offset:{P_REC+j*16384}")
    for j, a in enumerate((1, 2, 3, 34)):
        e(f"s_waitcnt lgkmcnt({3-j})")
        e(f"buffer_store_dwordx4 v[{4+4*j}:{7+4*j}], v{a}, s[40:43], 0 offen {o['rec_st']}")
    for _ in range(o["diagdelay"]):
        e("s_sleep 32")
    if o["pf1e"]:
        prefetch(o["pf1s"] + npf, o["pf1e"])
    stamps_out(e, o, [ST, ST + 1, ST + 2, ST + 3, ST + 4], 32 << 20, 16)
    e("LP_end:\ns_endpgm")
    return e.text()


def gen_main(o):
    assert o["pf0"] + o["pf2"] <= 15
    e = Asm()
    TARGET = o["target"]
    ACC, ROW = 0, 160
    FILT = ROW + G
    UNP = FILT + 16
    A = UNP + 16
    W = A + 4
    AU = W + 4
    (VPK, VNXT, VCLEAN, VTA, VTH, VRAD, VRA, VL16, VAA, VAB, VQ, VT0, VT1, VSW, VLANE, VSE) = range(AU + 8, AU + 24)
    VCUR = VPK
    assert VSE <= 255
    SI = 36
    SM = 36
    X = ROW
    VONE = VRAD
    SE0, SE1, SE2 = 30, 31, 32
    S_NIT, S_N, S_MODE = 28, 29, 35
    S_TOT, S_BASE = 100, 101
    MA, MB = 24, 26
    S_R0, S_OFF, S_SEL, S_LO, S_SPAN, S_DSRC, S_DDST, S_DLIM, S_OOW, S_PF = 44, 45, 46, 47, 48, 49, 50, 51, 52, 54
    S_OUT, S_PFN = 55, 56

    if not o["fused"]:
        e(f"""
{MAIN}:
s_cmp_ge_u32 s2, {NBK}
s_cbranch_scc1 LM_end
s_load_dwordx2 s[4:5], s[0:1], 0
s_load_dwordx2 s[6:7], s[0:1], 88
s_load_dwordx4 s[40:43], s[0:1], 56
s_load_dwordx2 s[44:45], s[0:1], 48
""")
        stamp(e, o, VAA)
        e(f"""
v_lshrrev_b32 v{X}, 6, v0
v_and_b32 v{VLANE}, 63, v0
v_lshlrev_b32 v{X+1}, 2, v0
v_readfirstlane_b32 s3, v{X}
v_mov_b32 v{X+2}, 0
ds_write_b32 v{X+1}, v{X+2} offset:{L_HIST}
ds_write_b32 v{X+1}, v{X+2} offset:{L_HIST+2048}
ds_write_b32 v{X+1}, v{X+2} offset:{L_ZERO}
s_and_b32 s33, s2, 7
s_lshr_b32 s34, s2, 3
s_lshl_b32 s{S_TOT}, s34, 13
s_lshr_b32 s{S_BASE}, s33, {o["rotsh"]}
s_mul_i32 s{S_BASE}, s{S_BASE}, {o["rot"]}
s_lshl_b32 s33, s33, 5
s_add_u32 s34, s34, s33
v_and_b32 v{X+3}, 15, v{VLANE}
v_lshlrev_b32 v{VQ}, 4, v{X+3}
v_lshrrev_b32 v{X+4}, 5, v{VLANE}
v_lshrrev_b32 v{X+11}, 4, v{VLANE}
v_and_b32 v{X+5}, 7, v{VLANE}
v_lshl_add_u32 v{X+5}, v{X+5}, 2, v{X+11}
s_lshl_b32 s33, s3, 15
s_lshl_b32 s34, s34, 2
s_add_u32 s33, s33, s34
v_lshl_add_u32 v{X+6}, v{X+5}, 10, s33
s_waitcnt lgkmcnt(0)
""")
        srd(e, 24, 6, 7, NWG * 1024, WS_OFF)
        e(f"buffer_load_dword v{VSE}, v{X+6}, s[24:27], 0 offen")
        srd(e, 8, 4, 5, o["hz"] if o["hz"] else E * 256)
        srd(e, 16, 6, 7, NWG * TS)
        srd(e, 20, 6, 7, RAD_BYTES, WS_RAD)
        e(f"""
v_lshlrev_b32 v{VL16}, 4, v{VLANE}
s_mul_i32 s5, s{S_BASE}, {CH_ROWS*256}
s_lshl_b32 s4, s3, 10
s_add_u32 s4, s4, s5
s_add_u32 s{S_TOT}, s4, s{S_TOT}
""")
    else:
        e(f"""
{MAIN}:
s_cmp_ge_u32 s2, {NBK}
s_cbranch_scc1 LM_end
s_load_dwordx8 s[68:75], s[0:1], 8
s_load_dwordx2 s[4:5], s[0:1], 0
s_load_dwordx4 s[76:79], s[0:1], 72
s_load_dwordx2 s[6:7], s[0:1], 88
s_load_dwordx4 s[40:43], s[0:1], 56
s_load_dwordx4 s[44:47], s[0:1], 40
""")
        stamp(e, o, VAA)
        e(f"""
v_lshrrev_b32 v{X}, 6, v0
v_and_b32 v{VLANE}, 63, v0
v_lshlrev_b32 v{X+1}, 2, v0
v_readfirstlane_b32 s3, v{X}
v_lshlrev_b32 v1, 4, v0
v_lshlrev_b32 v2, 3, v0
v_lshlrev_b32 v3, 1, v0
v_mov_b32 v{X+2}, 0
ds_write_b32 v{X+1}, v{X+2} offset:{L_SEG}
ds_write_b32 v{X+1}, v{X+2} offset:{L_HIST}
ds_write_b32 v{X+1}, v{X+2} offset:{L_HIST+2048}
ds_write_b32 v{X+1}, v{X+2} offset:{L_ZERO}
s_and_b32 s33, s2, 7
s_lshr_b32 s34, s2, 3
s_lshl_b32 s{S_TOT}, s34, 13
s_lshr_b32 s{S_BASE}, s33, {o["rotsh"]}
s_mul_i32 s{S_BASE}, s{S_BASE}, {o["rot"]}
v_and_b32 v{X+3}, 15, v{VLANE}
v_lshlrev_b32 v{VQ}, 4, v{X+3}
v_lshrrev_b32 v{X+4}, 5, v{VLANE}
v_lshrrev_b32 v{X+11}, 4, v{VLANE}
v_and_b32 v{X+5}, 7, v{VLANE}
v_lshl_add_u32 v{X+5}, v{X+5}, 2, v{X+11}
s_lshl_b32 s33, s3, 5
v_add_u32 v{X+5}, s33, v{X+5}
s_lshl_b32 s33, s2, 11
v_lshl_add_u32 v{X+6}, v{X+5}, 3, s33
v_subrev_u32 v{X+26}, {NWG}, v{X+5}
v_ashrrev_i32 v{X+26}, 31, v{X+26}
v_lshlrev_b32 v{VL16}, 4, v{VLANE}
s_mul_i32 s33, s{S_BASE}, {CH_ROWS*256}
s_lshl_b32 s34, s3, 10
s_add_u32 s33, s33, s34
s_add_u32 s{S_TOT}, s33, s{S_TOT}
s_waitcnt lgkmcnt(0)
s_mov_b64 s[76:77], s[44:45]
s_mov_b64 s[44:45], s[46:47]
""")
        srd(e, 8, 4, 5, o["hz"] if o["hz"] else E * 256)
        srd(e, 16, 6, 7, NWG * TS)
        srd(e, 20, 6, 7, RAD_BYTES, WS_RAD)
    pfop = f"buffer_load_dwordx4 v[{X+24}:{X+27}], v{VL16}, s[8:11], s{S_TOT} offen\ns_add_u32 s{S_TOT}, s{S_TOT}, {32*8192}"

    def prefill():
        for base, per, val in ((L_REC, LCAP * 4, F_DUMMY | ((E - 1) << 8) if o["dummyrow"] else DUMMY_REC), (L_TH, LCAP * 2, 0)):
            e(f"s_mul_i32 s4, s3, {per}\ns_add_u32 s4, s4, {base}\nv_lshl_add_u32 v{VT0}, v{VLANE}, 4, s4")
            r = A if val else UNP
            for k in range(4):
                e(f"v_mov_b32 v{r+k}, {hex(val)}")
            n = per // 1024
            for k in range(n):
                e(f"ds_write_b128 v{VT0}, v[{r}:{r+3}] offset:{1024*k}")
            rest = per % 1024 // 16
            if rest:
                assert rest <= 32
                e(f"s_mov_b64 exec, {hex((1 << rest) - 1) if rest < 32 else '0xffffffff'}")
                if rest == 32:
                    e("s_mov_b32 exec_hi, 0")
                e(f"ds_write_b128 v{VT0}, v[{r}:{r+3}] offset:{1024*n}\ns_mov_b64 exec, -1")
    def self_slots(r0, th):
        e(f"""
s_lshl_b32 s33, s2, 5
s_lshl_b32 s34, s3, 2
s_add_u32 s33, s33, s34
s_lshl_b32 s34, s3, 26
s_or_b32 s34, s34, {hex(F_SELF)}
v_mov_b32 v{th}, 0
""")
        for k in range(2):
            e(f"""
v_add_u32 v{VT0}, {64*k}, v{VLANE}
v_lshrrev_b32 v{VT1}, 2, v{VT0}
v_mul_u32_u24 v{VT1}, {STRIDE_ROWS}, v{VT1}
v_and_b32 v{r0+k}, 3, v{VT0}
v_add3_u32 v{VT1}, v{VT1}, v{r0+k}, s33
v_lshl_or_b32 v{r0+k}, v{VT1}, 7, v{VT0}
v_lshlrev_b32 v{r0+k}, 1, v{r0+k}
v_or_b32 v{r0+k}, s34, v{r0+k}
""")
        e(f"s_cmp_lt_u32 s2, {FULL_BK}\ns_cselect_b32 s34, 16, 12\ns_bfm_b32 s34, s34, 0")
    FR, FT, FX, FS, FA, FK = 0, 32, 48, 52, 56, 92

    def w_loads():
        e(f"s_load_dwordx2 s[{SE0}:{SE0+1}], s[44:45], 0")
        srd(e, 12, 40, 41, 768)
        srd(e, 36, 42, 43, 256)
        e(f"""
v_bfe_u32 v{X+7}, v{VLANE}, 4, 1
v_lshl_add_u32 v{X+7}, v{X+7}, 1, v{X+4}
v_lshl_add_u32 v{X+7}, v{X+7}, 1, v{VQ}
buffer_load_ushort v{W}, v{X+7}, s[12:15], 0 offen
buffer_load_ushort v{FILT}, v{X+7}, s[12:15], 0 offen offset:256
buffer_load_ushort v{W+1}, v{X+7}, s[12:15], 0 offen offset:512
buffer_load_ushort v{FILT+1}, v{X+7}, s[36:39], 0 offen
buffer_load_ushort v{W+2}, v{X+7}, s[12:15], 0 offen offset:8
buffer_load_ushort v{FILT+2}, v{X+7}, s[12:15], 0 offen offset:264
buffer_load_ushort v{W+3}, v{X+7}, s[12:15], 0 offen offset:520
buffer_load_ushort v{FILT+3}, v{X+7}, s[36:39], 0 offen offset:8
""")

    def sweep_consts():
        e(f"""
v_and_b32 v{X+8}, 1, v{VLANE}
v_cmp_eq_u32 s[4:5], v{X+8}, v{X+4}
v_bfe_u32 v{X+9}, v{VLANE}, 2, 1
v_cmp_eq_u32 vcc, 0, v{X+9}
s_and_b64 s[{MA}:{MA+1}], s[4:5], vcc
s_andn2_b64 s[{MB}:{MB+1}], s[4:5], vcc
v_bfe_u32 v{X+10}, v{VLANE}, 1, 1
v_lshlrev_b32 v{X+8}, 4, v{X+8}
v_mov_b32 v{X+12}, 0x3f80
v_lshlrev_b32 v{X+8}, v{X+8}, v{X+12}
v_sub_u32 v{X+12}, v{X+11}, v{X+10}
v_bfe_u32 v{X+13}, v{VLANE}, 2, 2
v_lshl_add_u32 v{X+13}, v{X+12}, 2, v{X+13}
""")
        for u in range(2):
            for r in range(4):
                e(f"v_cmp_eq_u32 vcc, {8*u+r}, v{X+13}\ns_nop 1\nv_cndmask_b32 v{AU+4*u+r}, 0, v{X+8}, vcc")

    def extra_slots():
        e(f"""
v_lshrrev_b32 v{X+16}, 16, v{VSE}
v_and_b32 v{X+17}, 0xffff, v{VSE}
v_sub_u32 v{X+16}, v{X+16}, v{X+17}
v_cmp_lt_u32 s[4:5], 64, v{X+16}
s_mov_b64 s[12:13], 0
s_mov_b64 s[14:15], 0
s_and_b32 s4, s4, 0x00ff00ff
s_and_b32 s5, s5, 0x00ff00ff
s_cmp_eq_u64 s[4:5], 0
s_cbranch_scc1 LM_noextra
v_mov_b32 v{X+17}, 128
v_cmp_gt_u32 vcc, v{X+16}, v{X+17}
s_bcnt1_i32_b64 s6, s[4:5]
s_cmp_gt_u32 s6, 2
s_cselect_b32 s{S_MODE}, 1, 0
s_cmp_lg_u64 vcc, 0
s_cselect_b32 s{S_MODE}, 1, s{S_MODE}
""")
        for k in range(2):
            if k:
                e("s_cmp_eq_u64 s[4:5], 0\ns_cbranch_scc1 LM_noextra")
            e(f"""
s_ff1_i32_b64 s6, s[4:5]
s_bitset0_b64 s[4:5], s6
v_readlane_b32 s7, v{VSE}, s6
s_and_b32 s34, s6, 7
s_lshr_b32 s6, s6, 4
s_lshl_b32 s34, s34, 2
s_add_u32 s6, s6, s34
s_mul_i32 s6, s6, {TS}
s_add_u32 s6, s6, s33
s_and_b32 s34, s7, 0xffff
s_lshr_b32 s7, s7, 16
s_add_u32 s34, s34, 64
v_add_u32 v{X+17}, s34, v{VLANE}
v_cmp_gt_u32 s[{12+2*k}:{13+2*k}], s7, v{X+17}
v_lshlrev_b32 v{X+18}, 2, v{X+17}
v_lshlrev_b32 v{X+17}, 1, v{X+17}
v_add_u32 v{X+17}, {T_OFF}, v{X+17}
s_mov_b64 exec, s[{12+2*k}:{13+2*k}]
buffer_load_dword v{FX+2*k}, v{X+18}, s[16:19], s6 offen
buffer_load_ushort v{FX+2*k+1}, v{X+17}, s[16:19], s6 offen
s_mov_b64 exec, -1
""")

    def seg_loads(i):
        t, en, ta = X + 16 + 3 * (i & 1), X + 17 + 3 * (i & 1), X + 18 + 3 * (i & 1)
        m = SM + 8 * i
        e(f"""
v_mov_b32_dpp v{t}, v{VSE} row_newbcast:{i} row_mask:0xf bank_mask:0xf
v_lshrrev_b32 v{en}, 16, v{t}
v_and_b32 v{t}, 0xffff, v{t}
v_add_u32 v{t}, v{t}, v{X+14}
v_sub_u32 v{en}, v{en}, v{t}
v_cmp_lt_i32 s[{m}:{m+1}], 0, v{en}
v_lshl_add_u32 v{ta}, v{t}, 1, v{X+13}
v_lshl_add_u32 v{t}, v{t}, 2, v{X+15}
v_cmp_lt_i32 s[{m+2}:{m+3}], 1, v{en}
v_cmp_lt_i32 s[{m+4}:{m+5}], 2, v{en}
v_cmp_lt_i32 s[{m+6}:{m+7}], 3, v{en}
s_mov_b64 exec, s[{m}:{m+1}]
buffer_load_dwordx4 v[{FR+4*i}:{FR+4*i+3}], v{t}, s[16:19], s33 offen {o['seg_ld']}
buffer_load_dwordx2 v[{FT+2*i}:{FT+2*i+1}], v{ta}, s[16:19], s33 offen {o['seg_ld']}
s_mov_b64 exec, -1
s_add_u32 s33, s33, {4*TS}
""")

    def seg_consts():
        e(f"""
v_lshlrev_b32 v{X+14}, 2, v{X+3}
v_mul_u32_u24 v{X+15}, {TS}, v{X+11}
v_add_u32 v{X+13}, {T_OFF}, v{X+15}
v_mov_b32 v{VONE}, 4
""")

    def ell_consts():
        e(f"""
s_lshl_b32 s{SE2}, s{SE1}, 16
s_and_b32 s{SE1}, s{SE0}, 0xffff0000
s_lshl_b32 s{SE0}, s{SE0}, 16
""")

    def w_merge():
        for i in range(4):
            e(f"v_lshl_or_b32 v{W+i}, v{FILT+i}, 16, v{W+i}")

    if not o["fused"]:
        w_loads()
        if o["pf0"]:
            e("s_barrier")
        for _ in range(o["pf0"]):
            e(pfop)
        prefill()
        seg_consts()
        e(f"s_mul_i32 s33, s3, {32*TS}\ns_mov_b32 s{S_MODE}, 0\ns_waitcnt vmcnt({o['pf0'] + 8})")
        if o["ss"]:
            stamp(e, o, VAB)
        extra_slots()
        e("LM_noextra:")
        for i in range(8):
            seg_loads(i)
        if o["ss"]:
            stamp(e, o, VCUR)
        sweep_consts()
        self_slots(FS, FS + 2)
        e("s_waitcnt lgkmcnt(0)")
        ell_consts()
        e("s_barrier")
    else:
        NE = TILE // 512
        NP = NE // 4
        JI, KJ, TH, VD, U, HA, RK, S = 4, 24, 44, 54, 56, 76, 96, 116
        VN, VFOUR, VR, VE2 = 132, 133, 134, 136
        PS = L_RING
        assert TILE == 512 * NE and NE == 20 and TS <= RBYTES + 128 and PS + T_OFF < 65536
        fl = o["in_flags"]
        so16 = ["0", "s80", "s81", "s82", "s83"]
        so8 = ["0", "s84", "s80", "s85", "s81"]
        srd(e, 60, 78, 79, 4)
        e(f"""
s_load_dword s86, s[76:77], 0
s_mul_i32 s4, s2, {TILE*4}
s_mov_b32 s80, 8192
s_mov_b32 s81, 16384
s_mov_b32 s82, 24576
s_mov_b32 s83, 32768
s_mov_b32 s84, 4096
s_mov_b32 s85, 12288
""")
        srd(e, 48, 74, 75, TILE * 4, "s4")
        e(f"s_cmp_ge_u32 s2, {NWG}\ns_cbranch_scc1 LF_noji")
        for p in range(NP):
            e(f"buffer_load_dwordx4 v[{JI+4*p}:{JI+4*p+3}], v1, s[48:51], {so16[p]} offen {fl}")
        e(f"""
s_or_b32 s5, s2, s3
s_cmp_lg_u32 s5, 0
s_cbranch_scc1 LF_noji
s_memrealtime s[28:29]
s_waitcnt lgkmcnt(0)
s_or_b32 s28, s28, 1
v_mov_b32 v{S}, s28
v_mov_b32 v{S+1}, 0
s_mov_b64 exec, 1
buffer_store_dword v{S}, v{S+1}, s[60:63], 0 offen sc1
s_mov_b64 exec, -1
LF_noji:
""")
        srd(e, 52, 72, 73, TILE * 4, "s4")
        e(f"s_mul_i32 s5, s2, {TILE*2}")
        srd(e, 56, 70, 71, TILE * 2, "s5")
        e(f"s_mul_i32 s5, s2, {E//NWG*2}")
        srd(e, 64, 68, 69, E // NWG * 2, "s5")
        e(f"s_add_u32 s5, s5, {WS_RAD}")
        srd(e, 92, 16, 17, E // NWG * 2, "s5")
        e(f"s_add_u32 s5, s5, {E*2}")
        srd(e, 96, 16, 17, E // NWG * 2, "s5")
        e(f"s_mul_i32 s5, s2, {TS}")
        srd(e, 88, 16, 17, TS, "s5")
        w_loads()
        srd(e, 12, 16, 17, NBK * 2048, WS_OFF)
        prefill()
        sweep_consts()
        seg_consts()
        e(f"""
v_mov_b32 v{VN}, 0
v_mov_b32 v{VFOUR}, 4
v_add_u32 v{VE2}, 1024, v3
s_mov_b32 s87, 0x380
s_mov_b32 s47, 0xf8
s_mov_b32 s34, {o["tmo"]}
s_waitcnt lgkmcnt(0)
""")
        ell_consts()
        e(f"""
s_barrier
s_waitcnt vmcnt(0)
""")
        w_merge()
        e(f"""
s_cmp_ge_u32 s2, {NWG}
s_cbranch_scc1 LF_nonce
buffer_load_ushort v{VD}, v3, s[64:67], 0 offen
buffer_load_ushort v{VD+1}, v{VE2}, s[64:67], 0 offen
""")
        for p in range(NP):
            e(f"buffer_load_dwordx4 v[{KJ+4*p}:{KJ+4*p+3}], v1, s[52:55], {so16[p]} offen {fl}")
            e(f"buffer_load_dwordx2 v[{TH+2*p}:{TH+2*p+1}], v2, s[56:59], {so8[p]} offen {fl}")
        e(f"""
s_cmp_lg_u32 s3, 0
s_cbranch_scc1 LF_nora
buffer_load_dword v{VN}, v{VN}, s[60:63], 0 offen sc1
LF_nora:
""")
        for k in range(NE):
            e(f"""
v_lshlrev_b32 v{U+k}, 2, v{JI+k}
v_lshrrev_b32 v{HA+k}, 6, v{JI+k}
v_bfi_b32 v{HA+k}, s87, v{U+k}, v{HA+k}
v_and_b32 v{HA+k}, 0x3fc, v{HA+k}
ds_add_rtn_u32 v{RK+k}, v{HA+k}, v{VFOUR} offset:{L_SEG}
""")
        for k in range(NE):
            e(f"""
v_lshl_add_u32 v{U+k}, v{JI+k}, 23, v{JI+k}
v_lshrrev_b32 v{JI+k}, 10, v{JI+k}
v_add_u32 v{U+k}, v{U+k}, v{U+k}
v_and_b32 v{U+k}, 0x1c000006, v{U+k}
v_and_or_b32 v{U+k}, v{JI+k}, s47, v{U+k}
""")
        e(f"""
s_waitcnt lgkmcnt(0)
s_barrier
s_cmp_lg_u32 s3, 0
s_cbranch_scc1 LF_noscan
s_setprio 3
ds_read_b128 v[{S}:{S+3}], v{VL16} offset:{L_SEG}
s_waitcnt lgkmcnt(0)
""")
        for k in range(4):
            e(f"v_add_u32 v{S+8+k}, 4, v{S+k}\nv_and_b32 v{S+8+k}, -8, v{S+8+k}")
        e(f"""
v_add_u32 v{S+9}, v{S+8}, v{S+9}
v_add_u32 v{S+10}, v{S+9}, v{S+10}
v_add_u32 v{S+11}, v{S+10}, v{S+11}
v_mov_b32 v{S+13}, v{S+11}
""")
        wave_scan(e, S + 13)
        e(f"""
v_sub_u32 v{S+4}, v{S+13}, v{S+11}
v_add_u32 v{S+5}, v{S+4}, v{S+8}
v_add_u32 v{S+6}, v{S+4}, v{S+9}
v_add_u32 v{S+7}, v{S+4}, v{S+10}
ds_write_b128 v{VL16}, v[{S+4}:{S+7}] offset:{L_P}
""")
        for k in range(4):
            e(f"v_add_u32 v{S+k}, v{S+k}, v{S+4+k}\nv_lshrrev_b32 v{S+8+k}, 2, v{S+4+k}\nv_lshl_or_b32 v{S+k}, v{S+k}, 14, v{S+8+k}")
        e(f"""
ds_write_b128 v{VL16}, v[{S}:{S+3}] offset:{L_Q}
LF_noscan:
s_waitcnt lgkmcnt(0)
s_barrier
s_setprio 0
""")
        for h in range(2):
            for k in range(10 * h, 10 * h + 10):
                e(f"ds_read_b32 v{HA+k}, v{HA+k} offset:{L_P}")
            for k in range(10 * h, 10 * h + 10):
                e(f"s_waitcnt lgkmcnt({10*h+9-k})\nv_add_u32 v{HA+k}, v{HA+k}, v{RK+k}\nv_lshrrev_b32 v{RK+k}, 1, v{HA+k}")
        for k in range(NE):
            if k % 4 == 0:
                e(f"s_waitcnt vmcnt({2*NP - 2 - k//2})")
            e(f"""
v_lshl_or_b32 v{KJ+k}, v{KJ+k}, 8, v{U+k}
ds_write_b32 v{HA+k}, v{KJ+k} offset:{PS}
ds_write_b16{'_d16_hi' if k & 1 else ''} v{RK+k}, v{TH+k//2} offset:{PS+T_OFF}
""")
        e("s_lshl_b32 s86, s86, 16")
        for k in range(2):
            r, d = VR + k, VD + k
            e(f"""
v_lshlrev_b32 v{d}, 16, v{d}
v_mul_f32 v{S+8}, s86, v{d}
v_cvt_pk_bf16_f32 v{S+8}, v{S+8}, v{S+8}
v_lshlrev_b32 v{S+8}, 16, v{S+8}
v_mul_f32 v{r}, {hex(C_HI)}, v{S+8}
v_fract_f32 v{r}, v{r}
v_fmac_f32 v{r}, {hex(C_LO)}, v{S+8}
v_sin_f32 v{r}, v{r}
v_rcp_f32 v{d}, v{d}
v_cvt_pk_bf16_f32 v{r}, v{r}, v{r}
v_lshlrev_b32 v{r}, 16, v{r}
v_mul_f32 v{r}, v{r}, v{d}
v_cvt_pk_bf16_f32 v{r}, v{r}, v{r}
buffer_store_short v{r}, v{(3, VE2)[k]}, s[92:95], 0 offen sc1
buffer_store_short v{r}, v{(3, VE2)[k]}, s[96:99], 0 offen sc1
""")
        e(f"""
LF_nonce:
s_cmp_lg_u32 s3, 0
s_cbranch_scc1 LF_haven
LF_noncepoll:
v_readfirstlane_b32 s4, v{VN}
s_cmp_lg_u32 s4, 0
s_cbranch_scc1 LF_gotn
s_sub_u32 s34, s34, 1
s_cbranch_scc1 LM_end
s_sleep 2
buffer_load_dword v{VN}, v{VN}, s[60:63], 0 offen sc1
s_waitcnt vmcnt(0)
s_branch LF_noncepoll
LF_gotn:
v_mov_b32 v{S}, 0
ds_write_b32 v{S}, v{VN} offset:{L_N+32}
LF_haven:
v_add_u32 v2, 32768, v1
v_mov_b32 v{S}, 0
s_waitcnt lgkmcnt(0)
s_barrier
ds_read_b32 v{X+27}, v{S} offset:{L_N+32}
s_cmp_ge_u32 s2, {NWG}
s_cbranch_scc1 LF_cons
""")
        if not o["ss"]:
            stamp(e, o, VAB)
        for j in range(8):
            e(f"ds_read_b128 v[{4+4*j}:{7+4*j}], v{1 if j < 4 else 2} offset:{PS+(j%4)*8192}")
        e(f"ds_read_b32 v{S}, v{X+1} offset:{L_Q}\nv_add_u32 v3, 57344, v1")
        for j in range(8):
            e(f"s_waitcnt lgkmcnt({8-j})")
            if j < 4:
                e(f"buffer_store_dwordx4 v[{4+4*j}:{7+4*j}], v1, s[88:91], {so16[j]} offen {o['rec_st']}")
            elif j < 7:
                e(f"buffer_store_dwordx4 v[{4+4*j}:{7+4*j}], v2, s[88:91], {so16[j-4]} offen {o['rec_st']}")
            else:
                e(f"buffer_store_dwordx4 v[{4+4*j}:{7+4*j}], v3, s[88:91], 0 offen {o['rec_st']}")
        e(f"""
v_lshrrev_b32 v{S+2}, 7, v{X+1}
v_bfe_u32 v{S+3}, v{X+1}, 2, 5
v_lshl_add_u32 v{S+2}, v{S+3}, 3, v{S+2}
s_lshl_b32 s4, s2, 3
v_lshl_add_u32 v{S+2}, v{S+2}, 11, s4
s_waitcnt lgkmcnt(0)
v_mov_b32 v{S+1}, v{X+27}
s_waitcnt vmcnt(0)
s_barrier
s_cmp_ge_u32 s3, 4
s_cbranch_scc1 LF_cons
buffer_store_dwordx2 v[{S}:{S+1}], v{S+2}, s[12:15], 0 offen sc1
LF_cons:
""")
        if o["ss"]:
            stamp(e, o, VAB)

        def poll():
            e(f"""
buffer_load_dwordx2 v[{X+24}:{X+25}], v{X+6}, s[12:15], 0 offen sc1
s_waitcnt vmcnt(0) lgkmcnt(0)
v_xor_b32 v{X+25}, v{X+25}, v{X+27}
v_and_b32 v{VSE}, v{X+24}, v{X+26}
v_and_b32 v{X+25}, v{X+25}, v{X+26}
v_cmp_ne_u32 s[28:29], 0, v{X+25}
s_or_b32 s28, s28, s29
""")
        e(f"s_mul_i32 s33, s3, {32*TS}\ns_mov_b32 s{S_MODE}, 0")
        poll()
        for i in range(8):
            e(f"""
LF_wait{i}:
s_and_b32 s4, s28, {hex(0x10001 << i)}
s_cbranch_scc0 LF_go{i}
s_sub_u32 s34, s34, 1
s_cbranch_scc1 LM_end
s_sleep 1
""")
            poll()
            e(f"s_branch LF_wait{i}\nLF_go{i}:")
            seg_loads(i)
        e(f"s_mul_i32 s33, s3, {32*TS}")
        extra_slots()
        e("LM_noextra:")
        self_slots(FS, FS + 2)

    def setexec(m):
        if m == "all":
            e("s_mov_b64 exec, -1")
        elif m == "lo16":
            e("s_mov_b32 exec_lo, s34\ns_mov_b32 exec_hi, 0")
        else:
            e(f"s_mov_b64 exec, s[{m}:{m+1}]")

    def phase1(slots):
        for (m, r, th, hi, a, k, wait) in slots:
            if wait is not None:
                e(f"s_waitcnt vmcnt({wait})")
            setexec(m)
            e(f"""
v_lshrrev_b32 v{a}, {KEY_SHIFT-2}, v{r}
v_and_b32 v{a}, {hex(NW*NBIN*4-4)}, v{a}
ds_add_rtn_u32 v{k}, v{a}, v{VONE} offset:{L_HIST}
""")
        e("s_mov_b64 exec, -1\ns_waitcnt vmcnt(0) lgkmcnt(0)\ns_barrier")

    def phase2(slots, side=(), lead=4):
        ops = []
        n = len(slots)
        side = list(side)
        for s in range(n + lead):
            if s < n:
                m, r, th, hi, a, k, _ = slots[s]
                setexec(m)
                e(f"ds_read_b32 v{a}, v{a} offset:{L_HIST}")
                ops.append(("A", s))
            if side and s % 2 == 1:
                e("s_mov_b64 exec, -1")
                e(side.pop(0))
            if s >= lead:
                m, r, th, hi, a, k, _ = slots[s - lead]
                younger = len(ops) - 1 - ops.index(("A", s - lead))
                assert younger <= 15
                setexec(m)
                e(f"""
s_waitcnt lgkmcnt({younger})
v_add_u32 v{a}, v{a}, v{k}
ds_write_b32 v{a}, v{r} offset:{L_REC - 2*CBIAS}
v_lshrrev_b32 v{k}, 1, v{a}
ds_write_b16{"_d16_hi" if hi else ""} v{k}, v{th} offset:{L_TH - CBIAS}
""")
                ops += [("W", s - lead), ("T", s - lead)]
        e("s_mov_b64 exec, -1")
        for x in side:
            e(x)

    def scan_exchange(flagged):
        e(f"s_lshl_b32 s4, s3, 9\nv_mov_b32 v{X+7}, {NBIN-1}")
        for k in range(2):
            e(f"""
v_lshl_add_u32 v{X+4+k}, v{VLANE}, 1, {k}
{f"v_add_u32 v{X+k}, s{S_BASE}, v{X+4+k}" if flagged else f"v_mov_b32 v{X+k}, v{X+4+k}"}
v_subrev_u32 v{X+6}, {NCH}, v{X+k}
v_cmp_gt_u32 vcc, {NCH}, v{X+4+k}
v_min_u32 v{X+k}, v{X+k}, v{X+6}
s_nop 0
v_cndmask_b32 v{X+k}, v{X+7}, v{X+k}, vcc
v_lshl_add_u32 v{X+k}, v{X+k}, 2, s4
ds_read_b32 v{X+2+k}, v{X+k} offset:{L_HIST}
""")
        e(f"""
s_mul_i32 s5, s3, {LCAP*4}
s_add_u32 s5, s5, {2*CBIAS}
s_waitcnt lgkmcnt(0)
v_add_u32 v{X+3}, v{X+2}, v{X+3}
v_mov_b32 v{X+6}, v{X+3}
""")
        wave_scan(e, X + 6)
        e(f"""
v_sub_u32 v{X+3}, v{X+6}, v{X+3}
v_readlane_b32 s{S_N}, v{X+6}, 63
v_add_u32 v{X+3}, s5, v{X+3}
v_add_u32 v{X+2}, v{X+3}, v{X+2}
s_lshr_b32 s{S_N}, s{S_N}, 2
s_mov_b32 s6, s{S_N}
""")
        if flagged:
            e(f"""
s_max_u32 s6, s6, {TARGET}
s_sub_u32 s7, s6, s{S_N}
s_mul_i32 s7, s7, {M_STRETCH}
v_mul_u32_u24 v{X+4}, s7, v{X+4}
v_mul_u32_u24 v{X+5}, s7, v{X+5}
v_lshrrev_b32 v{X+4}, 16, v{X+4}
v_lshrrev_b32 v{X+5}, 16, v{X+5}
v_lshl_add_u32 v{X+3}, v{X+4}, 2, v{X+3}
v_lshl_add_u32 v{X+2}, v{X+5}, 2, v{X+2}
s_cmp_lg_u32 s{S_MODE}, 0
s_cselect_b32 s6, 0x7fffffff, s6
""")
        e(f"""
ds_write_b32 v{X}, v{X+3} offset:{L_HIST}
ds_write_b32 v{X+1}, v{X+2} offset:{L_HIST}
s_lshl_b32 s4, s3, 2
v_mov_b32 v{X+4}, s4
v_mov_b32 v{X+5}, s6
ds_write_b32 v{X+4}, v{X+5} offset:{L_N}
v_mov_b32 v{X+6}, 0
s_waitcnt lgkmcnt(0)
s_barrier
ds_read_b128 v[{X}:{X+3}], v{X+6} offset:{L_N}
ds_read_b128 v[{X+8}:{X+11}], v{X+6} offset:{L_N+16}
s_waitcnt lgkmcnt(0)
v_max3_u32 v{X}, v{X}, v{X+1}, v{X+2}
v_max3_u32 v{X+3}, v{X+3}, v{X+8}, v{X+9}
v_max3_u32 v{X}, v{X}, v{X+10}, v{X+11}
v_max_u32 v{X}, v{X}, v{X+3}
s_nop 0
v_readfirstlane_b32 s{S_NIT}, v{X}
""")

    fast = [("all", FS, FS + 2, 0, FA, FK, None), ("lo16", FS + 1, FS + 2, 0, FA + 1, FK + 1, None)]
    for i in range(8):
        for j in range(4):
            n = len(fast)
            fast.append((SM + 8 * i + 2 * j, FR + 4 * i + j, FT + 2 * i + j // 2, j & 1, FA + n, FK + n, 15 - 2 * i if j == 0 else None))
    fast += [(12, FX, FX + 1, 0, FA + 34, FK + 34, 0 if o["fused"] else None), (14, FX + 2, FX + 3, 0, FA + 35, FK + 35, None)]
    if not o["ss"] and not o["fused"]:
        stamp(e, o, VAB)
    phase1(fast)
    if not o["fused"]:
        w_merge()
    stamp(e, o, VNXT if o["ss"] else VCUR)
    scan_exchange(True)
    if not o["ss"]:
        stamp(e, o, VNXT)
    e(f"""
s_cmp_gt_u32 s{S_NIT}, {LCAP}
s_cbranch_scc1 LM_slow
s_mul_i32 s6, s{S_BASE}, {CH_ROWS*2}
s_mul_i32 s4, s3, {RPW}
s_add_u32 s6, s6, s4
s_add_u32 s7, s4, {L_RING}
""")
    side = [f"""
s_mov_b32 m0, s7
s_add_u32 s7, s7, {RPC*2}
buffer_load_dwordx4 v{VL16}, s[20:23], s6 offen lds
s_add_u32 s6, s6, {RPC*2}
"""] * (RH0 // RPC)
    side += [pfop] * o["pf2"]
    phase2(fast, side)

    e(f"""
LM_tail:
s_load_dwordx2 s[12:13], s[0:1], 72
s_add_u32 s{S_NIT}, s{S_NIT}, {G-1}
s_and_b32 s{S_NIT}, s{S_NIT}, {-G}
s_mul_i32 s5, s3, {LCAP*4}
s_mul_i32 s{S_R0}, s{S_BASE}, {CH_ROWS}
s_cmp_lg_u32 s{S_MODE}, 0
s_cselect_b32 s{S_R0}, 0, s{S_R0}
s_cselect_b32 s{S_SPAN}, 0, {RROWS - 64 - RPC}
s_mov_b32 s{S_LO}, {RH0 + RPC + 64 - RROWS}
s_mov_b32 s{S_OFF}, {(2 * (RH0 + RPC) + 128) % RBYTES}
s_mov_b32 s{S_SEL}, 0x0c040c00
s_mul_i32 s4, s3, {RPW}
s_add_u32 s{S_DLIM}, s4, {L_RING + RBYTES}
s_add_u32 s{S_DDST}, s4, {L_RING + 2 * RH0}
s_lshl_b32 s{S_DSRC}, s{S_R0}, 1
s_add_u32 s{S_DSRC}, s{S_DSRC}, s4
s_add_u32 s{S_DSRC}, s{S_DSRC}, {2 * RH0}
s_lshl_b32 s{S_PF}, s2, 3
s_add_u32 s{S_PF}, s{S_PF}, s3
s_mul_i32 s{S_PF}, s{S_PF}, {SPW}
s_add_u32 s{S_PF}, s{S_PF}, {o["spf"] * 256}
{f"s_sub_u32 s{S_PF}, s{S_TOT}, {32*8192}" if o["pf3"] else ""}
{f"s_cmp_lg_u32 s{S_MODE}, 0" if o["pf3"] else ""}
{f"s_cselect_b32 s{S_PF}, 0, s{S_PF}" if o["pf3"] else ""}
v_lshlrev_b32 v{VL16}, 4, v{VLANE}
v_and_b32 v{X}, 15, v{VLANE}
v_lshrrev_b32 v{X+1}, 4, v{VLANE}
v_lshl_add_u32 v{X}, v{X}, 2, v{X+1}
s_lshr_b32 s6, s5, 1
s_add_u32 s5, s5, {L_REC}
s_add_u32 s6, s6, {L_TH}
v_lshl_add_u32 v{VRA}, v{X}, 2, s5
v_lshl_add_u32 v{VTA}, v{X}, 1, s6
s_lshl_b32 s4, s3, 10
s_add_u32 s4, s4, {L_STG}
v_lshl_add_u32 v{VSW}, v{X}, 3, s4
v_bfe_u32 v{X}, v{VLANE}, 3, 2
v_bfe_u32 v{X+1}, v{VLANE}, 1, 1
v_lshl_add_u32 v{X}, v{X}, 1, v{X+1}
v_lshl_add_u32 v{X}, v{X}, 3, s4
s_lshl_b32 s{S_OUT}, s2, 5
s_lshl_b32 s4, s3, 2
s_add_u32 s{S_OUT}, s{S_OUT}, s4
s_lshl_b32 s{S_OUT}, s{S_OUT}, 8
s_mov_b32 s14, {E*256}
s_mov_b32 s15, 0x20000
s_waitcnt vmcnt({o["pf2"]}) lgkmcnt(0)
s_barrier
""")

    if o["stamps"]:
        for k, r in enumerate((VAA, VAB, VCUR, VNXT)):
            e(f"v_readfirstlane_b32 s{92+k}, v{r}")
        stamp(e, o, VAA)
        e(f"s_nop 0\nv_readfirstlane_b32 s96, v{VAA}\ns_mov_b32 s97, 0")
        if o["cyc"]:
            e("s_memtime s[98:99]\ns_waitcnt lgkmcnt(0)")

    def readA(b):
        e(f"ds_read_b64 v[{A}:{A+1}], v{VAA} offset:{b*64}\nds_read_b64 v[{A+2}:{A+3}], v{VAB} offset:{b*64}")

    def filt():
        if "m" not in o["drop"]:
            e(f"v_mfma_f32_32x32x16_bf16 v[{FILT}:{FILT+15}], v[{A}:{A+3}], v[{W}:{W+3}], 0")

    def loads(rb, lane):
        for i, t in enumerate((VT0, VT1)):
            e(f"v_or_b32_dpp v{t}, v{VCLEAN}, v{VQ} row_newbcast:{lane+i} row_mask:0xf bank_mask:0xf")
            e(f"buffer_load_dwordx4 v[{ROW+rb*8+4*i}:{ROW+rb*8+4*i+3}], v{t}, s[8:11], 0 offen {o['row_ld']}")

    def next_records(off):
        e(f"ds_read_b32 v{VNXT}, v{VRA} offset:{off*4}\nds_read_u16 v{VTH}, v{VTA} offset:{off*2}")

    def pack():
        e(f"""
v_mov_b32_dpp v{VPK}, v{VNXT} row_shl:1 row_mask:0xf bank_mask:0xf
v_perm_b32 v{VPK}, v{VPK}, v{VNXT}, s{S_SEL}
v_or_b32 v{VPK}, 0xc000c000, v{VPK}
""")

    def lookup():
        e(f"""
v_bfe_u32 v{VT0}, v{VNXT}, 8, 18
v_subrev_u32 v{VT0}, s{S_R0}, v{VT0}
v_add_u32 v{VT1}, {E}, v{VT0}
v_min_u32 v{VT0}, v{VT0}, v{VT1}
v_subrev_u32 v{VT0}, s{S_LO}, v{VT0}
v_lshl_add_u32 v{VT1}, v{VT0}, 1, s{S_OFF}
v_cmp_le_u32 s[{S_OOW}:{S_OOW+1}], s{S_SPAN}, v{VT0}
v_subrev_u32 v{VT0}, {RBYTES}, v{VT1}
v_min_u32 v{VT1}, v{VT0}, v{VT1}
v_cmp_le_i32 vcc, {hex(F_SELF)}, v{VNXT}
ds_read_u16 v{VRAD}, v{VT1} offset:{L_RING}
s_and_b64 s[{S_OOW}:{S_OOW+1}], s[{S_OOW}:{S_OOW+1}], vcc
""")

    def fallback(label, wait=True):
        e(f"""
s_cmp_eq_u64 s[{S_OOW}:{S_OOW+1}], 0
s_cbranch_scc1 {label}
s_waitcnt lgkmcnt(0)
s_mov_b64 exec, s[{S_OOW}:{S_OOW+1}]
v_bfe_u32 v{VRAD}, v{VNXT}, 8, 18
v_lshlrev_b32 v{VRAD}, 1, v{VRAD}
buffer_load_ushort v{VRAD}, v{VRAD}, s[20:23], 0 offen
s_mov_b64 exec, -1
{"s_waitcnt vmcnt(0)" if wait else ""}
{"s_add_u32 s97, s97, 1" if o["stamps"] and not o["cyc"] else ""}
{label}:
""")

    def ring_dma():
        e(f"s_mov_b32 m0, s{S_DDST}\ns_add_u32 s{S_DDST}, s{S_DDST}, {RPC*2}")
        e(f"buffer_load_dwordx4 v{VL16}, s[20:23], s{S_DSRC} offen lds")

    def ring_advance():
        e(f"""
s_cmp_ge_u32 s{S_DDST}, s{S_DLIM}
s_cselect_b32 s4, {RBYTES}, 0
s_sub_u32 s{S_DDST}, s{S_DDST}, s4
s_add_u32 s{S_DSRC}, s{S_DSRC}, {RPC*2}
""")

    def window_advance():
        e(f"""
s_add_u32 s{S_LO}, s{S_LO}, {2*RPC}
s_add_u32 s{S_OFF}, s{S_OFF}, {4*RPC}
s_cmp_ge_u32 s{S_OFF}, {RBYTES}
s_cselect_b32 s4, {RBYTES}, 0
s_sub_u32 s{S_OFF}, s{S_OFF}, s4
""")

    J = (VTH, VSE, VLANE)
    t = UNP

    jl = o["jl"]

    def jit_angles():
        if jl >= 3:
            e(f"""
v_lshlrev_b32 v{J[0]}, 16, v{VTH}
v_mul_f32 v{t}, 0x40400000, v{J[0]}
v_cvt_pk_bf16_f32 v{t}, v{t}, v{t}
v_and_b32 v{J[2]}, 0xffff0000, v{t}
""")
            return
        e(f"""
v_lshlrev_b32 v{VTH}, 16, v{VTH}
v_mul_f32 v{t}, s{SE0}, v{VTH}
v_mul_f32 v{t+1}, s{SE1}, v{VTH}
v_mul_f32 v{t+2}, s{SE2}, v{VTH}
v_cvt_pk_bf16_f32 v{t+1}, v{t}, v{t+1}
v_cvt_pk_bf16_f32 v{t+2}, v{t+2}, v{t+2}
v_lshlrev_b32 v{J[0]}, 16, v{t+1}
v_and_b32 v{J[1]}, 0xffff0000, v{t+1}
v_and_b32 v{J[2]}, 0xffff0000, v{t+2}
""")

    KS = (0, 2) if jl >= 3 else (0, 1, 2)

    def jit_reduce():
        if jl >= 1:
            for k in KS:
                e(f"v_mul_f32 v{J[k]}, 0.15915494, v{J[k]}")
            for k in KS:
                e(f"v_fract_f32 v{J[k]}, v{J[k]}")
            return
        for k in KS:
            e(f"v_mul_f32 v{t+k}, {hex(C_HI)}, v{J[k]}")
        for k in KS:
            e(f"v_fract_f32 v{t+k}, v{t+k}")
        for k in KS:
            e(f"v_fmamk_f32 v{J[k]}, v{J[k]}, {hex(C_LO)}, v{t+k}")

    def jit_cos():
        for k in KS:
            e(f"v_cos_f32 v{J[k]}, v{J[k]}")
        if jl >= 3:
            e(f"v_add_f32 v{J[1]}, v{J[0]}, v{J[0]}\nv_fma_f32 v{J[1]}, v{J[1]}, v{J[0]}, -1.0")
        if jl < 2:
            e(f"""
s_nop 0
v_cvt_pk_bf16_f32 v{J[1]}, v{J[0]}, v{J[1]}
v_cvt_pk_bf16_f32 v{J[2]}, v{J[2]}, v{J[2]}
""")

    def jit_store():
        e(f"""
v_lshlrev_b32 v{VRAD}, 16, v{VRAD}
v_ashrrev_i32 v{t+3}, 31, v{VNXT}
v_bfe_i32 v{t+4}, v{VNXT}, 30, 1
v_bfi_b32 v{t+3}, v{t+3}, 0, v{VRAD}
v_and_b32 v{t+4}, v{t+4}, v{VRAD}
""")
        if jl < 2:
            e(f"""
v_lshlrev_b32 v{J[0]}, 16, v{J[1]}
v_and_b32 v{J[1]}, 0xffff0000, v{J[1]}
v_and_b32 v{J[2]}, 0xffff0000, v{J[2]}
""")
        e(f"""
v_mul_f32 v{t}, v{J[0]}, v{t+3}
v_mul_f32 v{t+1}, v{J[1]}, v{t+3}
v_mul_f32 v{t+2}, v{J[2]}, v{t+3}
v_cvt_pk_bf16_f32 v{t}, v{t}, v{t+1}
v_cvt_pk_bf16_f32 v{t+1}, v{t+2}, v{t+4}
ds_write_b64 v{VSW}, v[{t}:{t+1}]
v_xor_b32 v{VSW}, 512, v{VSW}
""")

    NBS = 2 * NB

    def lanes(b):
        for g in range(4):
            e(f"v_readlane_b32 s{SI+g}, v{VPK}, {16*g+2*b}")

    def ahead():
        e(f"s_add_u32 s{S_PF}, s{S_PF}, {32*8192}\ns_mov_b32 m0, {L_TRASH}\nv_add_u32 v{VT0}, s{S_PF}, v{VL16}")
        e(f"buffer_load_dwordx4 v{VT0}, s[8:11], 0 offen lds")

    def batch(b, steady, pf=False):
        rb = b % NB
        last = rb == NB - 1
        if steady:
            cnt = 2 * NB - 2 if rb in (0, NB - 1) else 2 * NB - 1
            if o["spf"] and 1 <= b <= NB:
                cnt += 1
            if pf:
                cnt += NB - 1 if rb == NB - 1 else NB
        else:
            cnt = 2 * (NB - 1 - rb)
        e(f"s_waitcnt vmcnt({cnt})")
        for i in range(2):
            for u in range(2):
                d = UNP + 8 * i + 4 * u
                if "u" not in o["drop"]:
                    e(f"v_mfma_f32_16x16x32_bf16 v[{d}:{d+3}], v[{AU+4*u}:{AU+4*u+3}], v[{ROW+rb*8+4*i}:{ROW+rb*8+4*i+3}], 0")
        if o["prio"] == 2:
            e("s_setprio 1")
        if o["prio"] == 3:
            e("s_setprio 0")
        if steady and rb == 0 and "d" not in o["drop"]:
            ring_dma()
        if steady and "l" not in o["drop"]:
            loads(rb, 2 * ((b + NB) % NBS))
            if pf:
                ahead()
            if o["spf"] and b == 0:
                e(f"""
s_mov_b32 m0, {L_TRASH}
v_add_u32 v{VT0}, s{S_PF}, v{VL16}
buffer_load_dwordx4 v{VT0}, s[8:11], 0 offen lds
s_add_u32 s{S_PF}, s{S_PF}, {NBK * NW * SPW}
""")
        else:
            e("s_nop 3")
        for j in range(8):
            if j == 0:
                e(f"s_set_gpr_idx_on s{SI}, gpr_idx(SRC2,DST)")
            elif "i" in o["drop"]:
                pass
            elif j < 4:
                e(f"s_mov_b32 m0, s{SI+j}")
            else:
                e(f"s_lshr_b32 m0, s{SI+j-4}, 16")
            if "f" in o["drop"]:
                pass
            elif o["acc"] == "pk":
                e(f"v_pk_fma_f32 v[{ACC}:{ACC+1}], v[{UNP+2*j}:{UNP+2*j+1}], v[{FILT+2*j}:{FILT+2*j+1}], v[{ACC}:{ACC+1}]")
            else:
                e(f"v_fmac_f32 v{ACC}, v{UNP+2*j}, v{FILT+2*j}\nv_fmac_f32 v{ACC+1}, v{UNP+2*j+1}, v{FILT+2*j+1}")
        e("s_set_gpr_idx_off")
        if o["prio"] == 2:
            e("s_setprio 0")
        if o["prio"] == 3:
            e("s_setprio 1")
        if not steady and last:
            return
        e("s_waitcnt lgkmcnt(0)")
        filt()
        if steady and b == NBS - 2:
            e(f"v_xor_b32 v{VAA}, 512, v{VAA}\nv_xor_b32 v{VAB}, 512, v{VAB}")
        if steady or rb < NB - 2:
            readA((b + 2) % NBS)
        if steady and b == NBS - 1:
            pack()
            e(f"v_add_u32 v{VRA}, {SG*4}, v{VRA}\nv_add_u32 v{VTA}, {SG*2}, v{VTA}")
            next_records(SG)
        lanes((b + 1) % NBS)
        if not steady:
            return
        if rb == 0:
            ring_advance()
        if b == 0:
            lookup()
            window_advance()
            fallback("LM_inwinP" if pf else "LM_inwin", wait=False)
        if b == NB - 1:
            e(f"v_and_b32 v{VCLEAN}, {hex(ROWMASK)}, v{VNXT}")
        if not o["nojit"]:
            piece = {1: jit_angles, 2: jit_reduce, 3: jit_cos, 4: jit_store}.get(b)
            if b == NB:
                e(f"s_waitcnt vmcnt({2*NB+1 + (NB if pf else 0)})")
            if piece:
                piece()

    next_records(0)
    e(f"""
v_cndmask_b32 v{VAA}, 0, v{X}, s[{MA}:{MA+1}]
v_cndmask_b32 v{VAB}, 0, v{X}, s[{MB}:{MB+1}]
s_waitcnt lgkmcnt(0)
v_and_b32 v{VCLEAN}, {hex(ROWMASK)}, v{VNXT}
""")
    lookup()
    for b in range(NB):
        loads(b, 2 * b)
        if o["pf3"]:
            ahead()
    pack()
    e("s_waitcnt lgkmcnt(0)")
    fallback("LM_inwin0")
    jit_angles()
    jit_reduce()
    jit_cos()
    jit_store()
    readA(0)
    e("s_waitcnt lgkmcnt(0)")
    filt()
    next_records(SG)
    readA(1)
    e(f"s_cmp_lg_u32 s{S_MODE}, 0\ns_cbranch_scc1 LM_keepacc")
    for i in range(2 * DPW):
        e(f"v_mov_b32 v{ACC+i}, 0")
    e("LM_keepacc:")
    if o["prio"] == 1:
        e("s_cmp_lt_u32 s3, 4\ns_cbranch_scc1 LM_prio\ns_setprio 1\nLM_prio:")
    lanes(0)
    e(f"s_cmp_le_u32 s{S_NIT}, {G}\ns_cbranch_scc1 LM_drainA")
    bar = "" if o["nobar"] else "s_barrier"
    if o["pf3"]:
        e(f"s_mov_b32 s{S_PFN}, {o['pf3']}\nLM_loopP:")
        for b in range(NB):
            batch(b, True, True)
        e(f"s_sub_u32 s{S_NIT}, s{S_NIT}, {G}\n{bar}\ns_cmp_le_u32 s{S_NIT}, {G}\ns_cbranch_scc1 LM_drainB")
        for b in range(NB, NBS):
            batch(b, True, True)
        e(f"""
s_sub_u32 s{S_NIT}, s{S_NIT}, {G}
{bar}
s_cmp_le_u32 s{S_NIT}, {G}
s_cbranch_scc1 LM_drainA
s_sub_u32 s{S_PFN}, s{S_PFN}, 1
s_cmp_lg_u32 s{S_PFN}, 0
s_cbranch_scc1 LM_loopP
""")
    e(".p2align 6\nLM_loop:")
    for b in range(NB):
        batch(b, True)
    e(f"""
s_sub_u32 s{S_NIT}, s{S_NIT}, {G}
{'' if o['nomid'] else bar}
s_cmp_le_u32 s{S_NIT}, {G}
s_cbranch_scc1 LM_drainB
""")
    for b in range(NB, NBS):
        batch(b, True)
    e(f"""
s_sub_u32 s{S_NIT}, s{S_NIT}, {G}
{bar}
s_cmp_gt_u32 s{S_NIT}, {G}
s_cbranch_scc1 LM_loop
LM_drainA:
""")
    for b in range(NB):
        batch(b, False)
    e("s_branch LM_drained\nLM_drainB:")
    for b in range(NB, NBS):
        batch(b, False)
    e(f"LM_drained:\nv_lshrrev_b32 v{VLANE}, 4, v{VL16}")
    e(f"""
s_waitcnt lgkmcnt(0)
s_cmp_eq_u32 s{S_MODE}, 0
s_cbranch_scc1 LM_out
s_add_u32 s{S_BASE}, s{S_BASE}, {RMAX}
s_cmp_lt_u32 s{S_BASE}, s{S_TOT}
s_cbranch_scc1 LM_round
LM_out:
""")
    if o["cyc"]:
        e("s_memtime s[6:7]\ns_waitcnt lgkmcnt(0)\ns_sub_u32 s97, s6, s98")
    stamp(e, o, VAA)
    for k in range(DPW // 16):
        y0 = (UNP, ROW, ROW + 16)[k % 3]
        for i in range(4):
            for j in range(4):
                a = ACC + 32 * k + 8 * i + 2 * j
                e(f"v_cvt_pk_bf16_f32 v{y0+4*i+j}, v{a}, v{a+1}")
        for i in range(4):
            y = y0 + 4 * i
            e(f"v_permlane16_swap_b32 v{y}, v{y+1}\nv_permlane16_swap_b32 v{y+2}, v{y+3}")
        for i in range(4):
            y = y0 + 4 * i
            if 4 * k + i == DPW // 4 - 1:
                e(f"s_cmp_ge_u32 s2, {FULL_BK}\ns_cbranch_scc1 LM_stored")
            e(f"""
v_permlane32_swap_b32 v{y}, v{y+2}
v_permlane32_swap_b32 v{y+1}, v{y+3}
buffer_store_dwordx4 v[{y}:{y+3}], v{VL16}, s[12:15], s{S_OUT} offen {o['out_st']}
s_add_u32 s{S_OUT}, s{S_OUT}, {STRIDE_ROWS*256}
""")
    e("LM_stored:")
    if o["stamps"]:
        for k in range(6):
            e(f"v_mov_b32 v{8+k}, s{92+k}")
    stamps_out(e, o, [8, 9, 10, 11, 12, VAA, 13, VAB], 33 << 20, NW)
    e("LM_end:\ns_endpgm")

    e(f"""
LM_slow:
s_mov_b32 s{S_MODE}, 1
s_lshl_b32 s4, s3, 7
v_and_b32 v{X}, 7, v{VLANE}
v_lshrrev_b32 v{X+1}, 4, v{VLANE}
v_lshl_add_u32 v{X}, v{X}, 2, v{X+1}
v_lshl_add_u32 v{X}, v{X}, 2, s4
ds_write_b32 v{X}, v{VSE} offset:{L_SEG}
v_lshlrev_b32 v{X+1}, 4, v{VLANE}
s_waitcnt lgkmcnt(0)
s_barrier
ds_read_b128 v[{X+4}:{X+7}], v{X+1} offset:{L_SEG}
s_waitcnt lgkmcnt(0)
""")
    for k in range(4):
        e(f"""
v_lshrrev_b32 v{X+8+k}, 16, v{X+4+k}
v_and_b32 v{X+4+k}, 0xffff, v{X+4+k}
v_sub_u32 v{X+8+k}, v{X+8+k}, v{X+4+k}
""")
    e(f"""
v_add_u32 v{X+9}, v{X+8}, v{X+9}
v_add_u32 v{X+10}, v{X+9}, v{X+10}
v_add_u32 v{X+11}, v{X+10}, v{X+11}
v_mov_b32 v{X+3}, v{X+11}
""")
    wave_scan(e, X + 3)
    e(f"""
v_sub_u32 v{X+12}, v{X+3}, v{X+11}
v_readlane_b32 s{S_TOT}, v{X+3}, 63
v_add_u32 v{X+13}, v{X+12}, v{X+8}
v_add_u32 v{X+14}, v{X+12}, v{X+9}
v_add_u32 v{X+15}, v{X+12}, v{X+10}
ds_write_b128 v{X+1}, v[{X+12}:{X+15}] offset:{L_P}
""")
    for k in range(4):
        e(f"v_sub_u32 v{X+4+k}, v{X+4+k}, v{X+12+k}")
    e(f"ds_write_b128 v{X+1}, v[{X+4}:{X+7}] offset:{L_Q}")
    for i in range(2 * DPW):
        e(f"v_mov_b32 v{ACC+i}, 0")
    SR = X + 12
    STH = SR + RSLOTS + 2
    SA = STH + RSLOTS + 1
    SK = SA + RSLOTS + 2
    assert SK + RSLOTS + 2 <= ROW + G
    e(f"""
s_mov_b32 s{S_BASE}, 0
LM_round:
s_lshl_b32 s4, s3, 6
v_add_u32 v{X}, s4, v{VLANE}
v_lshlrev_b32 v{X+1}, 2, v{X}
v_mov_b32 v{X+2}, 0
v_mov_b32 v{VONE}, 4
ds_write_b32 v{X+1}, v{X+2} offset:{L_HIST}
ds_write_b32 v{X+1}, v{X+2} offset:{L_HIST+2048}
v_add_u32 v{X}, s{S_BASE}, v{X}
""")
    prefill()
    for j in range(RSLOTS):
        e(f"v_cmp_gt_u32 s[{SM+2*j}:{SM+2*j+1}], s{S_TOT}, v{X}\nv_mov_b32 v{X+3}, 0")
        for st in (128, 64, 32, 16, 8, 4, 2, 1):
            e(f"""
ds_read_b32 v{X+4}, v{X+3} offset:{L_P+4*st}
v_add_u32 v{X+5}, {4*st}, v{X+3}
s_waitcnt lgkmcnt(0)
v_cmp_le_u32 vcc, v{X+4}, v{X}
s_nop 1
v_cndmask_b32 v{X+3}, v{X+3}, v{X+5}, vcc
""")
        e(f"""
ds_read_b32 v{X+4}, v{X+3} offset:{L_Q}
v_mul_u32_u24 v{X+3}, {TS//4}, v{X+3}
s_waitcnt lgkmcnt(0)
v_add_u32 v{X+4}, v{X+4}, v{X}
v_lshl_add_u32 v{X+5}, v{X+4}, 2, v{X+3}
v_lshl_add_u32 v{X+4}, v{X+4}, 1, v{X+3}
v_add_u32 v{X+4}, {T_OFF}, v{X+4}
s_mov_b64 exec, s[{SM+2*j}:{SM+2*j+1}]
buffer_load_dword v{SR+j}, v{X+5}, s[16:19], 0 offen
buffer_load_ushort v{STH+j}, v{X+4}, s[16:19], 0 offen
s_mov_b64 exec, -1
v_add_u32 v{X}, 512, v{X}
""")
    self_slots(SR + RSLOTS, STH + RSLOTS)
    m0 = SM + 2 * RSLOTS
    e(f"""
s_cmp_eq_u32 s{S_BASE}, 0
s_cselect_b64 s[{m0}:{m0+1}], -1, 0
s_cselect_b32 s{m0+2}, s34, 0
s_mov_b32 s{m0+3}, 0
s_waitcnt vmcnt(0) lgkmcnt(0)
s_barrier
""")
    slow = [(SM + 2 * j, SR + j, STH + min(j, RSLOTS), 0, SA + j, SK + j, None) for j in range(RSLOTS + 2)]
    phase1(slow)
    scan_exchange(False)
    phase2(slow)
    e("s_branch LM_tail")
    return e.text()


def gen_pf(o):
    e = Asm()
    fl = "" if o["pre"] == "pf" else o["pre"]
    e(f"""
dn_pf_kernel:
s_cmp_ge_u32 s2, {NWG}
s_cbranch_scc1 LF_end
s_load_dwordx2 s[4:5], s[0:1], {o["presrc"]}
v_lshlrev_b32 v1, 4, v0
s_waitcnt lgkmcnt(0)
""")
    srd(e, 8, 4, 5, E * 256, o["preoff"] << 20)
    e("s_mul_i32 s4, s2, 16384")
    for i in range(10):
        e(f"buffer_load_dwordx4 v[{8+4*i}:{11+4*i}], v1, s[8:11], s4 offen {fl}\ns_add_u32 s4, s4, {250*16384}")
    e("s_waitcnt vmcnt(0)\nLF_end:\ns_endpgm")
    return e.text()


HEADER = """; DimeNet angular message passing on gfx950.
"""


def kd(name, vgpr):
    return f""".p2align 6
.amdhsa_kernel {name}
  .amdhsa_next_free_vgpr {vgpr}
  .amdhsa_next_free_sgpr 102
  .amdhsa_accum_offset {vgpr}
  .amdhsa_group_segment_fixed_size 0
  .amdhsa_kernarg_size 96
  .amdhsa_user_sgpr_count 2
  .amdhsa_user_sgpr_kernarg_segment_ptr 1
  .amdhsa_system_sgpr_workgroup_id_x 1
  .amdhsa_float_denorm_mode_32 3
.end_amdhsa_kernel
"""


def generate(**kw):
    o = dict(DEFAULTS)
    o.update(kw)
    s = HEADER
    if o["fused"]:
        s += f"; @launch grid=({NBK},1,1) block=(512,1,1) lds={L_LDS}\n"
        s += '.amdgcn_target "amdgcn-amd-amdhsa--gfx950"\n.text\n'
        s += f".globl {MAIN}\n.p2align 8\n.type {MAIN},@function\n{gen_main(o)}"
        return s + '.section .rodata,"a"\n' + kd(MAIN, 256)
    if o["pre"]:
        s += f"; @launch kernel=dn_pf_kernel grid=({NWG},1,1) block=(1024,1,1) lds=0\n"
    s += f"; @launch kernel={PART} grid=({NWG},1,1) block=(1024,1,1) lds={P_LDS}\n"
    s += f"; @launch kernel={MAIN} grid=({NBK},1,1) block=(512,1,1) lds={L_LDS}\n"
    for _ in range(o["post"]):
        s += f"; @launch kernel=dn_nop_kernel grid=({NWG},1,1) block=(64,1,1) lds=0\n"
    s += '.amdgcn_target "amdgcn-amd-amdhsa--gfx950"\n.text\n'
    extra = []
    if o["pre"]:
        extra.append(("dn_pf_kernel", gen_pf(o)))
    if o["post"]:
        extra.append(("dn_nop_kernel", "dn_nop_kernel:\n    s_endpgm\n"))
    for name, body in [(PART, gen_part(o)), (MAIN, gen_main(o))] + extra:
        s += f".globl {name}\n.p2align 8\n.type {name},@function\n{body}"
    s += '.section .rodata,"a"\n' + kd(PART, 104) + kd(MAIN, 256)
    for name, _ in extra:
        s += kd(name, 64)
    return s


if __name__ == "__main__":
    out = sys.argv[1]
    kw = {}
    for a in sys.argv[2:]:
        k, v = a.split("=", 1)
        kw[k] = int(v) if v.lstrip("-").isdigit() else v.replace("_", " ")
    open(out, "w").write(generate(**kw))
```

```python
import math
import os
import struct
import sys

MAIN = "standalone__molecular_angular_dimenet__graph_kernel"
PART = "dn_part_kernel"

E, T = 160000, 2560000
NWG = int(os.environ.get('NWG', 250))
NBK = 256
TILE = T // NWG
PT = TILE // 10
NW = 8
DPW = 80
CH_SHIFT = 11
CH_ROWS = 1 << CH_SHIFT
NCH = 160000 // CH_ROWS + 1
NBIN = 128
NB = 4
G = NB * 8
STRIDE_ROWS = NBK * NW * 4
FULL_BK = (E - (DPW // 4 - 1) * STRIDE_ROWS) // 32

TCAP = -(-(TILE + 256) // 64) * 64
T_OFF = TCAP * 4
TS = TCAP * 6
WS_REC = 0
WS_OFF = NWG * TS
WS_RAD = WS_OFF + 256 * 2048

P_HIST, P_OFF, P_REC = 0, 1024, 2048
P_LDS = P_REC + 4 * 16384

SG = 2 * G
RPC = int(os.environ.get('RPC', 3520))
RROWS = 9 * RPC
RBYTES = RROWS * 2
RPW = RPC * 2 // NW
RH0 = 7 * RPC
LCAP = 1664
L_ZERO = 0
L_STG = 1024
L_HIST = L_STG + NW * 1024
L_N = L_HIST + NW * NBIN * 4
L_SEG = L_N + 64
L_P = L_SEG + 1024
L_Q = L_P + 1024
L_RING = L_Q + 1024
L_TH = L_RING + RBYTES + 128
L_REC = L_TH + NW * LCAP * 2
L_TRASH = L_REC + NW * LCAP * 4
L_LDS = L_TRASH + 1024
SPW = 896
CBIAS = 24576
RSLOTS = 3
RMAX = RSLOTS * 512
RAD_BYTES = 2 * (E + RH0 + (LCAP // G + 1) * RPC)
assert RMAX + DPW <= LCAP and LCAP % SG == 0 and L_LDS <= 163840 and L_REC % 16 == 0 and L_RING % 16 == 0
assert L_TH % 16 == 0 and RPW % 16 == 0 and L_RING < 65536
assert 0 <= L_REC - 2 * CBIAS < 65536 and 0 <= L_TH - CBIAS < 65536

F_SELF = 0xC0000000
F_DUMMY = 0x80000000
ROWMASK = 0x03FFFF00
DUMMY_REC = F_DUMMY | ROWMASK
assert TS % 128 == 0 and TS <= 4 * 16384 and E % 32 == 0
KEY_SHIFT = 8 + CH_SHIFT
M_STRETCH = (CH_ROWS << 16) // E
REG_CH = 7
REG_ROWS = REG_CH * CH_ROWS
M_REG = -(-(1 << 32) // REG_ROWS)
assert all((k * M_REG) >> 32 == k // REG_ROWS for k in range(E)) and M_REG < (1 << 24)
assert all((c * 37) >> 8 == c // REG_CH for c in range(NCH))


def f2u(x):
    return struct.unpack("<I", struct.pack("<f", x))[0]


def u2f(u):
    return struct.unpack("<f", struct.pack("<I", u))[0]


INV2PI = 1.0 / (2.0 * math.pi)
C_HI = f2u(INV2PI) & 0xFFFFFF00
C_LO = f2u(INV2PI - u2f(C_HI))

DEFAULTS = dict(pf1=0, pf1s=0, pf1pos=2, pf1e=0, fused=0, tmo=65536, touch=0, slp=1, early=0, fji=2, dyn=1, pf2=8, pf3=0, pf0=0, ulate=0, aux_st="sc1", diagdelay=0, ss=0, spf=0, nomid=0, jl=1, order=0, prio=2, acc="pk", drop="", cyc=0, hz=0, nojit=0, nobar=0, dummyrow=0, nodma=0, target=1440, conv=0, shallow=0, rot=10, rotsh=0, jifirst=1, pre="", presrc=0, preoff=0, post=0, in_flags="nt", rec_st="sc1", seg_ld="", row_ld="", out_st="sc1", stamps=0)


class Asm:
    def __init__(self):
        self.l = []

    def __call__(self, s):
        for line in s.strip("\n").split("\n"):
            line = line.strip()
            if not line:
                continue
            if line.endswith(":") or line.startswith("."):
                self.l.append(line)
            else:
                self.l.append("    " + line)

    def text(self):
        return "\n".join(self.l) + "\n"


def srd(e, d, lo, hi, nbytes, add=None):
    if add is None:
        e(f"s_mov_b32 s{d}, s{lo}\ns_mov_b32 s{d+1}, s{hi}")
    else:
        e(f"s_add_u32 s{d}, s{lo}, {add}\ns_addc_u32 s{d+1}, s{hi}, 0")
    e(f"s_mov_b32 s{d+2}, {nbytes}\ns_mov_b32 s{d+3}, 0x20000")


def wave_scan(e, v):
    for ctl in ("row_shr:1 row_mask:0xf", "row_shr:2 row_mask:0xf", "row_shr:4 row_mask:0xf",
                "row_shr:8 row_mask:0xf", "row_bcast:15 row_mask:0xa", "row_bcast:31 row_mask:0xc"):
        e(f"s_nop 1\nv_add_u32_dpp v{v}, v{v}, v{v} {ctl} bank_mask:0xf")


def stamp(e, o, v):
    if o["stamps"]:
        e(f"s_memrealtime vcc\ns_waitcnt lgkmcnt(0)\nv_mov_b32 v{v}, vcc_lo")


def stamps_out(e, o, regs, region, nwaves):
    if not o["stamps"]:
        return
    e("s_waitcnt vmcnt(0)")
    stamp(e, o, regs[-1])
    e("s_load_dwordx2 s[4:5], s[0:1], 88\ns_waitcnt lgkmcnt(0)")
    srd(e, 12, 4, 5, NBK * nwaves * 32, region)
    srd(e, 16, 4, 5, 64, 32 << 20)
    e(f"s_mul_i32 s4, s2, {nwaves}\ns_add_u32 s4, s4, s3\ns_lshl_b32 s4, s4, 5\nv_mov_b32 v0, s4")
    for k, r in enumerate(regs):
        e(f"buffer_store_dword v{r}, v0, s[12:15], 0 offen offset:{4*k}")
    if o["stamps"] == 2 and nwaves == NW:
        e(f"""
s_load_dwordx2 s[6:7], s[0:1], 80
v_mov_b32 v0, 0
s_or_b32 s4, s2, s3
s_cmp_lg_u32 s4, 0
s_cbranch_scc1 LM_end
s_lshr_b32 s4, s2, 2
s_waitcnt vmcnt(0) lgkmcnt(0)
""")
        srd(e, 20, 6, 7, 256)
        e("buffer_load_dword v1, v0, s[16:19], 0 offen sc0 sc1")
        e("buffer_load_dwordx4 v[20:23], v0, s[16:19], 0 offen offset:4 sc0 sc1\ns_waitcnt vmcnt(0)\ns_mov_b64 exec, 1")
        for k, r in enumerate(list(regs) + [20, 21, 22, 23]):
            e(f"v_sub_u32 v{r}, v{r}, v1\nbuffer_store_dword v{r}, v0, s[20:23], 0 offen offset:{4*k}")


def gen_part(o):
    e = Asm()
    fl = o["in_flags"]
    JI, KJ, TH = 4, 16, 28
    VD = 33
    U, REM, HA, RK = 36, 46, 56, 66
    S = 76
    PFD = 92
    ST = 96
    e(f"""
{PART}:
s_cmp_ge_u32 s2, {NWG}
s_cbranch_scc1 LP_end
s_load_dwordx8 s[12:19], s[0:1], 8
s_load_dwordx2 s[20:21], s[0:1], 40
s_load_dwordx2 s[22:23], s[0:1], 88
s_load_dwordx2 s[26:27], s[0:1], 0
""")
    stamp(e, o, ST)
    e(f"""
v_lshlrev_b32 v1, 4, v0
v_lshlrev_b32 v2, 3, v0
v_lshlrev_b32 v3, 2, v0
v_lshlrev_b32 v34, 1, v0
v_mov_b32 v35, 0
ds_write_b32 v3, v35
v_lshrrev_b32 v35, 6, v0
s_mul_i32 s4, s2, {TILE*4}
s_mul_i32 s5, s2, {TILE*2}
s_mul_i32 s6, s2, {TS}
v_readfirstlane_b32 s3, v35
s_mul_i32 s7, s2, {E//NWG*2}
s_lshl_b32 s8, s2, 10
s_mov_b32 s9, {PT*16}
s_mov_b32 s10, {PT*32}
s_mov_b32 s11, {PT*8}
v_cmp_gt_u32 vcc, {PT}, v0
s_waitcnt lgkmcnt(0)
s_load_dword s24, s[20:21], 0
""")
    srd(e, 28, 18, 19, TILE * 4, "s4")
    e(f"""
s_mov_b64 exec, vcc
buffer_load_dwordx4 v[{JI}:{JI+3}], v1, s[28:31], 0 offen {fl}
buffer_load_dwordx4 v[{JI+4}:{JI+7}], v1, s[28:31], s9 offen {fl}
buffer_load_dwordx2 v[{JI+8}:{JI+9}], v2, s[28:31], s10 offen {fl}
""")
    srd(e, 32, 16, 17, TILE * 4, "s4")
    srd(e, 36, 14, 15, TILE * 2, "s5")
    srd(e, 48, 12, 13, E // NWG * 2, "s7")

    def rest_loads():
        e(f"""
buffer_load_ushort v{VD}, v34, s[48:51], 0 offen
buffer_load_dwordx4 v[{KJ}:{KJ+3}], v1, s[32:35], 0 offen {fl}
buffer_load_dwordx2 v[{TH}:{TH+1}], v2, s[36:39], 0 offen {fl}
buffer_load_dwordx4 v[{KJ+4}:{KJ+7}], v1, s[32:35], s9 offen {fl}
buffer_load_dwordx2 v[{TH+2}:{TH+3}], v2, s[36:39], s11 offen {fl}
buffer_load_dwordx2 v[{KJ+8}:{KJ+9}], v2, s[32:35], s10 offen {fl}
buffer_load_dword v{TH+4}, v3, s[36:39], s9 offen {fl}
""")
    if not o["jifirst"]:
        rest_loads()
    npf = o["pf1"]

    def prefetch(start, n):
        srd(e, 56, 26, 27, E * 256)
        e(f"s_lshl_b32 s60, s2, 14\ns_add_u32 s60, s60, {start * NWG * 16384}")
        for i in range(n):
            e(f"buffer_load_dwordx4 v[{PFD}:{PFD+3}], v1, s[56:59], s60 offen\ns_add_u32 s60, s60, {NWG*16384}")
    srd(e, 40, 22, 23, TS, "s6")
    e(f"s_add_u32 s8, s8, {WS_OFF}")
    srd(e, 44, 22, 23, NBK * 4, "s8")
    e(f"s_add_u32 s7, s7, {WS_RAD}")
    srd(e, 52, 22, 23, E // NWG * 2, "s7")
    e(f"s_add_u32 s7, s7, {E*2}")
    srd(e, 64, 22, 23, E // NWG * 2, "s7")
    e(f"""
s_mov_b32 s25, 0x380
s_mov_b32 s61, 0xf8
v_mov_b32 v35, 4
s_barrier
""")
    if o["jifirst"]:
        e(f"s_waitcnt vmcnt({o['jifirst'] - 1})")
        rest_loads()
    for k in range(10):
        if k in (0, 4, 8):
            e(f"s_waitcnt vmcnt({9 - k // 4})")
        e(f"""
v_lshlrev_b32 v{U+k}, 2, v{JI+k}
v_lshrrev_b32 v{HA+k}, 6, v{JI+k}
v_bfi_b32 v{HA+k}, s25, v{U+k}, v{HA+k}
v_and_b32 v{HA+k}, 0x3fc, v{HA+k}
ds_add_rtn_u32 v{RK+k}, v{HA+k}, v35 offset:{P_HIST}
""")
    def low_bits():
        for k in range(10):
            e(f"""
v_lshl_add_u32 v{U+k}, v{JI+k}, 23, v{JI+k}
v_lshrrev_b32 v{JI+k}, 10, v{JI+k}
v_add_u32 v{U+k}, v{U+k}, v{U+k}
v_and_b32 v{U+k}, 0x1c000006, v{U+k}
v_and_or_b32 v{U+k}, v{JI+k}, s61, v{U+k}
""")
    if not o["ulate"]:
        low_bits()
    e("s_waitcnt lgkmcnt(0)\ns_barrier")
    stamp(e, o, ST + 1)
    e(f"""
v_and_b32 v{S+12}, 63, v0
v_lshlrev_b32 v{S+12}, 4, v{S+12}
s_cmp_lg_u32 s3, 0
s_cbranch_scc1 LP_noscan
s_setprio 3
ds_read_b128 v[{S}:{S+3}], v{S+12} offset:{P_HIST}
s_waitcnt lgkmcnt(0)
""")
    for k in range(4):
        e(f"v_add_u32 v{S+8+k}, 4, v{S+k}\nv_and_b32 v{S+8+k}, -8, v{S+8+k}")
    e(f"""
v_add_u32 v{S+9}, v{S+8}, v{S+9}
v_add_u32 v{S+10}, v{S+9}, v{S+10}
v_add_u32 v{S+11}, v{S+10}, v{S+11}
v_mov_b32 v{S+13}, v{S+11}
""")
    wave_scan(e, S + 13)
    e(f"""
v_sub_u32 v{S+4}, v{S+13}, v{S+11}
v_add_u32 v{S+5}, v{S+4}, v{S+8}
v_add_u32 v{S+6}, v{S+4}, v{S+9}
v_add_u32 v{S+7}, v{S+4}, v{S+10}
ds_write_b128 v{S+12}, v[{S+4}:{S+7}] offset:{P_OFF}
""")
    for k in range(4):
        e(f"v_add_u32 v{S+k}, v{S+k}, v{S+4+k}\nv_lshrrev_b32 v{S+4+k}, 2, v{S+4+k}\nv_lshl_or_b32 v{S+k}, v{S+k}, 14, v{S+4+k}")
    if o["ulate"]:
        e("s_waitcnt lgkmcnt(0)\ns_barrier\ns_setprio 0")
        low_bits()
        e("s_branch LP_offs\nLP_noscan:")
        low_bits()
        e("s_barrier\nLP_offs:")
    else:
        e("LP_noscan:\ns_waitcnt lgkmcnt(0)\ns_barrier\ns_setprio 0")
    for k in range(10):
        e(f"ds_read_b32 v{HA+k}, v{HA+k} offset:{P_OFF}")
    for k in range(10):
        e(f"s_waitcnt lgkmcnt({9-k})\nv_add_u32 v{HA+k}, v{HA+k}, v{RK+k}\nv_lshrrev_b32 v{RK+k}, 1, v{HA+k}")
    stamp(e, o, ST + 2)
    for k in range(10):
        if k in (0, 4, 8):
            e(f"s_waitcnt vmcnt({4 - k // 2})")
        e(f"""
v_lshl_or_b32 v{KJ+k}, v{KJ+k}, 8, v{U+k}
ds_write_b32 v{HA+k}, v{KJ+k} offset:{P_REC}
ds_write_b16{'_d16_hi' if k & 1 else ''} v{RK+k}, v{TH+k//2} offset:{P_REC+T_OFF}
""")
    e(f"""
s_lshl_b32 s24, s24, 16
v_lshlrev_b32 v{VD}, 16, v{VD}
v_mul_f32 v{S+8}, s24, v{VD}
v_cvt_pk_bf16_f32 v{S+8}, v{S+8}, v{S+8}
v_lshlrev_b32 v{S+8}, 16, v{S+8}
v_mul_f32 v{S+9}, {hex(C_HI)}, v{S+8}
v_fract_f32 v{S+9}, v{S+9}
v_fmac_f32 v{S+9}, {hex(C_LO)}, v{S+8}
v_sin_f32 v{S+9}, v{S+9}
v_rcp_f32 v{VD}, v{VD}
v_cvt_pk_bf16_f32 v{S+9}, v{S+9}, v{S+9}
v_lshlrev_b32 v{S+9}, 16, v{S+9}
v_mul_f32 v{S+9}, v{S+9}, v{VD}
v_cvt_pk_bf16_f32 v{S+9}, v{S+9}, v{S+9}
""")
    if npf:
        prefetch(o["pf1s"], npf)
    e(f"""
buffer_store_short v{S+9}, v34, s[52:55], 0 offen {o['aux_st']}
buffer_store_short v{S+9}, v34, s[64:67], 0 offen {o['aux_st']}
s_cmp_lg_u32 s3, 0
s_cbranch_scc1 LP_nooff
""")
    e(f"""
buffer_store_dwordx4 v[{S}:{S+3}], v{S+12}, s[44:47], 0 offen {o['aux_st']}
LP_nooff:
s_mov_b64 exec, -1
v_add_u32 v2, 16384, v1
v_add_u32 v3, 32768, v1
v_add_u32 v34, 49152, v1
s_waitcnt lgkmcnt(0)
s_barrier
""")
    stamp(e, o, ST + 3)
    for j in range(4):
        e(f"ds_read_b128 v[{4+4*j}:{7+4*j}], v1 offset:{P_REC+j*16384}")
    for j, a in enumerate((1, 2, 3, 34)):
        e(f"s_waitcnt lgkmcnt({3-j})")
        e(f"buffer_store_dwordx4 v[{4+4*j}:{7+4*j}], v{a}, s[40:43], 0 offen {o['rec_st']}")
    for _ in range(o["diagdelay"]):
        e("s_sleep 32")
    if o["pf1e"]:
        prefetch(o["pf1s"] + npf, o["pf1e"])
    stamps_out(e, o, [ST, ST + 1, ST + 2, ST + 3, ST + 4], 32 << 20, 16)
    e("LP_end:\ns_endpgm")
    return e.text()


def gen_main(o):
    assert o["pf0"] + o["pf2"] <= 15
    conv = o["conv"]
    assert not conv or (REG_ROWS == 4 * RPC and not o["fused"] and not o["pf3"] and not o["spf"])
    e = Asm()
    TARGET = o["target"]
    ACC, ROW = 0, 160
    FILT = ROW + G
    UNP = FILT + 16
    A = UNP + 16
    W = A + 4
    AU = W + 4
    (VPK, VNXT, VCLEAN, VTA, VTH, VRAD, VRA, VL16, VAA, VAB, VQ, VT0, VT1, VSW, VLANE, VSE) = range(AU + 8, AU + 24)
    VCUR = VPK
    assert VSE <= 255
    SI = 36
    SM = 36
    X = ROW
    VONE = VRAD
    SE0, SE1, SE2 = 30, 31, 32
    S_NIT, S_N, S_MODE = 28, 29, 35
    S_TOT, S_BASE = 100, 101
    MA, MB = 24, 26
    S_R0, S_OFF, S_SEL, S_LO, S_SPAN, S_DSRC, S_DDST, S_DLIM, S_OOW, S_PF = 44, 45, 46, 47, 48, 49, 50, 51, 52, 54
    S_OUT, S_PFN, S_K, S_DEFF, S_RR = 55, 56, 57, 58, 59

    if not o["fused"]:
        e(f"""
{MAIN}:
s_cmp_ge_u32 s2, {NBK}
s_cbranch_scc1 LM_end
s_load_dwordx2 s[4:5], s[0:1], 0
s_load_dwordx2 s[6:7], s[0:1], 88
s_load_dwordx4 s[40:43], s[0:1], 56
s_load_dwordx2 s[44:45], s[0:1], 48
""")
        stamp(e, o, VAA)
        e(f"""
v_lshrrev_b32 v{X}, 6, v0
v_and_b32 v{VLANE}, 63, v0
v_lshlrev_b32 v{X+1}, 2, v0
v_readfirstlane_b32 s3, v{X}
v_mov_b32 v{X+2}, 0
ds_write_b32 v{X+1}, v{X+2} offset:{L_HIST}
ds_write_b32 v{X+1}, v{X+2} offset:{L_HIST+2048}
ds_write_b32 v{X+1}, v{X+2} offset:{L_ZERO}
s_and_b32 s33, s2, 7
s_lshr_b32 s34, s2, 3
s_lshl_b32 s{S_TOT}, s34, 13
""")
        if conv:
            e(f"""
s_lshl_b32 s28, s33, 1
s_lshl_b32 s28, 13, s28
s_lshr_b32 s29, s28, 2
s_cmp_ge_u32 s33, 1
s_cselect_b32 s{S_BASE}, s29, 0
s_lshl_b32 s28, s28, 14
s_cmp_le_u32 s33, 2
s_cselect_b32 s28, s28, 0
s_or_b32 s{S_BASE}, s{S_BASE}, s28
""")
        else:
            e(f"s_lshr_b32 s{S_BASE}, s33, {o['rotsh']}\ns_mul_i32 s{S_BASE}, s{S_BASE}, {o['rot']}")
        e(f"""
s_lshl_b32 s33, s33, 5
s_add_u32 s34, s34, s33
v_and_b32 v{X+3}, 15, v{VLANE}
v_lshlrev_b32 v{VQ}, 4, v{X+3}
v_lshrrev_b32 v{X+4}, 5, v{VLANE}
v_lshrrev_b32 v{X+11}, 4, v{VLANE}
v_and_b32 v{X+5}, 7, v{VLANE}
v_lshl_add_u32 v{X+5}, v{X+5}, 2, v{X+11}
s_lshl_b32 s33, s3, 15
s_lshl_b32 s34, s34, 2
s_add_u32 s33, s33, s34
v_lshl_add_u32 v{X+6}, v{X+5}, 10, s33
s_waitcnt lgkmcnt(0)
""")
        srd(e, 24, 6, 7, NWG * 1024, WS_OFF)
        e(f"buffer_load_dword v{VSE}, v{X+6}, s[24:27], 0 offen")
        srd(e, 8, 4, 5, o["hz"] if o["hz"] else E * 256)
        srd(e, 16, 6, 7, NWG * TS)
        srd(e, 20, 6, 7, RAD_BYTES, WS_RAD)
        e(f"""
v_lshlrev_b32 v{VL16}, 4, v{VLANE}
{f"s_and_b32 s5, s{S_BASE}, 1" if conv else ""}
s_mul_i32 s5, {"s5" if conv else f"s{S_BASE}"}, {(REG_ROWS if conv else CH_ROWS)*256}
s_lshl_b32 s4, s3, 10
s_add_u32 s4, s4, s5
s_add_u32 s{S_TOT}, s4, s{S_TOT}
""")
    else:
        e(f"""
{MAIN}:
s_cmp_ge_u32 s2, {NBK}
s_cbranch_scc1 LM_end
s_load_dwordx8 s[68:75], s[0:1], 8
s_load_dwordx2 s[4:5], s[0:1], 0
s_load_dwordx4 s[76:79], s[0:1], 72
s_load_dwordx2 s[6:7], s[0:1], 88
s_load_dwordx4 s[40:43], s[0:1], 56
s_load_dwordx4 s[44:47], s[0:1], 40
""")
        stamp(e, o, VAA)
        e(f"""
v_lshrrev_b32 v{X}, 6, v0
v_and_b32 v{VLANE}, 63, v0
v_lshlrev_b32 v{X+1}, 2, v0
v_readfirstlane_b32 s3, v{X}
v_lshlrev_b32 v1, 4, v0
v_lshlrev_b32 v2, 3, v0
v_lshlrev_b32 v3, 1, v0
v_mov_b32 v{X+2}, 0
ds_write_b32 v{X+1}, v{X+2} offset:{L_SEG}
ds_write_b32 v{X+1}, v{X+2} offset:{L_HIST}
ds_write_b32 v{X+1}, v{X+2} offset:{L_HIST+2048}
ds_write_b32 v{X+1}, v{X+2} offset:{L_ZERO}
s_and_b32 s33, s2, 7
s_lshr_b32 s34, s2, 3
s_lshl_b32 s{S_TOT}, s34, 13
s_lshr_b32 s{S_BASE}, s33, {o["rotsh"]}
s_mul_i32 s{S_BASE}, s{S_BASE}, {o["rot"]}
v_and_b32 v{X+3}, 15, v{VLANE}
v_lshlrev_b32 v{VQ}, 4, v{X+3}
v_lshrrev_b32 v{X+4}, 5, v{VLANE}
v_lshrrev_b32 v{X+11}, 4, v{VLANE}
v_and_b32 v{X+5}, 7, v{VLANE}
v_lshl_add_u32 v{X+5}, v{X+5}, 2, v{X+11}
s_lshl_b32 s33, s3, 5
v_add_u32 v{X+5}, s33, v{X+5}
s_lshl_b32 s33, s2, 11
v_lshl_add_u32 v{X+6}, v{X+5}, 3, s33
v_subrev_u32 v{X+26}, {NWG}, v{X+5}
v_ashrrev_i32 v{X+26}, 31, v{X+26}
v_lshlrev_b32 v{VL16}, 4, v{VLANE}
s_mul_i32 s33, s{S_BASE}, {CH_ROWS*256}
s_lshl_b32 s34, s3, 10
s_add_u32 s33, s33, s34
s_add_u32 s{S_TOT}, s33, s{S_TOT}
s_waitcnt lgkmcnt(0)
s_mov_b64 s[76:77], s[44:45]
s_mov_b64 s[44:45], s[46:47]
""")
        srd(e, 8, 4, 5, o["hz"] if o["hz"] else E * 256)
        srd(e, 16, 6, 7, NWG * TS)
        srd(e, 20, 6, 7, RAD_BYTES, WS_RAD)
    pfop = f"buffer_load_dwordx4 v[{X+24}:{X+27}], v{VL16}, s[8:11], s{S_TOT} offen\ns_add_u32 s{S_TOT}, s{S_TOT}, {32*8192}"

    def prefill():
        for base, per, val in ((L_REC, LCAP * 4, F_DUMMY | ((E - 1) << 8) if o["dummyrow"] else DUMMY_REC), (L_TH, LCAP * 2, 0)):
            e(f"s_mul_i32 s4, s3, {per}\ns_add_u32 s4, s4, {base}\nv_lshl_add_u32 v{VT0}, v{VLANE}, 4, s4")
            r = A if val else UNP
            for k in range(4):
                e(f"v_mov_b32 v{r+k}, {hex(val)}")
            n = per // 1024
            for k in range(n):
                e(f"ds_write_b128 v{VT0}, v[{r}:{r+3}] offset:{1024*k}")
            rest = per % 1024 // 16
            if rest:
                assert rest <= 32
                e(f"s_mov_b64 exec, {hex((1 << rest) - 1) if rest < 32 else '0xffffffff'}")
                if rest == 32:
                    e("s_mov_b32 exec_hi, 0")
                e(f"ds_write_b128 v{VT0}, v[{r}:{r+3}] offset:{1024*n}\ns_mov_b64 exec, -1")
    def self_slots(r0, th):
        e(f"""
s_lshl_b32 s33, s2, 5
s_lshl_b32 s34, s3, 2
s_add_u32 s33, s33, s34
s_lshl_b32 s34, s3, 26
s_or_b32 s34, s34, {hex(F_SELF)}
v_mov_b32 v{th}, 0
""")
        for k in range(2):
            e(f"""
v_add_u32 v{VT0}, {64*k}, v{VLANE}
v_lshrrev_b32 v{VT1}, 2, v{VT0}
v_mul_u32_u24 v{VT1}, {STRIDE_ROWS}, v{VT1}
v_and_b32 v{r0+k}, 3, v{VT0}
v_add3_u32 v{VT1}, v{VT1}, v{r0+k}, s33
v_lshl_or_b32 v{r0+k}, v{VT1}, 7, v{VT0}
v_lshlrev_b32 v{r0+k}, 1, v{r0+k}
v_or_b32 v{r0+k}, s34, v{r0+k}
""")
        e(f"s_cmp_lt_u32 s2, {FULL_BK}\ns_cselect_b32 s34, 16, 12\ns_bfm_b32 s34, s34, 0")
    FR, FT, FX, FS, FA, FK = 0, 32, 48, 52, 56, 92

    def w_loads():
        e(f"s_load_dwordx2 s[{SE0}:{SE0+1}], s[44:45], 0")
        srd(e, 12, 40, 41, 768)
        srd(e, 36, 42, 43, 256)
        e(f"""
v_bfe_u32 v{X+7}, v{VLANE}, 4, 1
v_lshl_add_u32 v{X+7}, v{X+7}, 1, v{X+4}
v_lshl_add_u32 v{X+7}, v{X+7}, 1, v{VQ}
buffer_load_ushort v{W}, v{X+7}, s[12:15], 0 offen
buffer_load_ushort v{FILT}, v{X+7}, s[12:15], 0 offen offset:256
buffer_load_ushort v{W+1}, v{X+7}, s[12:15], 0 offen offset:512
buffer_load_ushort v{FILT+1}, v{X+7}, s[36:39], 0 offen
buffer_load_ushort v{W+2}, v{X+7}, s[12:15], 0 offen offset:8
buffer_load_ushort v{FILT+2}, v{X+7}, s[12:15], 0 offen offset:264
buffer_load_ushort v{W+3}, v{X+7}, s[12:15], 0 offen offset:520
buffer_load_ushort v{FILT+3}, v{X+7}, s[36:39], 0 offen offset:8
""")

    def sweep_consts():
        e(f"""
v_and_b32 v{X+8}, 1, v{VLANE}
v_cmp_eq_u32 s[4:5], v{X+8}, v{X+4}
v_bfe_u32 v{X+9}, v{VLANE}, 2, 1
v_cmp_eq_u32 vcc, 0, v{X+9}
s_and_b64 s[{MA}:{MA+1}], s[4:5], vcc
s_andn2_b64 s[{MB}:{MB+1}], s[4:5], vcc
v_bfe_u32 v{X+10}, v{VLANE}, 1, 1
v_lshlrev_b32 v{X+8}, 4, v{X+8}
v_mov_b32 v{X+12}, 0x3f80
v_lshlrev_b32 v{X+8}, v{X+8}, v{X+12}
v_sub_u32 v{X+12}, v{X+11}, v{X+10}
v_bfe_u32 v{X+13}, v{VLANE}, 2, 2
v_lshl_add_u32 v{X+13}, v{X+12}, 2, v{X+13}
""")
        for u in range(2):
            for r in range(4):
                e(f"v_cmp_eq_u32 vcc, {8*u+r}, v{X+13}\ns_nop 1\nv_cndmask_b32 v{AU+4*u+r}, 0, v{X+8}, vcc")

    def extra_slots():
        e(f"""
v_lshrrev_b32 v{X+16}, 16, v{VSE}
v_and_b32 v{X+17}, 0xffff, v{VSE}
v_sub_u32 v{X+16}, v{X+16}, v{X+17}
v_cmp_lt_u32 s[4:5], 64, v{X+16}
s_mov_b64 s[12:13], 0
s_mov_b64 s[14:15], 0
s_and_b32 s4, s4, 0x00ff00ff
s_and_b32 s5, s5, 0x00ff00ff
s_cmp_eq_u64 s[4:5], 0
s_cbranch_scc1 LM_noextra
v_mov_b32 v{X+17}, 128
v_cmp_gt_u32 vcc, v{X+16}, v{X+17}
s_bcnt1_i32_b64 s6, s[4:5]
s_cmp_gt_u32 s6, 2
s_cselect_b32 s{S_MODE}, 1, 0
s_cmp_lg_u64 vcc, 0
s_cselect_b32 s{S_MODE}, 1, s{S_MODE}
""")
        for k in range(2):
            if k:
                e("s_cmp_eq_u64 s[4:5], 0\ns_cbranch_scc1 LM_noextra")
            e(f"""
s_ff1_i32_b64 s6, s[4:5]
s_bitset0_b64 s[4:5], s6
v_readlane_b32 s7, v{VSE}, s6
s_and_b32 s34, s6, 7
s_lshr_b32 s6, s6, 4
s_lshl_b32 s34, s34, 2
s_add_u32 s6, s6, s34
s_mul_i32 s6, s6, {TS}
s_add_u32 s6, s6, s33
s_and_b32 s34, s7, 0xffff
s_lshr_b32 s7, s7, 16
s_add_u32 s34, s34, 64
v_add_u32 v{X+17}, s34, v{VLANE}
v_cmp_gt_u32 s[{12+2*k}:{13+2*k}], s7, v{X+17}
v_lshlrev_b32 v{X+18}, 2, v{X+17}
v_lshlrev_b32 v{X+17}, 1, v{X+17}
v_add_u32 v{X+17}, {T_OFF}, v{X+17}
s_mov_b64 exec, s[{12+2*k}:{13+2*k}]
buffer_load_dword v{FX+2*k}, v{X+18}, s[16:19], s6 offen
buffer_load_ushort v{FX+2*k+1}, v{X+17}, s[16:19], s6 offen
s_mov_b64 exec, -1
""")

    def seg_loads(i, so="s33"):
        t, en, ta = X + 16 + 3 * (i & 1), X + 17 + 3 * (i & 1), X + 18 + 3 * (i & 1)
        m = SM + 8 * i
        e(f"""
v_mov_b32_dpp v{t}, v{VSE} row_newbcast:{i} row_mask:0xf bank_mask:0xf
v_lshrrev_b32 v{en}, 16, v{t}
v_and_b32 v{t}, 0xffff, v{t}
v_add_u32 v{t}, v{t}, v{X+14}
v_sub_u32 v{en}, v{en}, v{t}
v_cmp_lt_i32 s[{m}:{m+1}], 0, v{en}
v_lshl_add_u32 v{ta}, v{t}, 1, v{X+13}
v_lshl_add_u32 v{t}, v{t}, 2, v{X+15}
v_cmp_lt_i32 s[{m+2}:{m+3}], 1, v{en}
v_cmp_lt_i32 s[{m+4}:{m+5}], 2, v{en}
v_cmp_lt_i32 s[{m+6}:{m+7}], 3, v{en}
s_mov_b64 exec, s[{m}:{m+1}]
buffer_load_dwordx4 v[{FR+4*i}:{FR+4*i+3}], v{t}, s[16:19], {so} offen {o['seg_ld']}
buffer_load_dwordx2 v[{FT+2*i}:{FT+2*i+1}], v{ta}, s[16:19], {so} offen {o['seg_ld']}
s_mov_b64 exec, -1
{f"s_add_u32 s33, s33, {4*TS}" if so == "s33" else ""}
""")

    def seg_consts():
        e(f"""
v_lshlrev_b32 v{X+14}, 2, v{X+3}
v_mul_u32_u24 v{X+15}, {TS}, v{X+11}
v_add_u32 v{X+13}, {T_OFF}, v{X+15}
v_mov_b32 v{VONE}, 4
""")

    def ell_consts():
        e(f"""
s_lshl_b32 s{SE2}, s{SE1}, 16
s_and_b32 s{SE1}, s{SE0}, 0xffff0000
s_lshl_b32 s{SE0}, s{SE0}, 16
""")

    def w_merge():
        for i in range(4):
            e(f"v_lshl_or_b32 v{W+i}, v{FILT+i}, 16, v{W+i}")

    def setexec(m):
        if m == "all":
            e("s_mov_b64 exec, -1")
        elif m == "lo16":
            e("s_mov_b32 exec_lo, s34\ns_mov_b32 exec_hi, 0")
        else:
            e(f"s_mov_b64 exec, s[{m}:{m+1}]")

    def phase1(slots, close=True):
        for (m, r, th, hi, a, k, wait) in slots:
            if wait is not None:
                e(f"s_waitcnt vmcnt({wait})")
            setexec(m)
            e(f"""
v_lshrrev_b32 v{a}, {KEY_SHIFT-2}, v{r}
v_and_b32 v{a}, {hex(NW*NBIN*4-4)}, v{a}
ds_add_rtn_u32 v{k}, v{a}, v{VONE} offset:{L_HIST}
""")
        e("s_mov_b64 exec, -1")
        if close:
            e("s_waitcnt vmcnt(0) lgkmcnt(0)\ns_barrier")

    fast = [("all", FS, FS + 2, 0, FA, FK, None), ("lo16", FS + 1, FS + 2, 0, FA + 1, FK + 1, None)]
    for i in range(8):
        for j in range(4):
            n = len(fast)
            fast.append((SM + 8 * i + 2 * j, FR + 4 * i + j, FT + 2 * i + j // 2, j & 1, FA + n, FK + n, 15 - 2 * i if j == 0 else None))
    fast += [(12, FX, FX + 1, 0, FA + 34, FK + 34, 0 if o["fused"] else None), (14, FX + 2, FX + 3, 0, FA + 35, FK + 35, None)]

    if not o["fused"]:
        w_loads()
        if o["pf0"]:
            e("s_barrier")
        for _ in range(o["pf0"]):
            e(pfop)
        prefill()
        seg_consts()
        e(f"s_mul_i32 s33, s3, {32*TS}\ns_mov_b32 s{S_MODE}, 0\ns_waitcnt vmcnt({o['pf0'] + 8})")
        if o["ss"]:
            stamp(e, o, VAB)
        extra_slots()
        e("LM_noextra:")
        for i in range(8):
            seg_loads(i)
        if o["ss"]:
            stamp(e, o, VCUR)
        sweep_consts()
        self_slots(FS, FS + 2)
        e("s_waitcnt lgkmcnt(0)")
        ell_consts()
        e("s_barrier")
    else:
        NE = TILE // 512
        NP = NE // 4
        JI, KJ, TH, VD, U, HA, RK, S = 4, 24, 44, 54, 56, 76, 96, 116
        VN, VFOUR, VR, VE2 = 132, 133, 134, 136
        PS = L_RING
        assert TILE == 512 * NE and NE == 20 and TS <= RBYTES + 128 and PS + T_OFF < 65536
        fl = o["in_flags"]
        so16 = ["0", "s80", "s81", "s82", "s83"]
        so8 = ["0", "s84", "s80", "s85", "s81"]
        srd(e, 60, 78, 79, 4)
        e(f"""
s_load_dword s86, s[76:77], 0
s_mul_i32 s4, s2, {TILE*4}
s_mov_b32 s80, 8192
s_mov_b32 s81, 16384
s_mov_b32 s82, 24576
s_mov_b32 s83, 32768
s_mov_b32 s84, 4096
s_mov_b32 s85, 12288
""")
        srd(e, 48, 74, 75, TILE * 4, "s4")
        w_loads()
        e(f"s_cmp_ge_u32 s2, {NWG}\ns_cbranch_scc1 LF_noji")
        for p in range(NP):
            e(f"buffer_load_dwordx4 v[{JI+4*p}:{JI+4*p+3}], v1, s[48:51], {so16[p]} offen {fl}")
        e(f"""
s_or_b32 s5, s2, s3
s_cmp_lg_u32 s5, 0
s_cbranch_scc1 LF_noji
s_memrealtime s[28:29]
s_waitcnt lgkmcnt(0)
s_or_b32 s28, s28, 1
v_mov_b32 v{S}, s28
v_mov_b32 v{S+1}, 0
s_mov_b64 exec, 1
buffer_store_dword v{S}, v{S+1}, s[60:63], 0 offen sc1
s_mov_b64 exec, -1
LF_noji:
""")
        srd(e, 52, 72, 73, TILE * 4, "s4")
        e(f"s_mul_i32 s5, s2, {TILE*2}")
        srd(e, 56, 70, 71, TILE * 2, "s5")
        e(f"s_mul_i32 s5, s2, {E//NWG*2}")
        srd(e, 64, 68, 69, E // NWG * 2, "s5")
        e(f"s_add_u32 s5, s5, {WS_RAD}")
        srd(e, 92, 16, 17, E // NWG * 2, "s5")
        e(f"s_add_u32 s5, s5, {E*2}")
        srd(e, 96, 16, 17, E // NWG * 2, "s5")
        e(f"s_mul_i32 s5, s2, {TS}")
        srd(e, 88, 16, 17, TS, "s5")
        srd(e, 12, 16, 17, NBK * 2048, WS_OFF)
        if o["touch"]:
            e(f"buffer_load_dwordx2 v[{X+24}:{X+25}], v{X+6}, s[12:15], 0 offen sc1")
        prefill()
        sweep_consts()
        seg_consts()
        e(f"""
v_mov_b32 v{VN}, 0
v_mov_b32 v{VFOUR}, 4
v_add_u32 v{VE2}, 1024, v3
s_mov_b32 s87, 0x380
s_mov_b32 s47, 0xf8
s_mov_b32 s34, {o["tmo"]}
s_waitcnt lgkmcnt(0)
""")
        ell_consts()
        e(f"""
s_barrier
s_cmp_lt_u32 s2, {NWG}
s_cbranch_scc1 LF_prod
s_waitcnt vmcnt(0)
""")
        w_merge()
        e(f"""
s_branch LF_nonce
LF_prod:
s_waitcnt vmcnt({o["fji"]})
buffer_load_ushort v{VD}, v3, s[64:67], 0 offen
buffer_load_ushort v{VD+1}, v{VE2}, s[64:67], 0 offen
""")
        for p in range(NP):
            e(f"buffer_load_dwordx4 v[{KJ+4*p}:{KJ+4*p+3}], v1, s[52:55], {so16[p]} offen {fl}")
            e(f"buffer_load_dwordx2 v[{TH+2*p}:{TH+2*p+1}], v2, s[56:59], {so8[p]} offen {fl}")
        e(f"""
s_cmp_lg_u32 s3, 0
s_cbranch_scc1 LF_nora
buffer_load_dword v{VN}, v{VN}, s[60:63], 0 offen sc1
LF_nora:
""")
        w_merge()
        for k in range(NE):
            if k % 4 == 0:
                e(f"s_waitcnt vmcnt({2*NP + 2 + NP - 1 - k//4})")
            e(f"""
v_lshlrev_b32 v{U+k}, 2, v{JI+k}
v_lshrrev_b32 v{HA+k}, 6, v{JI+k}
v_bfi_b32 v{HA+k}, s87, v{U+k}, v{HA+k}
v_and_b32 v{HA+k}, 0x3fc, v{HA+k}
ds_add_rtn_u32 v{RK+k}, v{HA+k}, v{VFOUR} offset:{L_SEG}
""")
        for k in range(NE):
            e(f"""
v_lshl_add_u32 v{U+k}, v{JI+k}, 23, v{JI+k}
v_lshrrev_b32 v{JI+k}, 10, v{JI+k}
v_add_u32 v{U+k}, v{U+k}, v{U+k}
v_and_b32 v{U+k}, 0x1c000006, v{U+k}
v_and_or_b32 v{U+k}, v{JI+k}, s47, v{U+k}
""")
        e(f"""
s_waitcnt lgkmcnt(0)
s_barrier
s_cmp_lg_u32 s3, 0
s_cbranch_scc1 LF_noscan
s_setprio 3
ds_read_b128 v[{S}:{S+3}], v{VL16} offset:{L_SEG}
s_waitcnt lgkmcnt(0)
""")
        for k in range(4):
            e(f"v_add_u32 v{S+8+k}, 4, v{S+k}\nv_and_b32 v{S+8+k}, -8, v{S+8+k}")
        e(f"""
v_add_u32 v{S+9}, v{S+8}, v{S+9}
v_add_u32 v{S+10}, v{S+9}, v{S+10}
v_add_u32 v{S+11}, v{S+10}, v{S+11}
v_mov_b32 v{S+13}, v{S+11}
""")
        wave_scan(e, S + 13)
        e(f"""
v_sub_u32 v{S+4}, v{S+13}, v{S+11}
v_add_u32 v{S+5}, v{S+4}, v{S+8}
v_add_u32 v{S+6}, v{S+4}, v{S+9}
v_add_u32 v{S+7}, v{S+4}, v{S+10}
ds_write_b128 v{VL16}, v[{S+4}:{S+7}] offset:{L_P}
""")
        for k in range(4):
            e(f"v_add_u32 v{S+k}, v{S+k}, v{S+4+k}\nv_lshrrev_b32 v{S+8+k}, 2, v{S+4+k}\nv_lshl_or_b32 v{S+k}, v{S+k}, 14, v{S+8+k}")
        e(f"""
ds_write_b128 v{VL16}, v[{S}:{S+3}] offset:{L_Q}
LF_noscan:
s_waitcnt lgkmcnt(0)
s_barrier
s_setprio 0
""")
        for h in range(2):
            for k in range(10 * h, 10 * h + 10):
                e(f"ds_read_b32 v{HA+k}, v{HA+k} offset:{L_P}")
            for k in range(10 * h, 10 * h + 10):
                e(f"s_waitcnt lgkmcnt({10*h+9-k})\nv_add_u32 v{HA+k}, v{HA+k}, v{RK+k}\nv_lshrrev_b32 v{RK+k}, 1, v{HA+k}")
        for k in range(NE):
            if k % 4 == 0:
                e(f"s_waitcnt vmcnt({2*NP - 2 - k//2})")
            e(f"""
v_lshl_or_b32 v{KJ+k}, v{KJ+k}, 8, v{U+k}
ds_write_b32 v{HA+k}, v{KJ+k} offset:{PS}
ds_write_b16{'_d16_hi' if k & 1 else ''} v{RK+k}, v{TH+k//2} offset:{PS+T_OFF}
""")
        e("s_lshl_b32 s86, s86, 16")
        for k in range(2):
            r, d = VR + k, VD + k
            e(f"""
v_lshlrev_b32 v{d}, 16, v{d}
v_mul_f32 v{S+8}, s86, v{d}
v_cvt_pk_bf16_f32 v{S+8}, v{S+8}, v{S+8}
v_lshlrev_b32 v{S+8}, 16, v{S+8}
v_mul_f32 v{r}, {hex(C_HI)}, v{S+8}
v_fract_f32 v{r}, v{r}
v_fmac_f32 v{r}, {hex(C_LO)}, v{S+8}
v_sin_f32 v{r}, v{r}
v_rcp_f32 v{d}, v{d}
v_cvt_pk_bf16_f32 v{r}, v{r}, v{r}
v_lshlrev_b32 v{r}, 16, v{r}
v_mul_f32 v{r}, v{r}, v{d}
v_cvt_pk_bf16_f32 v{r}, v{r}, v{r}
buffer_store_short v{r}, v{(3, VE2)[k]}, s[92:95], 0 offen sc1
buffer_store_short v{r}, v{(3, VE2)[k]}, s[96:99], 0 offen sc1
""")
        e(f"""
LF_nonce:
s_cmp_lg_u32 s3, 0
s_cbranch_scc1 LF_haven
LF_noncepoll:
v_readfirstlane_b32 s4, v{VN}
s_cmp_lg_u32 s4, 0
s_cbranch_scc1 LF_gotn
s_sub_u32 s34, s34, 1
s_cbranch_scc1 LM_end
s_sleep 2
buffer_load_dword v{VN}, v{VN}, s[60:63], 0 offen sc1
s_waitcnt vmcnt(0)
s_branch LF_noncepoll
LF_gotn:
v_mov_b32 v{S}, 0
ds_write_b32 v{S}, v{VN} offset:{L_N+32}
LF_haven:
v_add_u32 v2, 32768, v1
v_mov_b32 v{S}, 0
s_waitcnt lgkmcnt(0)
s_barrier
ds_read_b32 v{X+27}, v{S} offset:{L_N+32}
s_cmp_ge_u32 s2, {NWG}
s_cbranch_scc1 LF_cons
""")
        if not o["ss"]:
            stamp(e, o, VAB)
        for j in range(8):
            e(f"ds_read_b128 v[{4+4*j}:{7+4*j}], v{1 if j < 4 else 2} offset:{PS+(j%4)*8192}")
        e(f"ds_read_b32 v{S}, v{X+1} offset:{L_Q}\nv_add_u32 v3, 57344, v1")
        for j in range(8):
            e(f"s_waitcnt lgkmcnt({8-j})")
            if j < 4:
                e(f"buffer_store_dwordx4 v[{4+4*j}:{7+4*j}], v1, s[88:91], {so16[j]} offen {o['rec_st']}")
            elif j < 7:
                e(f"buffer_store_dwordx4 v[{4+4*j}:{7+4*j}], v2, s[88:91], {so16[j-4]} offen {o['rec_st']}")
            else:
                e(f"buffer_store_dwordx4 v[{4+4*j}:{7+4*j}], v3, s[88:91], 0 offen {o['rec_st']}")
        e(f"""
v_lshrrev_b32 v{S+2}, 7, v{X+1}
v_bfe_u32 v{S+3}, v{X+1}, 2, 5
v_lshl_add_u32 v{S+2}, v{S+3}, 3, v{S+2}
s_lshl_b32 s4, s2, 3
v_lshl_add_u32 v{S+2}, v{S+2}, 11, s4
s_waitcnt lgkmcnt(0)
v_mov_b32 v{S+1}, v{X+27}
s_waitcnt vmcnt(0)
s_barrier
s_cmp_ge_u32 s3, 4
s_cbranch_scc1 LF_cons
""")
        if o["early"]:
            e(f"""
buffer_load_dwordx2 v[{X+24}:{X+25}], v{X+6}, s[12:15], 0 offen sc1
buffer_store_dwordx2 v[{S}:{S+1}], v{S+2}, s[12:15], 0 offen sc1
s_waitcnt vmcnt(1)
s_branch LF_polled
""")
        else:
            e(f"buffer_store_dwordx2 v[{S}:{S+1}], v{S+2}, s[12:15], 0 offen sc1")
        e("LF_cons:")
        if o["ss"]:
            stamp(e, o, VAB)

        def poll(label=""):
            e(f"""
buffer_load_dwordx2 v[{X+24}:{X+25}], v{X+6}, s[12:15], 0 offen sc1
s_waitcnt vmcnt(0) lgkmcnt(0)
{label}
v_xor_b32 v{X+25}, v{X+25}, v{X+27}
v_and_b32 v{VSE}, v{X+24}, v{X+26}
v_and_b32 v{X+25}, v{X+25}, v{X+26}
v_cmp_ne_u32 s[28:29], 0, v{X+25}
s_or_b32 s28, s28, s29
""")
        poll("LF_polled:")
        e(f"s_mul_i32 s33, s3, {32*TS}\ns_mov_b32 s{S_MODE}, 0")
        if o["dyn"]:
            e("s_mov_b32 s5, 0xff\ns_mov_b32 s6, 0\nLF_round:\ns_mov_b32 s7, 0\ns_lshr_b32 s29, s28, 16\ns_or_b32 s28, s28, s29\ns_andn2_b32 s28, s5, s28")
            for i in range(8):
                e(f"s_bitcmp1_b32 s28, {i}\ns_cbranch_scc0 LF_nreq{i}\ns_add_u32 s4, s33, {4*TS*i}")
                seg_loads(i, "s4")
                e(f"LF_nreq{i}:")
            e("s_and_b32 s7, s28, 0xff\ns_andn2_b32 s5, s5, s7\nLF_count:")
            for i in range(8):
                e(f"s_bitcmp1_b32 s6, {i}\ns_cbranch_scc0 LF_ncnt{i}")
                phase1([sl[:6] + (None,) for sl in fast[2 + 4 * i:6 + 4 * i]], close=False)
                e(f"LF_ncnt{i}:")
            e(f"""
s_mov_b32 s6, s7
s_mov_b32 s7, 0
s_cmp_lg_u32 s5, 0
s_cbranch_scc1 LF_again
s_cmp_eq_u32 s6, 0
s_cbranch_scc1 LF_counted
s_waitcnt vmcnt(0)
s_branch LF_count
LF_again:
s_sub_u32 s34, s34, 1
s_cbranch_scc1 LM_end
{f"s_sleep {o['slp']}" if o["slp"] else ""}
""")
            poll()
            e("s_branch LF_round\nLF_counted:")
        else:
            for i in range(8):
                e(f"""
LF_wait{i}:
s_and_b32 s4, s28, {hex(0x10001 << i)}
s_cbranch_scc0 LF_go{i}
s_sub_u32 s34, s34, 1
s_cbranch_scc1 LM_end
{f"s_sleep {o['slp']}" if o["slp"] else ""}
""")
                poll()
                e(f"s_branch LF_wait{i}\nLF_go{i}:")
                seg_loads(i)
        if o["ss"]:
            stamp(e, o, VCUR)
            if o["stamps"]:
                e(f"v_mov_b32 v{VCLEAN}, s34")
        e(f"s_mul_i32 s33, s3, {32*TS}")
        extra_slots()
        e("LM_noextra:")
        self_slots(FS, FS + 2)

    def phase2(slots, side=(), lead=4):
        ops = []
        n = len(slots)
        side = list(side)
        for s in range(n + lead):
            if s < n:
                m, r, th, hi, a, k, _ = slots[s]
                setexec(m)
                e(f"ds_read_b32 v{a}, v{a} offset:{L_HIST}")
                ops.append(("A", s))
            if side and s % 2 == 1:
                e("s_mov_b64 exec, -1")
                e(side.pop(0))
            if s >= lead:
                m, r, th, hi, a, k, _ = slots[s - lead]
                younger = len(ops) - 1 - ops.index(("A", s - lead))
                assert younger <= 15
                setexec(m)
                e(f"""
s_waitcnt lgkmcnt({younger})
v_add_u32 v{a}, v{a}, v{k}
ds_write_b32 v{a}, v{r} offset:{L_REC - 2*CBIAS}
v_lshrrev_b32 v{k}, 1, v{a}
ds_write_b16{"_d16_hi" if hi else ""} v{k}, v{th} offset:{L_TH - CBIAS}
""")
                ops += [("W", s - lead), ("T", s - lead)]
        e("s_mov_b64 exec, -1")
        assert not side

    def scan_exchange(flagged):
        e(f"s_lshl_b32 s4, s3, 9\nv_mov_b32 v{X+7}, {NBIN-1}")
        for k in range(2):
            e(f"""
v_lshl_add_u32 v{X+4+k}, v{VLANE}, 1, {k}
""")
            if conv and flagged:
                e(f"""
v_mul_u32_u24 v{X+6}, 37, v{X+4+k}
v_lshrrev_b32 v{X+6}, 7, v{X+6}
v_and_b32 v{X+6}, 62, v{X+6}
v_bfe_i32 v{X+6}, s{S_BASE}, v{X+6}, 2
v_cmp_gt_u32 vcc, {NCH}, v{X+4+k}
v_mad_i32_i24 v{X+k}, v{X+6}, {REG_CH}, v{X+4+k}
s_nop 0
""")
            else:
                e(f"""
{f"v_add_u32 v{X+k}, s{S_BASE}, v{X+4+k}" if flagged else f"v_mov_b32 v{X+k}, v{X+4+k}"}
v_subrev_u32 v{X+6}, {NCH}, v{X+k}
v_cmp_gt_u32 vcc, {NCH}, v{X+4+k}
v_min_u32 v{X+k}, v{X+k}, v{X+6}
s_nop 0
""")
            e(f"""
v_cndmask_b32 v{X+k}, v{X+7}, v{X+k}, vcc
v_lshl_add_u32 v{X+k}, v{X+k}, 2, s4
ds_read_b32 v{X+2+k}, v{X+k} offset:{L_HIST}
""")
        e(f"""
s_mul_i32 s5, s3, {LCAP*4}
s_add_u32 s5, s5, {2*CBIAS}
s_waitcnt lgkmcnt(0)
v_add_u32 v{X+3}, v{X+2}, v{X+3}
v_mov_b32 v{X+6}, v{X+3}
""")
        wave_scan(e, X + 6)
        e(f"""
v_sub_u32 v{X+3}, v{X+6}, v{X+3}
v_readlane_b32 s{S_N}, v{X+6}, 63
v_add_u32 v{X+3}, s5, v{X+3}
v_add_u32 v{X+2}, v{X+3}, v{X+2}
s_lshr_b32 s{S_N}, s{S_N}, 2
s_mov_b32 s6, s{S_N}
""")
        if flagged:
            e(f"""
s_max_u32 s6, s6, {TARGET}
s_sub_u32 s7, s6, s{S_N}
s_mul_i32 s7, s7, {M_STRETCH}
v_mul_u32_u24 v{X+4}, s7, v{X+4}
v_mul_u32_u24 v{X+5}, s7, v{X+5}
v_lshrrev_b32 v{X+4}, 16, v{X+4}
v_lshrrev_b32 v{X+5}, 16, v{X+5}
v_lshl_add_u32 v{X+3}, v{X+4}, 2, v{X+3}
v_lshl_add_u32 v{X+2}, v{X+5}, 2, v{X+2}
s_cmp_lg_u32 s{S_MODE}, 0
s_cselect_b32 s6, 0x7fffffff, s6
""")
        e(f"""
ds_write_b32 v{X}, v{X+3} offset:{L_HIST}
ds_write_b32 v{X+1}, v{X+2} offset:{L_HIST}
s_lshl_b32 s4, s3, 2
v_mov_b32 v{X+4}, s4
v_mov_b32 v{X+5}, s6
ds_write_b32 v{X+4}, v{X+5} offset:{L_N}
v_mov_b32 v{X+6}, 0
s_waitcnt lgkmcnt(0)
s_barrier
ds_read_b128 v[{X}:{X+3}], v{X+6} offset:{L_N}
ds_read_b128 v[{X+8}:{X+11}], v{X+6} offset:{L_N+16}
s_waitcnt lgkmcnt(0)
v_max3_u32 v{X}, v{X}, v{X+1}, v{X+2}
v_max3_u32 v{X+3}, v{X+3}, v{X+8}, v{X+9}
v_max3_u32 v{X}, v{X}, v{X+10}, v{X+11}
v_max_u32 v{X}, v{X}, v{X+3}
s_nop 0
v_readfirstlane_b32 s{S_NIT}, v{X}
""")

    if not o["ss"] and not o["fused"]:
        stamp(e, o, VAB)
    phase1(fast[:2] + fast[34:] if o["fused"] and o["dyn"] else fast)
    if not o["fused"]:
        w_merge()
    stamp(e, o, VNXT if o["ss"] else VCUR)
    scan_exchange(True)
    if not o["ss"]:
        stamp(e, o, VNXT)
    e(f"""
s_cmp_gt_u32 s{S_NIT}, {LCAP}
s_cbranch_scc1 LM_slow
""")
    if conv:
        e(f"""
s_bfe_i32 s6, s{S_BASE}, 0x20000
s_bfe_i32 s33, s{S_BASE}, 0x20002
s_sub_u32 s33, s33, s6
s_mul_i32 s6, s6, {REG_ROWS*2}
s_mul_i32 s33, s33, {REG_ROWS*2}
""")
    else:
        e(f"s_mul_i32 s6, s{S_BASE}, {CH_ROWS*2}")
    e(f"""
s_mul_i32 s4, s3, {RPW}
s_add_u32 s6, s6, s4
s_add_u32 s7, s4, {L_RING}
""")
    side = [f"""
s_mov_b32 exec_hi, {hex((1 << (RPW // 16 - 32)) - 1)}
s_mov_b32 m0, s7
s_add_u32 s7, s7, {RPC*2}
buffer_load_dwordx4 v{VL16}, s[20:23], s6 offen lds
s_add_u32 s6, s6, {RPC*2}
"""] * (RH0 // RPC)
    if conv:
        assert 4 < RH0 // RPC <= 8
        side[3] += "s_add_u32 s6, s6, s33\n"
    side += [pfop] * o["pf2"]
    phase2(fast, side)

    e(f"""
LM_tail:
s_load_dwordx2 s[12:13], s[0:1], 72
s_add_u32 s{S_NIT}, s{S_NIT}, {G-1}
s_and_b32 s{S_NIT}, s{S_NIT}, {-G}
s_mul_i32 s5, s3, {LCAP*4}
{f"s_mov_b32 s{S_R0}, s{S_BASE}" if conv else f"s_mul_i32 s{S_R0}, s{S_BASE}, {CH_ROWS}"}
s_cmp_lg_u32 s{S_MODE}, 0
s_cselect_b32 s{S_R0}, 0, s{S_R0}
s_cselect_b32 s{S_SPAN}, 0, {RROWS - 64 - RPC}
s_mov_b32 s{S_LO}, {RH0 + RPC + 64 - RROWS}
s_mov_b32 s{S_OFF}, {(2 * (RH0 + RPC) + 128) % RBYTES}
s_mov_b32 s{S_SEL}, 0x0c040c00
s_mul_i32 s4, s3, {RPW}
s_add_u32 s{S_DLIM}, s4, {L_RING + RBYTES}
s_add_u32 s{S_DDST}, s4, {L_RING + 2 * RH0}
{f"s_mov_b32 s{S_DSRC}, 0" if conv else f"s_lshl_b32 s{S_DSRC}, s{S_R0}, 1"}
s_add_u32 s{S_DSRC}, s{S_DSRC}, s4
s_add_u32 s{S_DSRC}, s{S_DSRC}, {2 * RH0}
""")
    if conv:
        e(f"""
s_mov_b32 s{S_K}, {RH0 // RPC}
s_bfe_i32 s{S_DEFF}, s{S_R0}, {hex(0x20000 + 2 * (RH0 // RPC // 4))}
s_mul_i32 s{S_DEFF}, s{S_DEFF}, {REG_ROWS*2}
s_add_u32 s{S_DEFF}, s{S_DEFF}, s{S_DSRC}
s_mov_b32 s{S_RR}, {REG_ROWS}
""")
    if o["spf"]:
        e(f"""
s_lshl_b32 s{S_PF}, s2, 3
s_add_u32 s{S_PF}, s{S_PF}, s3
s_mul_i32 s{S_PF}, s{S_PF}, {SPW}
s_add_u32 s{S_PF}, s{S_PF}, {o["spf"] * 256}
""")
    if o["pf3"]:
        e(f"s_sub_u32 s{S_PF}, s{S_TOT}, {32*8192}\ns_cmp_lg_u32 s{S_MODE}, 0\ns_cselect_b32 s{S_PF}, 0, s{S_PF}")
    e(f"""
v_lshlrev_b32 v{VL16}, 4, v{VLANE}
v_and_b32 v{X}, 15, v{VLANE}
v_lshrrev_b32 v{X+1}, 4, v{VLANE}
v_lshl_add_u32 v{X}, v{X}, 2, v{X+1}
s_lshr_b32 s6, s5, 1
s_add_u32 s5, s5, {L_REC}
s_add_u32 s6, s6, {L_TH}
v_lshl_add_u32 v{VRA}, v{X}, 2, s5
v_lshl_add_u32 v{VTA}, v{X}, 1, s6
s_lshl_b32 s4, s3, 10
s_add_u32 s4, s4, {L_STG}
v_lshl_add_u32 v{VSW}, v{X}, 3, s4
v_bfe_u32 v{X}, v{VLANE}, 3, 2
v_bfe_u32 v{X+1}, v{VLANE}, 1, 1
v_lshl_add_u32 v{X}, v{X}, 1, v{X+1}
v_lshl_add_u32 v{X}, v{X}, 3, s4
s_lshl_b32 s{S_OUT}, s2, 5
s_lshl_b32 s4, s3, 2
s_add_u32 s{S_OUT}, s{S_OUT}, s4
s_lshl_b32 s{S_OUT}, s{S_OUT}, 8
s_mov_b32 s14, {E*256}
s_mov_b32 s15, 0x20000
s_waitcnt vmcnt({o["pf2"]}) lgkmcnt(0)
s_barrier
""")

    if o["stamps"]:
        for k, r in enumerate((VAA, VAB, VCUR, VNXT)):
            e(f"v_readfirstlane_b32 s{92+k}, v{r}")
        stamp(e, o, VAA)
        e(f"s_nop 0\nv_readfirstlane_b32 s96, v{VAA}\ns_mov_b32 s97, 0")
        if o["fused"] and o["ss"]:
            e(f"v_readfirstlane_b32 s97, v{VCLEAN}\ns_sub_u32 s97, {o['tmo']}, s97")
        if o["cyc"]:
            e("s_memtime s[98:99]\ns_waitcnt lgkmcnt(0)")

    def readA(b):
        e(f"ds_read_b64 v[{A}:{A+1}], v{VAA} offset:{b*64}\nds_read_b64 v[{A+2}:{A+3}], v{VAB} offset:{b*64}")

    def filt():
        if "m" not in o["drop"]:
            e(f"v_mfma_f32_32x32x16_bf16 v[{FILT}:{FILT+15}], v[{A}:{A+3}], v[{W}:{W+3}], 0")

    def loads(rb, lane):
        for i, t in enumerate((VT0, VT1)):
            e(f"v_or_b32_dpp v{t}, v{VCLEAN}, v{VQ} row_newbcast:{lane+i} row_mask:0xf bank_mask:0xf")
            e(f"buffer_load_dwordx4 v[{ROW+rb*8+4*i}:{ROW+rb*8+4*i+3}], v{t}, s[8:11], 0 offen {o['row_ld']}")

    def next_records(off):
        e(f"ds_read_b32 v{VNXT}, v{VRA} offset:{off*4}\nds_read_u16 v{VTH}, v{VTA} offset:{off*2}")

    def pack():
        e(f"""
v_mov_b32_dpp v{VPK}, v{VNXT} row_shl:1 row_mask:0xf bank_mask:0xf
v_perm_b32 v{VPK}, v{VPK}, v{VNXT}, s{S_SEL}
v_or_b32 v{VPK}, 0xc000c000, v{VPK}
""")

    def lookup():
        e(f"""
v_bfe_u32 v{VT0}, v{VNXT}, 8, 18
""")
        if conv:
            e(f"""
v_mul_hi_u32_u24 v{VT1}, {M_REG}, v{VT0}
v_add_u32 v{VT1}, v{VT1}, v{VT1}
v_bfe_i32 v{VT1}, s{S_R0}, v{VT1}, 2
v_mad_i32_i24 v{VT0}, v{VT1}, s{S_RR}, v{VT0}
""")
        else:
            e(f"""
v_subrev_u32 v{VT0}, s{S_R0}, v{VT0}
v_add_u32 v{VT1}, {E}, v{VT0}
v_min_u32 v{VT0}, v{VT0}, v{VT1}
""")
        e(f"""
v_subrev_u32 v{VT0}, s{S_LO}, v{VT0}
v_lshl_add_u32 v{VT1}, v{VT0}, 1, s{S_OFF}
v_cmp_le_u32 s[{S_OOW}:{S_OOW+1}], s{S_SPAN}, v{VT0}
v_subrev_u32 v{VT0}, {RBYTES}, v{VT1}
v_min_u32 v{VT1}, v{VT0}, v{VT1}
v_cmp_le_i32 vcc, {hex(F_SELF)}, v{VNXT}
ds_read_u16 v{VRAD}, v{VT1} offset:{L_RING}
s_and_b64 s[{S_OOW}:{S_OOW+1}], s[{S_OOW}:{S_OOW+1}], vcc
""")

    def fallback(label, wait=True):
        e(f"""
s_cmp_eq_u64 s[{S_OOW}:{S_OOW+1}], 0
s_cbranch_scc1 {label}
s_waitcnt lgkmcnt(0)
s_mov_b64 exec, s[{S_OOW}:{S_OOW+1}]
v_bfe_u32 v{VRAD}, v{VNXT}, 8, 18
v_lshlrev_b32 v{VRAD}, 1, v{VRAD}
buffer_load_ushort v{VRAD}, v{VRAD}, s[20:23], 0 offen
s_mov_b64 exec, -1
{"s_waitcnt vmcnt(0)" if wait else ""}
{"s_add_u32 s97, s97, 1" if o["stamps"] and not o["cyc"] else ""}
{label}:
""")

    def ring_dma():
        e(f"s_mov_b32 m0, s{S_DDST}\ns_add_u32 s{S_DDST}, s{S_DDST}, {RPC*2}")
        e(f"buffer_load_dwordx4 v{VL16}, s[20:23], s{S_DEFF if conv else S_DSRC} offen lds")

    def ring_advance():
        if conv:
            e(f"""
s_add_u32 s{S_K}, s{S_K}, 1
s_lshr_b32 s5, s{S_K}, 1
s_and_b32 s5, s5, 30
s_or_b32 s5, s5, 0x20000
s_bfe_i32 s5, s{S_R0}, s5
s_mul_i32 s5, s5, {REG_ROWS*2}
""")
        e(f"""
s_cmp_ge_u32 s{S_DDST}, s{S_DLIM}
s_cselect_b32 s4, {RBYTES}, 0
s_sub_u32 s{S_DDST}, s{S_DDST}, s4
s_add_u32 s{S_DSRC}, s{S_DSRC}, {RPC*2}
{f"s_add_u32 s{S_DEFF}, s{S_DSRC}, s5" if conv else ""}
""")

    def window_advance():
        e(f"""
s_add_u32 s{S_LO}, s{S_LO}, {2*RPC}
s_add_u32 s{S_OFF}, s{S_OFF}, {4*RPC}
s_cmp_ge_u32 s{S_OFF}, {RBYTES}
s_cselect_b32 s4, {RBYTES}, 0
s_sub_u32 s{S_OFF}, s{S_OFF}, s4
""")

    J = (VTH, VSE, VLANE)
    t = UNP

    jl = o["jl"]

    def jit_angles():
        if jl >= 3:
            e(f"""
v_lshlrev_b32 v{J[0]}, 16, v{VTH}
v_mul_f32 v{t}, 0x40400000, v{J[0]}
v_cvt_pk_bf16_f32 v{t}, v{t}, v{t}
v_and_b32 v{J[2]}, 0xffff0000, v{t}
""")
            return
        e(f"""
v_lshlrev_b32 v{VTH}, 16, v{VTH}
v_mul_f32 v{t}, s{SE0}, v{VTH}
v_mul_f32 v{t+1}, s{SE1}, v{VTH}
v_mul_f32 v{t+2}, s{SE2}, v{VTH}
v_cvt_pk_bf16_f32 v{t+1}, v{t}, v{t+1}
v_cvt_pk_bf16_f32 v{t+2}, v{t+2}, v{t+2}
v_lshlrev_b32 v{J[0]}, 16, v{t+1}
v_and_b32 v{J[1]}, 0xffff0000, v{t+1}
v_and_b32 v{J[2]}, 0xffff0000, v{t+2}
""")

    KS = (0, 2) if jl >= 3 else (0, 1, 2)

    def jit_reduce():
        if jl >= 1:
            for k in KS:
                e(f"v_mul_f32 v{J[k]}, 0.15915494, v{J[k]}")
            for k in KS:
                e(f"v_fract_f32 v{J[k]}, v{J[k]}")
            return
        for k in KS:
            e(f"v_mul_f32 v{t+k}, {hex(C_HI)}, v{J[k]}")
        for k in KS:
            e(f"v_fract_f32 v{t+k}, v{t+k}")
        for k in KS:
            e(f"v_fmamk_f32 v{J[k]}, v{J[k]}, {hex(C_LO)}, v{t+k}")

    def jit_cos():
        for k in KS:
            e(f"v_cos_f32 v{J[k]}, v{J[k]}")
        if jl >= 3:
            e(f"v_add_f32 v{J[1]}, v{J[0]}, v{J[0]}\nv_fma_f32 v{J[1]}, v{J[1]}, v{J[0]}, -1.0")
        if jl < 2:
            e(f"""
s_nop 0
v_cvt_pk_bf16_f32 v{J[1]}, v{J[0]}, v{J[1]}
v_cvt_pk_bf16_f32 v{J[2]}, v{J[2]}, v{J[2]}
""")

    def jit_store():
        e(f"""
v_lshlrev_b32 v{VRAD}, 16, v{VRAD}
v_ashrrev_i32 v{t+3}, 31, v{VNXT}
v_bfe_i32 v{t+4}, v{VNXT}, 30, 1
v_bfi_b32 v{t+3}, v{t+3}, 0, v{VRAD}
v_and_b32 v{t+4}, v{t+4}, v{VRAD}
""")
        if jl < 2:
            e(f"""
v_lshlrev_b32 v{J[0]}, 16, v{J[1]}
v_and_b32 v{J[1]}, 0xffff0000, v{J[1]}
v_and_b32 v{J[2]}, 0xffff0000, v{J[2]}
""")
        e(f"""
v_mul_f32 v{t}, v{J[0]}, v{t+3}
v_mul_f32 v{t+1}, v{J[1]}, v{t+3}
v_mul_f32 v{t+2}, v{J[2]}, v{t+3}
v_cvt_pk_bf16_f32 v{t}, v{t}, v{t+1}
v_cvt_pk_bf16_f32 v{t+1}, v{t+2}, v{t+4}
ds_write_b64 v{VSW}, v[{t}:{t+1}]
v_xor_b32 v{VSW}, 512, v{VSW}
""")

    NBS = 2 * NB

    def lanes(b):
        for g in range(4):
            e(f"v_readlane_b32 s{SI+g}, v{VPK}, {16*g+2*b}")

    def ahead():
        e(f"s_add_u32 s{S_PF}, s{S_PF}, {32*8192}\ns_mov_b32 m0, {L_TRASH}\nv_add_u32 v{VT0}, s{S_PF}, v{VL16}")
        e(f"buffer_load_dwordx4 v{VT0}, s[8:11], 0 offen lds")

    def batch(b, steady, pf=False):
        rb = b % NB
        last = rb == NB - 1
        if steady:
            cnt = 2 * NB - 2 if rb in (0, NB - 1) else 2 * NB - 1
            if o["spf"] and 1 <= b <= NB:
                cnt += 1
            if pf:
                cnt += NB - 1 if rb == NB - 1 else NB
            cnt -= o["shallow"]
        else:
            cnt = 2 * (NB - 1 - rb)
        e(f"s_waitcnt vmcnt({cnt})")
        for i in range(2):
            for u in range(2):
                d = UNP + 8 * i + 4 * u
                if "u" not in o["drop"]:
                    e(f"v_mfma_f32_16x16x32_bf16 v[{d}:{d+3}], v[{AU+4*u}:{AU+4*u+3}], v[{ROW+rb*8+4*i}:{ROW+rb*8+4*i+3}], 0")
        if o["prio"] == 2:
            e("s_setprio 1")
        if o["prio"] == 3:
            e("s_setprio 0")
        if steady and rb == 0 and "d" not in o["drop"]:
            ring_dma()
        if steady and "l" not in o["drop"]:
            loads(rb, 2 * ((b + NB) % NBS))
            if pf:
                ahead()
            if o["spf"] and b == 0:
                e(f"""
s_mov_b32 m0, {L_TRASH}
v_add_u32 v{VT0}, s{S_PF}, v{VL16}
buffer_load_dwordx4 v{VT0}, s[8:11], 0 offen lds
s_add_u32 s{S_PF}, s{S_PF}, {NBK * NW * SPW}
""")
        else:
            e("s_nop 3")
        for j in range(8):
            if j == 0:
                e(f"s_set_gpr_idx_on s{SI}, gpr_idx(SRC2,DST)")
            elif "i" in o["drop"]:
                pass
            elif j < 4:
                e(f"s_mov_b32 m0, s{SI+j}")
            else:
                e(f"s_lshr_b32 m0, s{SI+j-4}, 16")
            if "f" in o["drop"]:
                pass
            elif o["acc"] == "pk":
                e(f"v_pk_fma_f32 v[{ACC}:{ACC+1}], v[{UNP+2*j}:{UNP+2*j+1}], v[{FILT+2*j}:{FILT+2*j+1}], v[{ACC}:{ACC+1}]")
            else:
                e(f"v_fmac_f32 v{ACC}, v{UNP+2*j}, v{FILT+2*j}\nv_fmac_f32 v{ACC+1}, v{UNP+2*j+1}, v{FILT+2*j+1}")
        e("s_set_gpr_idx_off")
        if o["prio"] == 2:
            e("s_setprio 0")
        if o["prio"] == 3:
            e("s_setprio 1")
        if not steady and last:
            return
        e("s_waitcnt lgkmcnt(0)")
        filt()
        if steady and b == NBS - 2:
            e(f"v_xor_b32 v{VAA}, 512, v{VAA}\nv_xor_b32 v{VAB}, 512, v{VAB}")
        if steady or rb < NB - 2:
            readA((b + 2) % NBS)
        if steady and b == NBS - 1:
            pack()
            e(f"v_add_u32 v{VRA}, {SG*4}, v{VRA}\nv_add_u32 v{VTA}, {SG*2}, v{VTA}")
            next_records(SG)
        lanes((b + 1) % NBS)
        if not steady:
            return
        if rb == 0:
            ring_advance()
        if b == 0:
            lookup()
            window_advance()
            fallback("LM_inwinP" if pf else "LM_inwin", wait=False)
        if b == NB - 1:
            e(f"v_and_b32 v{VCLEAN}, {hex(ROWMASK)}, v{VNXT}")
        if not o["nojit"]:
            piece = {1: jit_angles, 2: jit_reduce, 3: jit_cos, 4: jit_store}.get(b)
            if b == NB:
                e(f"s_waitcnt vmcnt({2*NB+1 + (NB if pf else 0)})")
            if piece:
                piece()

    next_records(0)
    e(f"""
v_cndmask_b32 v{VAA}, 0, v{X}, s[{MA}:{MA+1}]
v_cndmask_b32 v{VAB}, 0, v{X}, s[{MB}:{MB+1}]
s_waitcnt lgkmcnt(0)
v_and_b32 v{VCLEAN}, {hex(ROWMASK)}, v{VNXT}
""")
    lookup()
    for b in range(NB):
        loads(b, 2 * b)
        if o["pf3"]:
            ahead()
    pack()
    e("s_waitcnt lgkmcnt(0)")
    fallback("LM_inwin0")
    jit_angles()
    jit_reduce()
    jit_cos()
    jit_store()
    readA(0)
    e("s_waitcnt lgkmcnt(0)")
    filt()
    next_records(SG)
    readA(1)
    e(f"s_cmp_lg_u32 s{S_MODE}, 0\ns_cbranch_scc1 LM_keepacc")
    for i in range(2 * DPW):
        e(f"v_mov_b32 v{ACC+i}, 0")
    e("LM_keepacc:")
    if o["prio"] == 1:
        e("s_cmp_lt_u32 s3, 4\ns_cbranch_scc1 LM_prio\ns_setprio 1\nLM_prio:")
    lanes(0)
    e(f"s_cmp_le_u32 s{S_NIT}, {G}\ns_cbranch_scc1 LM_drainA")
    bar = "" if o["nobar"] else "s_barrier"
    if o["pf3"]:
        e(f"s_mov_b32 s{S_PFN}, {o['pf3']}\nLM_loopP:")
        for b in range(NB):
            batch(b, True, True)
        e(f"s_sub_u32 s{S_NIT}, s{S_NIT}, {G}\n{bar}\ns_cmp_le_u32 s{S_NIT}, {G}\ns_cbranch_scc1 LM_drainB")
        for b in range(NB, NBS):
            batch(b, True, True)
        e(f"""
s_sub_u32 s{S_NIT}, s{S_NIT}, {G}
{bar}
s_cmp_le_u32 s{S_NIT}, {G}
s_cbranch_scc1 LM_drainA
s_sub_u32 s{S_PFN}, s{S_PFN}, 1
s_cmp_lg_u32 s{S_PFN}, 0
s_cbranch_scc1 LM_loopP
""")
    e(".p2align 6\nLM_loop:")
    for b in range(NB):
        batch(b, True)
    e(f"""
s_sub_u32 s{S_NIT}, s{S_NIT}, {G}
{'' if o['nomid'] else bar}
s_cmp_le_u32 s{S_NIT}, {G}
s_cbranch_scc1 LM_drainB
""")
    for b in range(NB, NBS):
        batch(b, True)
    e(f"""
s_sub_u32 s{S_NIT}, s{S_NIT}, {G}
{bar}
s_cmp_gt_u32 s{S_NIT}, {G}
s_cbranch_scc1 LM_loop
LM_drainA:
""")
    for b in range(NB):
        batch(b, False)
    e("s_branch LM_drained\nLM_drainB:")
    for b in range(NB, NBS):
        batch(b, False)
    e(f"LM_drained:\nv_lshrrev_b32 v{VLANE}, 4, v{VL16}")
    e(f"""
s_waitcnt lgkmcnt(0)
s_cmp_eq_u32 s{S_MODE}, 0
s_cbranch_scc1 LM_out
s_add_u32 s{S_BASE}, s{S_BASE}, {RMAX}
s_cmp_lt_u32 s{S_BASE}, s{S_TOT}
s_cbranch_scc1 LM_round
LM_out:
""")
    if o["cyc"]:
        e("s_memtime s[6:7]\ns_waitcnt lgkmcnt(0)\ns_sub_u32 s97, s6, s98")
    stamp(e, o, VAA)
    for k in range(DPW // 16):
        y0 = (UNP, ROW, ROW + 16)[k % 3]
        for i in range(4):
            for j in range(4):
                a = ACC + 32 * k + 8 * i + 2 * j
                e(f"v_cvt_pk_bf16_f32 v{y0+4*i+j}, v{a}, v{a+1}")
        for i in range(4):
            y = y0 + 4 * i
            e(f"v_permlane16_swap_b32 v{y}, v{y+1}\nv_permlane16_swap_b32 v{y+2}, v{y+3}")
        for i in range(4):
            y = y0 + 4 * i
            if 4 * k + i == DPW // 4 - 1:
                e(f"s_cmp_ge_u32 s2, {FULL_BK}\ns_cbranch_scc1 LM_stored")
            e(f"""
v_permlane32_swap_b32 v{y}, v{y+2}
v_permlane32_swap_b32 v{y+1}, v{y+3}
buffer_store_dwordx4 v[{y}:{y+3}], v{VL16}, s[12:15], s{S_OUT} offen {o['out_st']}
s_add_u32 s{S_OUT}, s{S_OUT}, {STRIDE_ROWS*256}
""")
    e("LM_stored:")
    if o["stamps"]:
        for k in range(6):
            e(f"v_mov_b32 v{8+k}, s{92+k}")
    stamps_out(e, o, [8, 9, 10, 11, 12, VAA, 13, VAB], 33 << 20, NW)
    e("LM_end:\ns_endpgm")

    e(f"""
LM_slow:
s_mov_b32 s{S_MODE}, 1
s_lshl_b32 s4, s3, 7
v_and_b32 v{X}, 7, v{VLANE}
v_lshrrev_b32 v{X+1}, 4, v{VLANE}
v_lshl_add_u32 v{X}, v{X}, 2, v{X+1}
v_lshl_add_u32 v{X}, v{X}, 2, s4
ds_write_b32 v{X}, v{VSE} offset:{L_SEG}
v_lshlrev_b32 v{X+1}, 4, v{VLANE}
s_waitcnt lgkmcnt(0)
s_barrier
ds_read_b128 v[{X+4}:{X+7}], v{X+1} offset:{L_SEG}
s_waitcnt lgkmcnt(0)
""")
    for k in range(4):
        e(f"""
v_lshrrev_b32 v{X+8+k}, 16, v{X+4+k}
v_and_b32 v{X+4+k}, 0xffff, v{X+4+k}
v_sub_u32 v{X+8+k}, v{X+8+k}, v{X+4+k}
""")
    e(f"""
v_add_u32 v{X+9}, v{X+8}, v{X+9}
v_add_u32 v{X+10}, v{X+9}, v{X+10}
v_add_u32 v{X+11}, v{X+10}, v{X+11}
v_mov_b32 v{X+3}, v{X+11}
""")
    wave_scan(e, X + 3)
    e(f"""
v_sub_u32 v{X+12}, v{X+3}, v{X+11}
v_readlane_b32 s{S_TOT}, v{X+3}, 63
v_add_u32 v{X+13}, v{X+12}, v{X+8}
v_add_u32 v{X+14}, v{X+12}, v{X+9}
v_add_u32 v{X+15}, v{X+12}, v{X+10}
ds_write_b128 v{X+1}, v[{X+12}:{X+15}] offset:{L_P}
""")
    for k in range(4):
        e(f"v_sub_u32 v{X+4+k}, v{X+4+k}, v{X+12+k}")
    e(f"ds_write_b128 v{X+1}, v[{X+4}:{X+7}] offset:{L_Q}")
    for i in range(2 * DPW):
        e(f"v_mov_b32 v{ACC+i}, 0")
    SR = X + 12
    STH = SR + RSLOTS + 2
    SA = STH + RSLOTS + 1
    SK = SA + RSLOTS + 2
    assert SK + RSLOTS + 2 <= ROW + G
    e(f"""
s_mov_b32 s{S_BASE}, 0
LM_round:
s_lshl_b32 s4, s3, 6
v_add_u32 v{X}, s4, v{VLANE}
v_lshlrev_b32 v{X+1}, 2, v{X}
v_mov_b32 v{X+2}, 0
v_mov_b32 v{VONE}, 4
ds_write_b32 v{X+1}, v{X+2} offset:{L_HIST}
ds_write_b32 v{X+1}, v{X+2} offset:{L_HIST+2048}
v_add_u32 v{X}, s{S_BASE}, v{X}
""")
    prefill()
    for j in range(RSLOTS):
        e(f"v_cmp_gt_u32 s[{SM+2*j}:{SM+2*j+1}], s{S_TOT}, v{X}\nv_mov_b32 v{X+3}, 0")
        for st in (128, 64, 32, 16, 8, 4, 2, 1):
            e(f"""
ds_read_b32 v{X+4}, v{X+3} offset:{L_P+4*st}
v_add_u32 v{X+5}, {4*st}, v{X+3}
s_waitcnt lgkmcnt(0)
v_cmp_le_u32 vcc, v{X+4}, v{X}
s_nop 1
v_cndmask_b32 v{X+3}, v{X+3}, v{X+5}, vcc
""")
        e(f"""
ds_read_b32 v{X+4}, v{X+3} offset:{L_Q}
v_mul_u32_u24 v{X+3}, {TS//4}, v{X+3}
s_waitcnt lgkmcnt(0)
v_add_u32 v{X+4}, v{X+4}, v{X}
v_lshl_add_u32 v{X+5}, v{X+4}, 2, v{X+3}
v_lshl_add_u32 v{X+4}, v{X+4}, 1, v{X+3}
v_add_u32 v{X+4}, {T_OFF}, v{X+4}
s_mov_b64 exec, s[{SM+2*j}:{SM+2*j+1}]
buffer_load_dword v{SR+j}, v{X+5}, s[16:19], 0 offen
buffer_load_ushort v{STH+j}, v{X+4}, s[16:19], 0 offen
s_mov_b64 exec, -1
v_add_u32 v{X}, 512, v{X}
""")
    self_slots(SR + RSLOTS, STH + RSLOTS)
    m0 = SM + 2 * RSLOTS
    e(f"""
s_cmp_eq_u32 s{S_BASE}, 0
s_cselect_b64 s[{m0}:{m0+1}], -1, 0
s_cselect_b32 s{m0+2}, s34, 0
s_mov_b32 s{m0+3}, 0
s_waitcnt vmcnt(0) lgkmcnt(0)
s_barrier
""")
    slow = [(SM + 2 * j, SR + j, STH + min(j, RSLOTS), 0, SA + j, SK + j, None) for j in range(RSLOTS + 2)]
    phase1(slow)
    scan_exchange(False)
    phase2(slow)
    e("s_branch LM_tail")
    return e.text()


def gen_pf(o):
    e = Asm()
    fl = "" if o["pre"] == "pf" else o["pre"]
    e(f"""
dn_pf_kernel:
s_cmp_ge_u32 s2, {NWG}
s_cbranch_scc1 LF_end
s_load_dwordx2 s[4:5], s[0:1], {o["presrc"]}
v_lshlrev_b32 v1, 4, v0
s_waitcnt lgkmcnt(0)
""")
    srd(e, 8, 4, 5, E * 256, o["preoff"] << 20)
    e("s_mul_i32 s4, s2, 16384")
    for i in range(10):
        e(f"buffer_load_dwordx4 v[{8+4*i}:{11+4*i}], v1, s[8:11], s4 offen {fl}\ns_add_u32 s4, s4, {250*16384}")
    e("s_waitcnt vmcnt(0)\nLF_end:\ns_endpgm")
    return e.text()


HEADER = """; DimeNet angular message passing on gfx950.
"""


def kd(name, vgpr):
    return f""".p2align 6
.amdhsa_kernel {name}
  .amdhsa_next_free_vgpr {vgpr}
  .amdhsa_next_free_sgpr 102
  .amdhsa_accum_offset {vgpr}
  .amdhsa_group_segment_fixed_size 0
  .amdhsa_kernarg_size 96
  .amdhsa_user_sgpr_count 2
  .amdhsa_user_sgpr_kernarg_segment_ptr 1
  .amdhsa_system_sgpr_workgroup_id_x 1
  .amdhsa_float_denorm_mode_32 3
.end_amdhsa_kernel
"""


def generate(**kw):
    o = dict(DEFAULTS)
    o.update(kw)
    s = HEADER
    if o["fused"]:
        s += f"; @launch grid=({NBK},1,1) block=(512,1,1) lds={L_LDS}\n"
        s += '.amdgcn_target "amdgcn-amd-amdhsa--gfx950"\n.text\n'
        s += f".globl {MAIN}\n.p2align 8\n.type {MAIN},@function\n{gen_main(o)}"
        return s + '.section .rodata,"a"\n' + kd(MAIN, 256)
    if o["pre"]:
        s += f"; @launch kernel=dn_pf_kernel grid=({NWG},1,1) block=(1024,1,1) lds=0\n"
    s += f"; @launch kernel={PART} grid=({NWG},1,1) block=(1024,1,1) lds={P_LDS}\n"
    s += f"; @launch kernel={MAIN} grid=({NBK},1,1) block=(512,1,1) lds={L_LDS}\n"
    for _ in range(o["post"]):
        s += f"; @launch kernel=dn_nop_kernel grid=({NWG},1,1) block=(64,1,1) lds=0\n"
    s += '.amdgcn_target "amdgcn-amd-amdhsa--gfx950"\n.text\n'
    extra = []
    if o["pre"]:
        extra.append(("dn_pf_kernel", gen_pf(o)))
    if o["post"]:
        extra.append(("dn_nop_kernel", "dn_nop_kernel:\n    s_endpgm\n"))
    for name, body in [(PART, gen_part(o)), (MAIN, gen_main(o))] + extra:
        s += f".globl {name}\n.p2align 8\n.type {name},@function\n{body}"
    s += '.section .rodata,"a"\n' + kd(PART, 104) + kd(MAIN, 256)
    for name, _ in extra:
        s += kd(name, 64)
    return s


if __name__ == "__main__":
    out = sys.argv[1]
    kw = {}
    for a in sys.argv[2:]:
        k, v = a.split("=", 1)
        kw[k] = int(v) if v.lstrip("-").isdigit() else v.replace("_", " ")
    open(out, "w").write(generate(**kw))
```

```python
import math
import os
import struct
import sys

MAIN = "standalone__molecular_angular_dimenet__graph_kernel"
PART = "dn_part_kernel"

E, T = 160000, 2560000
NWG = int(os.environ.get('NWG', 250))
NBK = 256
TILE = T // NWG
PT = TILE // 10
NW = 8
DPW = 80
CH_SHIFT = 11
CH_ROWS = 1 << CH_SHIFT
NCH = 160000 // CH_ROWS + 1
NBIN = 128
NB = 4
G = NB * 8
STRIDE_ROWS = NBK * NW * 4
FULL_BK = (E - (DPW // 4 - 1) * STRIDE_ROWS) // 32

TCAP = -(-(TILE + 256) // 64) * 64
T_OFF = TCAP * 4
TS = TCAP * 6
WS_REC = 0
WS_OFF = NWG * TS
WS_RAD = WS_OFF + 256 * 2048

P_HIST, P_OFF, P_REC = 0, 1024, 2048
P_LDS = P_REC + 4 * 16384

SG = 2 * G
RPC = int(os.environ.get('RPC', 3520))
RROWS = 9 * RPC
RBYTES = RROWS * 2
RPW = RPC * 2 // NW
RH0 = 7 * RPC
LCAP = 1664
L_ZERO = 0
L_STG = 1024
L_HIST = L_STG + NW * 1024
L_N = L_HIST + NW * NBIN * 4
L_SEG = L_N + 64
L_P = L_SEG + 1024
L_Q = L_P + 1024
L_RING = L_Q + 1024
L_TH = L_RING + RBYTES + 128
L_REC = L_TH + NW * LCAP * 2
L_TRASH = L_REC + NW * LCAP * 4
L_LDS = L_TRASH + 1024
SPW = 896
CBIAS = 24576
RSLOTS = 3
RMAX = RSLOTS * 512
RAD_BYTES = 2 * (E + RH0 + (LCAP // G + 1) * RPC)
assert RMAX + DPW <= LCAP and LCAP % SG == 0 and L_LDS <= 163840 and L_REC % 16 == 0 and L_RING % 16 == 0
assert L_TH % 16 == 0 and RPW % 16 == 0 and L_RING < 65536
assert 0 <= L_REC - 2 * CBIAS < 65536 and 0 <= L_TH - CBIAS < 65536

F_SELF = 0xC0000000
F_DUMMY = 0x80000000
ROWMASK = 0x03FFFF00
DUMMY_REC = F_DUMMY | ROWMASK
assert TS % 128 == 0 and TS <= 4 * 16384 and E % 32 == 0
KEY_SHIFT = 8 + CH_SHIFT
M_STRETCH = (CH_ROWS << 16) // E
REG_CH = 7
REG_ROWS = REG_CH * CH_ROWS
M_REG = -(-(1 << 32) // REG_ROWS)
assert all((k * M_REG) >> 32 == k // REG_ROWS for k in range(E)) and M_REG < (1 << 24)
assert all((c * 37) >> 8 == c // REG_CH for c in range(NCH))


def f2u(x):
    return struct.unpack("<I", struct.pack("<f", x))[0]


def u2f(u):
    return struct.unpack("<f", struct.pack("<I", u))[0]


INV2PI = 1.0 / (2.0 * math.pi)
C_HI = f2u(INV2PI) & 0xFFFFFF00
C_LO = f2u(INV2PI - u2f(C_HI))

DEFAULTS = dict(pf1=0, pf1s=0, pf1pos=2, pf1e=0, fused=0, tmo=65536, touch=0, slp=1, early=0, fji=2, dyn=1, pf2=8, pf3=0, pf0=0, ulate=0, aux_st="sc1", diagdelay=0, ss=0, spf=0, nomid=0, jl=1, order=3, prio=1, acc="pk", drop="", cyc=0, hz=0, nojit=0, nobar=0, dummyrow=0, nodma=0, target=1440, conv=0, ptrs=0, spread=1, oside=0, opol=0, dtop=0, bb=1, seg=-1, numa=0, pol=0, probe=0, probe_fl="", shallow=0, rot=10, rotsh=0, jifirst=1, pre="", presrc=0, preoff=0, post=0, in_flags="nt", rec_st="sc1", seg_ld="", row_ld="", out_st="sc1", stamps=0)


class Asm:
    def __init__(self):
        self.l = []

    def __call__(self, s):
        for line in s.strip("\n").split("\n"):
            line = line.strip()
            if not line:
                continue
            if line.endswith(":") or line.startswith("."):
                self.l.append(line)
            else:
                self.l.append("    " + line)

    def text(self):
        return "\n".join(self.l) + "\n"


def srd(e, d, lo, hi, nbytes, add=None):
    if add is None:
        e(f"s_mov_b32 s{d}, s{lo}\ns_mov_b32 s{d+1}, s{hi}")
    else:
        e(f"s_add_u32 s{d}, s{lo}, {add}\ns_addc_u32 s{d+1}, s{hi}, 0")
    e(f"s_mov_b32 s{d+2}, {nbytes}\ns_mov_b32 s{d+3}, 0x20000")


def wave_scan(e, v):
    for ctl in ("row_shr:1 row_mask:0xf", "row_shr:2 row_mask:0xf", "row_shr:4 row_mask:0xf",
                "row_shr:8 row_mask:0xf", "row_bcast:15 row_mask:0xa", "row_bcast:31 row_mask:0xc"):
        e(f"s_nop 1\nv_add_u32_dpp v{v}, v{v}, v{v} {ctl} bank_mask:0xf")


def stamp(e, o, v):
    if o["stamps"]:
        e(f"s_memrealtime vcc\ns_waitcnt lgkmcnt(0)\nv_mov_b32 v{v}, vcc_lo")


def stamps_out(e, o, regs, region, nwaves):
    if not o["stamps"]:
        return
    e("s_waitcnt vmcnt(0)")
    stamp(e, o, regs[-1])
    e("s_load_dwordx2 s[4:5], s[0:1], 88\ns_waitcnt lgkmcnt(0)")
    srd(e, 12, 4, 5, NBK * nwaves * 32, region)
    srd(e, 16, 4, 5, 64, 32 << 20)
    e(f"s_mul_i32 s4, s2, {nwaves}\ns_add_u32 s4, s4, s3\ns_lshl_b32 s4, s4, 5\nv_mov_b32 v0, s4")
    for k, r in enumerate(regs):
        e(f"buffer_store_dword v{r}, v0, s[12:15], 0 offen offset:{4*k}")
    if o["stamps"] == 2 and nwaves == NW:
        e(f"""
s_load_dwordx2 s[6:7], s[0:1], 80
v_mov_b32 v0, 0
s_or_b32 s4, s2, s3
s_cmp_lg_u32 s4, 0
s_cbranch_scc1 LM_end
s_lshr_b32 s4, s2, 2
s_waitcnt vmcnt(0) lgkmcnt(0)
""")
        srd(e, 20, 6, 7, 256)
        e("buffer_load_dword v1, v0, s[16:19], 0 offen sc0 sc1")
        e("buffer_load_dwordx4 v[20:23], v0, s[16:19], 0 offen offset:4 sc0 sc1\ns_waitcnt vmcnt(0)\ns_mov_b64 exec, 1")
        for k, r in enumerate(list(regs) + [20, 21, 22, 23]):
            e(f"v_sub_u32 v{r}, v{r}, v1\nbuffer_store_dword v{r}, v0, s[20:23], 0 offen offset:{4*k}")


def gen_part(o):
    e = Asm()
    fl = o["in_flags"]
    JI, KJ, TH = 4, 16, 28
    VD = 33
    U, REM, HA, RK = 36, 46, 56, 66
    S = 76
    PFD = 92
    ST = 96
    e(f"""
{PART}:
s_cmp_ge_u32 s2, {NWG}
s_cbranch_scc1 LP_end
s_load_dwordx8 s[12:19], s[0:1], 8
s_load_dwordx2 s[20:21], s[0:1], 40
s_load_dwordx2 s[22:23], s[0:1], 88
s_load_dwordx2 s[26:27], s[0:1], 0
{"s_load_dwordx2 s[76:77], s[0:1], 72" if o["probe"] else ""}
""")
    stamp(e, o, ST)
    e(f"""
v_lshlrev_b32 v1, 4, v0
v_lshlrev_b32 v2, 3, v0
v_lshlrev_b32 v3, 2, v0
v_lshlrev_b32 v34, 1, v0
v_mov_b32 v35, 0
ds_write_b32 v3, v35
v_lshrrev_b32 v35, 6, v0
s_mul_i32 s4, s2, {TILE*4}
s_mul_i32 s5, s2, {TILE*2}
s_mul_i32 s6, s2, {TS}
v_readfirstlane_b32 s3, v35
s_mul_i32 s7, s2, {E//NWG*2}
s_lshl_b32 s8, s2, 10
s_mov_b32 s9, {PT*16}
s_mov_b32 s10, {PT*32}
s_mov_b32 s11, {PT*8}
v_cmp_gt_u32 vcc, {PT}, v0
s_waitcnt lgkmcnt(0)
s_load_dword s24, s[20:21], 0
""")
    srd(e, 28, 18, 19, TILE * 4, "s4")
    if o["probe"]:
        e(f"""
s_mov_b32 s72, 0
s_cmp_lg_u32 s3, 0
s_cbranch_scc1 LP_noprobe
s_mul_i32 s62, s2, 21846
s_lshr_b32 s62, s62, 16
s_mul_i32 s63, s62, 3
s_sub_u32 s63, s2, s63
s_add_u32 s74, s22, {64 << 20}
s_addc_u32 s75, s23, 0
s_cmp_eq_u32 s63, 0
s_cselect_b32 s68, s26, s74
s_cselect_b32 s69, s27, s75
s_cmp_eq_u32 s63, 2
s_cselect_b32 s68, s76, s68
s_cselect_b32 s69, s77, s69
s_mov_b32 s70, {8 << 20}
s_mov_b32 s71, 0x20000
s_and_b32 s62, s62, 1
s_lshl_b32 s62, s62, 13
s_lshl_b32 s63, s2, 14
s_add_u32 s62, s62, s63
v_mov_b32 v90, s62
s_xor_b32 s62, s62, 8192
v_mov_b32 v91, s62
s_mov_b64 exec, 1
buffer_load_dword v92, v90, s[68:71], 0 offen {o["probe_fl"]}
buffer_load_dword v93, v91, s[68:71], 0 offen {o["probe_fl"]}
LP_noprobe:
{"s_barrier" if o["probe"] == 2 else ""}
""")
    e(f"""
s_mov_b64 exec, vcc
buffer_load_dwordx4 v[{JI}:{JI+3}], v1, s[28:31], 0 offen {fl}
buffer_load_dwordx4 v[{JI+4}:{JI+7}], v1, s[28:31], s9 offen {fl}
buffer_load_dwordx2 v[{JI+8}:{JI+9}], v2, s[28:31], s10 offen {fl}
""")
    if o["probe"]:
        e(f"""
s_cmp_lg_u32 s3, 0
s_cbranch_scc1 LP_noprobe2
s_waitcnt vmcnt(4) lgkmcnt(0)
s_memtime s[72:73]
s_waitcnt vmcnt(3)
s_memtime s[74:75]
s_waitcnt lgkmcnt(0)
s_sub_u32 s72, s74, s72
LP_noprobe2:
s_getreg_b32 s73, hwreg(HW_REG_XCC_ID)
""")
    srd(e, 32, 16, 17, TILE * 4, "s4")
    srd(e, 36, 14, 15, TILE * 2, "s5")
    srd(e, 48, 12, 13, E // NWG * 2, "s7")

    def rest_loads():
        e(f"""
buffer_load_ushort v{VD}, v34, s[48:51], 0 offen
buffer_load_dwordx4 v[{KJ}:{KJ+3}], v1, s[32:35], 0 offen {fl}
buffer_load_dwordx2 v[{TH}:{TH+1}], v2, s[36:39], 0 offen {fl}
buffer_load_dwordx4 v[{KJ+4}:{KJ+7}], v1, s[32:35], s9 offen {fl}
buffer_load_dwordx2 v[{TH+2}:{TH+3}], v2, s[36:39], s11 offen {fl}
buffer_load_dwordx2 v[{KJ+8}:{KJ+9}], v2, s[32:35], s10 offen {fl}
buffer_load_dword v{TH+4}, v3, s[36:39], s9 offen {fl}
""")
    if not o["jifirst"]:
        rest_loads()
    npf = o["pf1"]

    def prefetch(start, n):
        srd(e, 56, 26, 27, E * 256)
        e(f"s_lshl_b32 s60, s2, 14\ns_add_u32 s60, s60, {start * NWG * 16384}")
        for i in range(n):
            e(f"buffer_load_dwordx4 v[{PFD}:{PFD+3}], v1, s[56:59], s60 offen\ns_add_u32 s60, s60, {NWG*16384}")
    srd(e, 40, 22, 23, TS, "s6")
    e(f"s_add_u32 s8, s8, {WS_OFF}")
    srd(e, 44, 22, 23, NBK * 4, "s8")
    e(f"s_add_u32 s7, s7, {WS_RAD}")
    srd(e, 52, 22, 23, E // NWG * 2, "s7")
    e(f"s_add_u32 s7, s7, {E*2}")
    srd(e, 64, 22, 23, E // NWG * 2, "s7")
    e(f"""
s_mov_b32 s25, 0x380
s_mov_b32 s61, 0xf8
v_mov_b32 v35, 4
s_barrier
""")
    if o["jifirst"]:
        e(f"s_waitcnt vmcnt({o['jifirst'] - 1})")
        rest_loads()
    for k in range(10):
        if k in (0, 4, 8):
            e(f"s_waitcnt vmcnt({9 - k // 4})")
        if o["oside"]:
            e(f"v_lshrrev_b32 v{U+k}, 8, v{JI+k}\nv_xor_b32 v{U+k}, v{U+k}, v{JI+k}")
        e(f"""
v_lshlrev_b32 v{U+k}, 2, v{U+k if o["oside"] else JI+k}
v_lshrrev_b32 v{HA+k}, 6, v{JI+k}
v_bfi_b32 v{HA+k}, s25, v{U+k}, v{HA+k}
v_and_b32 v{HA+k}, 0x3fc, v{HA+k}
ds_add_rtn_u32 v{RK+k}, v{HA+k}, v35 offset:{P_HIST}
""")
    def low_bits():
        for k in range(10):
            e(f"""
v_lshl_add_u32 v{U+k}, v{JI+k}, 23, v{JI+k}
v_lshrrev_b32 v{JI+k}, 10, v{JI+k}
v_add_u32 v{U+k}, v{U+k}, v{U+k}
v_and_b32 v{U+k}, 0x1c000006, v{U+k}
v_and_or_b32 v{U+k}, v{JI+k}, s61, v{U+k}
""")
    if not o["ulate"]:
        low_bits()
    e("s_waitcnt lgkmcnt(0)\ns_barrier")
    stamp(e, o, ST + 1)
    e(f"""
v_and_b32 v{S+12}, 63, v0
v_lshlrev_b32 v{S+12}, 4, v{S+12}
s_cmp_lg_u32 s3, 0
s_cbranch_scc1 LP_noscan
s_setprio 3
ds_read_b128 v[{S}:{S+3}], v{S+12} offset:{P_HIST}
s_waitcnt lgkmcnt(0)
""")
    for k in range(4):
        e(f"v_add_u32 v{S+8+k}, 4, v{S+k}\nv_and_b32 v{S+8+k}, -8, v{S+8+k}")
    e(f"""
v_add_u32 v{S+9}, v{S+8}, v{S+9}
v_add_u32 v{S+10}, v{S+9}, v{S+10}
v_add_u32 v{S+11}, v{S+10}, v{S+11}
v_mov_b32 v{S+13}, v{S+11}
""")
    wave_scan(e, S + 13)
    e(f"""
v_sub_u32 v{S+4}, v{S+13}, v{S+11}
v_add_u32 v{S+5}, v{S+4}, v{S+8}
v_add_u32 v{S+6}, v{S+4}, v{S+9}
v_add_u32 v{S+7}, v{S+4}, v{S+10}
ds_write_b128 v{S+12}, v[{S+4}:{S+7}] offset:{P_OFF}
""")
    for k in range(4):
        e(f"v_add_u32 v{S+k}, v{S+k}, v{S+4+k}\nv_lshrrev_b32 v{S+4+k}, 2, v{S+4+k}\nv_lshl_or_b32 v{S+k}, v{S+k}, 14, v{S+4+k}")
    if o["ulate"]:
        e("s_waitcnt lgkmcnt(0)\ns_barrier\ns_setprio 0")
        low_bits()
        e("s_branch LP_offs\nLP_noscan:")
        low_bits()
        e("s_barrier\nLP_offs:")
    else:
        e("LP_noscan:\ns_waitcnt lgkmcnt(0)\ns_barrier\ns_setprio 0")
    for k in range(10):
        e(f"ds_read_b32 v{HA+k}, v{HA+k} offset:{P_OFF}")
    for k in range(10):
        e(f"s_waitcnt lgkmcnt({9-k})\nv_add_u32 v{HA+k}, v{HA+k}, v{RK+k}\nv_lshrrev_b32 v{RK+k}, 1, v{HA+k}")
    stamp(e, o, ST + 2)
    for k in range(10):
        if k in (0, 4, 8):
            e(f"s_waitcnt vmcnt({4 - k // 2})")
        e(f"""
v_lshl_or_b32 v{KJ+k}, v{KJ+k}, 8, v{U+k}
ds_write_b32 v{HA+k}, v{KJ+k} offset:{P_REC}
ds_write_b16{'_d16_hi' if k & 1 else ''} v{RK+k}, v{TH+k//2} offset:{P_REC+T_OFF}
""")
    e(f"""
s_lshl_b32 s24, s24, 16
v_lshlrev_b32 v{VD}, 16, v{VD}
v_mul_f32 v{S+8}, s24, v{VD}
v_cvt_pk_bf16_f32 v{S+8}, v{S+8}, v{S+8}
v_lshlrev_b32 v{S+8}, 16, v{S+8}
v_mul_f32 v{S+9}, {hex(C_HI)}, v{S+8}
v_fract_f32 v{S+9}, v{S+9}
v_fmac_f32 v{S+9}, {hex(C_LO)}, v{S+8}
v_sin_f32 v{S+9}, v{S+9}
v_rcp_f32 v{VD}, v{VD}
v_cvt_pk_bf16_f32 v{S+9}, v{S+9}, v{S+9}
v_lshlrev_b32 v{S+9}, 16, v{S+9}
v_mul_f32 v{S+9}, v{S+9}, v{VD}
v_cvt_pk_bf16_f32 v{S+9}, v{S+9}, v{S+9}
""")
    if npf:
        prefetch(o["pf1s"], npf)
    e(f"""
buffer_store_short v{S+9}, v34, s[52:55], 0 offen {o['aux_st']}
buffer_store_short v{S+9}, v34, s[64:67], 0 offen {o['aux_st']}
s_cmp_lg_u32 s3, 0
s_cbranch_scc1 LP_nooff
""")
    e(f"""
buffer_store_dwordx4 v[{S}:{S+3}], v{S+12}, s[44:47], 0 offen {o['aux_st']}
LP_nooff:
s_mov_b64 exec, -1
v_add_u32 v2, 16384, v1
v_add_u32 v3, 32768, v1
v_add_u32 v34, 49152, v1
s_waitcnt lgkmcnt(0)
s_barrier
""")
    stamp(e, o, ST + 3)
    for j in range(4):
        e(f"ds_read_b128 v[{4+4*j}:{7+4*j}], v1 offset:{P_REC+j*16384}")
    for j, a in enumerate((1, 2, 3, 34)):
        e(f"s_waitcnt lgkmcnt({3-j})")
        e(f"buffer_store_dwordx4 v[{4+4*j}:{7+4*j}], v{a}, s[40:43], 0 offen {o['rec_st']}")
    for _ in range(o["diagdelay"]):
        e("s_sleep 32")
    if o["pf1e"]:
        prefetch(o["pf1s"] + npf, o["pf1e"])
    if o["probe"]:
        e(f"v_mov_b32 v{ST+1}, s72\nv_mov_b32 v{ST+2}, s73")
    stamps_out(e, o, [ST, ST + 1, ST + 2, ST + 3, ST + 4], 32 << 20, 16)
    e("LP_end:\ns_endpgm")
    return e.text()


def gen_main(o):
    assert o["pf0"] + o["pf2"] <= 15
    conv = o["conv"]
    assert not conv or (REG_ROWS == 4 * RPC and not o["fused"] and not o["pf3"] and not o["spf"])
    e = Asm()
    TARGET = o["target"]
    ACC, ROW = 0, 160
    FILT = ROW + G
    UNP = FILT + 16
    A = UNP + 16
    W = A + 4
    AU = W + 4
    (VPK, VNXT, VCLEAN, VTA, VTH, VRAD, VRA, VL16, VAA, VAB, VQ, VT0, VT1, VSW, VLANE, VSE) = range(AU + 8, AU + 24)
    VCUR = VPK
    assert VSE <= 255
    SI = 36
    SM = 36
    X = ROW
    VONE = VRAD
    SE0, SE1, SE2 = 30, 31, 32
    S_NIT, S_N, S_MODE = 28, 29, 35
    S_TOT, S_BASE = 100, 101
    MA, MB = 24, 26
    S_R0, S_OFF, S_SEL, S_LO, S_SPAN, S_DSRC, S_DDST, S_DLIM, S_OOW, S_PF = 44, 45, 46, 47, 48, 49, 50, 51, 52, 54
    S_OUT, S_PFN, S_K, S_DEFF, S_RR = 55, 56, 57, 58, 59

    def diecode(d):
        e(f"""
s_brev_b32 s{d}, s2
s_lshr_b32 s{d}, s{d}, 29
s_xor_b32 s{d}, s{d}, {o["opol"]}
""")

    if not o["fused"]:
        e(f"""
{MAIN}:
s_cmp_ge_u32 s2, {NBK}
s_cbranch_scc1 LM_end
s_load_dwordx2 s[4:5], s[0:1], 0
s_load_dwordx2 s[6:7], s[0:1], 88
s_load_dwordx4 s[40:43], s[0:1], 56
s_load_dwordx2 s[44:45], s[0:1], 48
""")
        stamp(e, o, VAA)
        e(f"""
v_lshrrev_b32 v{X}, 6, v0
v_and_b32 v{VLANE}, 63, v0
v_lshlrev_b32 v{X+1}, 2, v0
v_readfirstlane_b32 s3, v{X}
v_mov_b32 v{X+2}, 0
ds_write_b32 v{X+1}, v{X+2} offset:{L_HIST}
ds_write_b32 v{X+1}, v{X+2} offset:{L_HIST+2048}
ds_write_b32 v{X+1}, v{X+2} offset:{L_ZERO}
s_and_b32 s33, s2, 7
s_lshr_b32 s34, s2, 3
s_lshl_b32 s{S_TOT}, s34, 13
""")
        if conv:
            e(f"""
s_lshl_b32 s28, s33, 1
s_lshl_b32 s28, 13, s28
s_lshr_b32 s29, s28, 2
s_cmp_ge_u32 s33, 1
s_cselect_b32 s{S_BASE}, s29, 0
s_lshl_b32 s28, s28, 14
s_cmp_le_u32 s33, 2
s_cselect_b32 s28, s28, 0
s_or_b32 s{S_BASE}, s{S_BASE}, s28
""")
        else:
            e(f"s_lshr_b32 s{S_BASE}, s33, {o['rotsh']}\ns_mul_i32 s{S_BASE}, s{S_BASE}, {o['rot']}")
        if o["oside"]:
            diecode(33)
        e(f"""
s_lshl_b32 s33, s33, 5
s_add_u32 s34, s34, s33
v_and_b32 v{X+3}, 15, v{VLANE}
v_lshlrev_b32 v{VQ}, 4, v{X+3}
v_lshrrev_b32 v{X+4}, 5, v{VLANE}
v_lshrrev_b32 v{X+11}, 4, v{VLANE}
v_and_b32 v{X+5}, 7, v{VLANE}
v_lshl_add_u32 v{X+5}, v{X+5}, 2, v{X+11}
s_lshl_b32 s33, s3, 15
s_lshl_b32 s34, s34, 2
s_add_u32 s33, s33, s34
v_lshl_add_u32 v{X+6}, v{X+5}, 10, s33
s_waitcnt lgkmcnt(0)
""")
        srd(e, 24, 6, 7, NWG * 1024, WS_OFF)
        e(f"buffer_load_dword v{VSE}, v{X+6}, s[24:27], 0 offen")
        srd(e, 8, 4, 5, o["hz"] if o["hz"] else (E * 256 + (42 << 20) if o["numa"] else E * 256))
        srd(e, 16, 6, 7, NWG * TS)
        srd(e, 20, 6, 7, RAD_BYTES, WS_RAD)
        e(f"""
v_lshlrev_b32 v{VL16}, 4, v{VLANE}
{f"s_and_b32 s5, s{S_BASE}, 1" if conv else ""}
s_mul_i32 s5, {"s5" if conv else f"s{S_BASE}"}, {(REG_ROWS if conv else CH_ROWS)*256}
s_lshl_b32 s4, s3, 10
s_add_u32 s4, s4, s5
s_add_u32 s{S_TOT}, s4, s{S_TOT}
""")
    else:
        e(f"""
{MAIN}:
s_cmp_ge_u32 s2, {NBK}
s_cbranch_scc1 LM_end
s_load_dwordx8 s[68:75], s[0:1], 8
s_load_dwordx2 s[4:5], s[0:1], 0
s_load_dwordx4 s[76:79], s[0:1], 72
s_load_dwordx2 s[6:7], s[0:1], 88
s_load_dwordx4 s[40:43], s[0:1], 56
s_load_dwordx4 s[44:47], s[0:1], 40
""")
        stamp(e, o, VAA)
        e(f"""
v_lshrrev_b32 v{X}, 6, v0
v_and_b32 v{VLANE}, 63, v0
v_lshlrev_b32 v{X+1}, 2, v0
v_readfirstlane_b32 s3, v{X}
v_lshlrev_b32 v1, 4, v0
v_lshlrev_b32 v2, 3, v0
v_lshlrev_b32 v3, 1, v0
v_mov_b32 v{X+2}, 0
ds_write_b32 v{X+1}, v{X+2} offset:{L_SEG}
ds_write_b32 v{X+1}, v{X+2} offset:{L_HIST}
ds_write_b32 v{X+1}, v{X+2} offset:{L_HIST+2048}
ds_write_b32 v{X+1}, v{X+2} offset:{L_ZERO}
s_and_b32 s33, s2, 7
s_lshr_b32 s34, s2, 3
s_lshl_b32 s{S_TOT}, s34, 13
s_lshr_b32 s{S_BASE}, s33, {o["rotsh"]}
s_mul_i32 s{S_BASE}, s{S_BASE}, {o["rot"]}
v_and_b32 v{X+3}, 15, v{VLANE}
v_lshlrev_b32 v{VQ}, 4, v{X+3}
v_lshrrev_b32 v{X+4}, 5, v{VLANE}
v_lshrrev_b32 v{X+11}, 4, v{VLANE}
v_and_b32 v{X+5}, 7, v{VLANE}
v_lshl_add_u32 v{X+5}, v{X+5}, 2, v{X+11}
s_lshl_b32 s33, s3, 5
v_add_u32 v{X+5}, s33, v{X+5}
s_lshl_b32 s33, s2, 11
v_lshl_add_u32 v{X+6}, v{X+5}, 3, s33
v_subrev_u32 v{X+26}, {NWG}, v{X+5}
v_ashrrev_i32 v{X+26}, 31, v{X+26}
v_lshlrev_b32 v{VL16}, 4, v{VLANE}
s_mul_i32 s33, s{S_BASE}, {CH_ROWS*256}
s_lshl_b32 s34, s3, 10
s_add_u32 s33, s33, s34
s_add_u32 s{S_TOT}, s33, s{S_TOT}
s_waitcnt lgkmcnt(0)
s_mov_b64 s[76:77], s[44:45]
s_mov_b64 s[44:45], s[46:47]
""")
        srd(e, 8, 4, 5, o["hz"] if o["hz"] else E * 256)
        srd(e, 16, 6, 7, NWG * TS)
        srd(e, 20, 6, 7, RAD_BYTES, WS_RAD)
    pfop = f"buffer_load_dwordx4 v[{X+24}:{X+27}], v{VL16}, s[8:11], s{S_TOT} offen\ns_add_u32 s{S_TOT}, s{S_TOT}, {32*8192}"

    def prefill():
        for base, per, val in ((L_REC, LCAP * 4, F_DUMMY | ((E - 1) << 8) if o["dummyrow"] else DUMMY_REC), (L_TH, LCAP * 2, 0)):
            e(f"s_mul_i32 s4, s3, {per}\ns_add_u32 s4, s4, {base}\nv_lshl_add_u32 v{VT0}, v{VLANE}, 4, s4")
            r = A if val else UNP
            for k in range(4):
                e(f"v_mov_b32 v{r+k}, {hex(val)}")
            n = per // 1024
            for k in range(n):
                e(f"ds_write_b128 v{VT0}, v[{r}:{r+3}] offset:{1024*k}")
            rest = per % 1024 // 16
            if rest:
                assert rest <= 32
                e(f"s_mov_b64 exec, {hex((1 << rest) - 1) if rest < 32 else '0xffffffff'}")
                if rest == 32:
                    e("s_mov_b32 exec_hi, 0")
                e(f"ds_write_b128 v{VT0}, v[{r}:{r+3}] offset:{1024*n}\ns_mov_b64 exec, -1")
    def self_slots(r0, th):
        if o["oside"]:
            diecode(4)
        e(f"""
{"s_and_b32 s33, s2, -8" if o["oside"] else ""}
s_lshl_b32 s33, {"s33" if o["oside"] else "s2"}, 5
s_lshl_b32 s34, s3, 2
s_add_u32 s33, s33, s34
s_lshl_b32 s34, s3, 26
s_or_b32 s34, s34, {hex(F_SELF)}
v_mov_b32 v{th}, 0
""")
        for k in range(2):
            e(f"""
v_add_u32 v{VT0}, {64*k}, v{VLANE}
v_lshrrev_b32 v{VT1}, 2, v{VT0}
{f"v_xor_b32 v{r0+k}, s4, v{VT1}" if o["oside"] else ""}
{f"v_and_b32 v{r0+k}, 7, v{r0+k}" if o["oside"] else ""}
v_mul_u32_u24 v{VT1}, {STRIDE_ROWS}, v{VT1}
{f"v_lshl_add_u32 v{VT1}, v{r0+k}, 5, v{VT1}" if o["oside"] else ""}
v_and_b32 v{r0+k}, 3, v{VT0}
v_add3_u32 v{VT1}, v{VT1}, v{r0+k}, s33
v_lshl_or_b32 v{r0+k}, v{VT1}, 7, v{VT0}
v_lshlrev_b32 v{r0+k}, 1, v{r0+k}
v_or_b32 v{r0+k}, s34, v{r0+k}
""")
        e(f"s_cmp_lt_u32 s2, {FULL_BK}\ns_cselect_b32 s34, 16, 12\ns_bfm_b32 s34, s34, 0")
    FR, FT, FX, FS, FA, FK = 0, 32, 48, 52, 56, 92

    def w_loads():
        e(f"s_load_dwordx2 s[{SE0}:{SE0+1}], s[44:45], 0")
        srd(e, 12, 40, 41, 768)
        srd(e, 36, 42, 43, 256)
        e(f"""
v_bfe_u32 v{X+7}, v{VLANE}, 4, 1
v_lshl_add_u32 v{X+7}, v{X+7}, 1, v{X+4}
v_lshl_add_u32 v{X+7}, v{X+7}, 1, v{VQ}
buffer_load_ushort v{W}, v{X+7}, s[12:15], 0 offen
buffer_load_ushort v{FILT}, v{X+7}, s[12:15], 0 offen offset:256
buffer_load_ushort v{W+1}, v{X+7}, s[12:15], 0 offen offset:512
buffer_load_ushort v{FILT+1}, v{X+7}, s[36:39], 0 offen
buffer_load_ushort v{W+2}, v{X+7}, s[12:15], 0 offen offset:8
buffer_load_ushort v{FILT+2}, v{X+7}, s[12:15], 0 offen offset:264
buffer_load_ushort v{W+3}, v{X+7}, s[12:15], 0 offen offset:520
buffer_load_ushort v{FILT+3}, v{X+7}, s[36:39], 0 offen offset:8
""")

    def sweep_consts():
        e(f"""
v_and_b32 v{X+8}, 1, v{VLANE}
v_cmp_eq_u32 s[4:5], v{X+8}, v{X+4}
v_bfe_u32 v{X+9}, v{VLANE}, 2, 1
v_cmp_eq_u32 vcc, 0, v{X+9}
s_and_b64 s[{MA}:{MA+1}], s[4:5], vcc
s_andn2_b64 s[{MB}:{MB+1}], s[4:5], vcc
v_bfe_u32 v{X+10}, v{VLANE}, 1, 1
v_lshlrev_b32 v{X+8}, 4, v{X+8}
v_mov_b32 v{X+12}, 0x3f80
v_lshlrev_b32 v{X+8}, v{X+8}, v{X+12}
v_sub_u32 v{X+12}, v{X+11}, v{X+10}
v_bfe_u32 v{X+13}, v{VLANE}, 2, 2
v_lshl_add_u32 v{X+13}, v{X+12}, 2, v{X+13}
""")
        for u in range(2):
            for r in range(4):
                e(f"v_cmp_eq_u32 vcc, {8*u+r}, v{X+13}\ns_nop 1\nv_cndmask_b32 v{AU+4*u+r}, 0, v{X+8}, vcc")

    def extra_slots():
        e(f"""
v_lshrrev_b32 v{X+16}, 16, v{VSE}
v_and_b32 v{X+17}, 0xffff, v{VSE}
v_sub_u32 v{X+16}, v{X+16}, v{X+17}
v_cmp_lt_u32 s[4:5], 64, v{X+16}
s_mov_b64 s[12:13], 0
s_mov_b64 s[14:15], 0
s_and_b32 s4, s4, 0x00ff00ff
s_and_b32 s5, s5, 0x00ff00ff
s_cmp_eq_u64 s[4:5], 0
s_cbranch_scc1 LM_noextra
v_mov_b32 v{X+17}, 128
v_cmp_gt_u32 vcc, v{X+16}, v{X+17}
s_bcnt1_i32_b64 s6, s[4:5]
s_cmp_gt_u32 s6, 2
s_cselect_b32 s{S_MODE}, 1, 0
s_cmp_lg_u64 vcc, 0
s_cselect_b32 s{S_MODE}, 1, s{S_MODE}
""")
        for k in range(2):
            if k:
                e("s_cmp_eq_u64 s[4:5], 0\ns_cbranch_scc1 LM_noextra")
            e(f"""
s_ff1_i32_b64 s6, s[4:5]
s_bitset0_b64 s[4:5], s6
v_readlane_b32 s7, v{VSE}, s6
s_and_b32 s34, s6, 7
s_lshr_b32 s6, s6, 4
s_lshl_b32 s34, s34, 2
s_add_u32 s6, s6, s34
s_mul_i32 s6, s6, {TS}
s_add_u32 s6, s6, s33
s_and_b32 s34, s7, 0xffff
s_lshr_b32 s7, s7, 16
s_add_u32 s34, s34, 64
v_add_u32 v{X+17}, s34, v{VLANE}
v_cmp_gt_u32 s[{12+2*k}:{13+2*k}], s7, v{X+17}
v_lshlrev_b32 v{X+18}, 2, v{X+17}
v_lshlrev_b32 v{X+17}, 1, v{X+17}
v_add_u32 v{X+17}, {T_OFF}, v{X+17}
s_mov_b64 exec, s[{12+2*k}:{13+2*k}]
buffer_load_dword v{FX+2*k}, v{X+18}, s[16:19], s6 offen
buffer_load_ushort v{FX+2*k+1}, v{X+17}, s[16:19], s6 offen
s_mov_b64 exec, -1
""")

    def seg_loads(i, so="s33"):
        t, en, ta = X + 16 + 3 * (i & 1), X + 17 + 3 * (i & 1), X + 18 + 3 * (i & 1)
        m = SM + 8 * i
        e(f"""
v_mov_b32_dpp v{t}, v{VSE} row_newbcast:{i} row_mask:0xf bank_mask:0xf
v_lshrrev_b32 v{en}, 16, v{t}
v_and_b32 v{t}, 0xffff, v{t}
v_add_u32 v{t}, v{t}, v{X+14}
v_sub_u32 v{en}, v{en}, v{t}
v_cmp_lt_i32 s[{m}:{m+1}], 0, v{en}
v_lshl_add_u32 v{ta}, v{t}, 1, v{X+13}
v_lshl_add_u32 v{t}, v{t}, 2, v{X+15}
v_cmp_lt_i32 s[{m+2}:{m+3}], 1, v{en}
v_cmp_lt_i32 s[{m+4}:{m+5}], 2, v{en}
v_cmp_lt_i32 s[{m+6}:{m+7}], 3, v{en}
s_mov_b64 exec, s[{m}:{m+1}]
buffer_load_dwordx4 v[{FR+4*i}:{FR+4*i+3}], v{t}, s[16:19], {so} offen {o['seg_ld']}
buffer_load_dwordx2 v[{FT+2*i}:{FT+2*i+1}], v{ta}, s[16:19], {so} offen {o['seg_ld']}
s_mov_b64 exec, -1
{f"s_add_u32 s33, s33, {4*TS}" if so == "s33" else ""}
""")

    def seg_consts():
        e(f"""
v_lshlrev_b32 v{X+14}, 2, v{X+3}
v_mul_u32_u24 v{X+15}, {TS}, v{X+11}
v_add_u32 v{X+13}, {T_OFF}, v{X+15}
v_mov_b32 v{VONE}, 4
""")

    def ell_consts():
        e(f"""
s_lshl_b32 s{SE2}, s{SE1}, 16
s_and_b32 s{SE1}, s{SE0}, 0xffff0000
s_lshl_b32 s{SE0}, s{SE0}, 16
""")

    def w_merge():
        for i in range(4):
            e(f"v_lshl_or_b32 v{W+i}, v{FILT+i}, 16, v{W+i}")

    def setexec(m):
        if m == "all":
            e("s_mov_b64 exec, -1")
        elif m == "lo16":
            e("s_mov_b32 exec_lo, s34\ns_mov_b32 exec_hi, 0")
        else:
            e(f"s_mov_b64 exec, s[{m}:{m+1}]")

    def phase1(slots, close=True):
        for (m, r, th, hi, a, k, wait) in slots:
            if wait is not None:
                e(f"s_waitcnt vmcnt({wait})")
            setexec(m)
            e(f"""
v_lshrrev_b32 v{a}, {KEY_SHIFT-2}, v{r}
v_and_b32 v{a}, {hex(NW*NBIN*4-4)}, v{a}
ds_add_rtn_u32 v{k}, v{a}, v{VONE} offset:{L_HIST}
""")
        e("s_mov_b64 exec, -1")
        if close:
            e("s_waitcnt vmcnt(0) lgkmcnt(0)\ns_barrier")

    fast = [("all", FS, FS + 2, 0, FA, FK, None), ("lo16", FS + 1, FS + 2, 0, FA + 1, FK + 1, None)]
    for i in range(8):
        for j in range(4):
            n = len(fast)
            fast.append((SM + 8 * i + 2 * j, FR + 4 * i + j, FT + 2 * i + j // 2, j & 1, FA + n, FK + n, 15 - 2 * i if j == 0 else None))
    fast += [(12, FX, FX + 1, 0, FA + 34, FK + 34, 0 if o["fused"] else None), (14, FX + 2, FX + 3, 0, FA + 35, FK + 35, None)]

    if not o["fused"]:
        w_loads()
        if o["pf0"]:
            e("s_barrier")
        for _ in range(o["pf0"]):
            e(pfop)
        prefill()
        seg_consts()
        e(f"s_mul_i32 s33, s3, {32*TS}\ns_mov_b32 s{S_MODE}, 0\ns_waitcnt vmcnt({o['pf0'] + 8})")
        if o["ss"]:
            stamp(e, o, VAB)
        extra_slots()
        e("LM_noextra:")
        for i in range(8):
            seg_loads(i)
        if o["ss"]:
            stamp(e, o, VCUR)
        sweep_consts()
        self_slots(FS, FS + 2)
        e("s_waitcnt lgkmcnt(0)")
        ell_consts()
        e("s_barrier")
    else:
        NE = TILE // 512
        NP = NE // 4
        JI, KJ, TH, VD, U, HA, RK, S = 4, 24, 44, 54, 56, 76, 96, 116
        VN, VFOUR, VR, VE2 = 132, 133, 134, 136
        PS = L_RING
        assert TILE == 512 * NE and NE == 20 and TS <= RBYTES + 128 and PS + T_OFF < 65536
        fl = o["in_flags"]
        so16 = ["0", "s80", "s81", "s82", "s83"]
        so8 = ["0", "s84", "s80", "s85", "s81"]
        srd(e, 60, 78, 79, 4)
        e(f"""
s_load_dword s86, s[76:77], 0
s_mul_i32 s4, s2, {TILE*4}
s_mov_b32 s80, 8192
s_mov_b32 s81, 16384
s_mov_b32 s82, 24576
s_mov_b32 s83, 32768
s_mov_b32 s84, 4096
s_mov_b32 s85, 12288
""")
        srd(e, 48, 74, 75, TILE * 4, "s4")
        w_loads()
        e(f"s_cmp_ge_u32 s2, {NWG}\ns_cbranch_scc1 LF_noji")
        for p in range(NP):
            e(f"buffer_load_dwordx4 v[{JI+4*p}:{JI+4*p+3}], v1, s[48:51], {so16[p]} offen {fl}")
        e(f"""
s_or_b32 s5, s2, s3
s_cmp_lg_u32 s5, 0
s_cbranch_scc1 LF_noji
s_memrealtime s[28:29]
s_waitcnt lgkmcnt(0)
s_or_b32 s28, s28, 1
v_mov_b32 v{S}, s28
v_mov_b32 v{S+1}, 0
s_mov_b64 exec, 1
buffer_store_dword v{S}, v{S+1}, s[60:63], 0 offen sc1
s_mov_b64 exec, -1
LF_noji:
""")
        srd(e, 52, 72, 73, TILE * 4, "s4")
        e(f"s_mul_i32 s5, s2, {TILE*2}")
        srd(e, 56, 70, 71, TILE * 2, "s5")
        e(f"s_mul_i32 s5, s2, {E//NWG*2}")
        srd(e, 64, 68, 69, E // NWG * 2, "s5")
        e(f"s_add_u32 s5, s5, {WS_RAD}")
        srd(e, 92, 16, 17, E // NWG * 2, "s5")
        e(f"s_add_u32 s5, s5, {E*2}")
        srd(e, 96, 16, 17, E // NWG * 2, "s5")
        e(f"s_mul_i32 s5, s2, {TS}")
        srd(e, 88, 16, 17, TS, "s5")
        srd(e, 12, 16, 17, NBK * 2048, WS_OFF)
        if o["touch"]:
            e(f"buffer_load_dwordx2 v[{X+24}:{X+25}], v{X+6}, s[12:15], 0 offen sc1")
        prefill()
        sweep_consts()
        seg_consts()
        e(f"""
v_mov_b32 v{VN}, 0
v_mov_b32 v{VFOUR}, 4
v_add_u32 v{VE2}, 1024, v3
s_mov_b32 s87, 0x380
s_mov_b32 s47, 0xf8
s_mov_b32 s34, {o["tmo"]}
s_waitcnt lgkmcnt(0)
""")
        ell_consts()
        e(f"""
s_barrier
s_cmp_lt_u32 s2, {NWG}
s_cbranch_scc1 LF_prod
s_waitcnt vmcnt(0)
""")
        w_merge()
        e(f"""
s_branch LF_nonce
LF_prod:
s_waitcnt vmcnt({o["fji"]})
buffer_load_ushort v{VD}, v3, s[64:67], 0 offen
buffer_load_ushort v{VD+1}, v{VE2}, s[64:67], 0 offen
""")
        for p in range(NP):
            e(f"buffer_load_dwordx4 v[{KJ+4*p}:{KJ+4*p+3}], v1, s[52:55], {so16[p]} offen {fl}")
            e(f"buffer_load_dwordx2 v[{TH+2*p}:{TH+2*p+1}], v2, s[56:59], {so8[p]} offen {fl}")
        e(f"""
s_cmp_lg_u32 s3, 0
s_cbranch_scc1 LF_nora
buffer_load_dword v{VN}, v{VN}, s[60:63], 0 offen sc1
LF_nora:
""")
        w_merge()
        for k in range(NE):
            if k % 4 == 0:
                e(f"s_waitcnt vmcnt({2*NP + 2 + NP - 1 - k//4})")
            e(f"""
v_lshlrev_b32 v{U+k}, 2, v{JI+k}
v_lshrrev_b32 v{HA+k}, 6, v{JI+k}
v_bfi_b32 v{HA+k}, s87, v{U+k}, v{HA+k}
v_and_b32 v{HA+k}, 0x3fc, v{HA+k}
ds_add_rtn_u32 v{RK+k}, v{HA+k}, v{VFOUR} offset:{L_SEG}
""")
        for k in range(NE):
            e(f"""
v_lshl_add_u32 v{U+k}, v{JI+k}, 23, v{JI+k}
v_lshrrev_b32 v{JI+k}, 10, v{JI+k}
v_add_u32 v{U+k}, v{U+k}, v{U+k}
v_and_b32 v{U+k}, 0x1c000006, v{U+k}
v_and_or_b32 v{U+k}, v{JI+k}, s47, v{U+k}
""")
        e(f"""
s_waitcnt lgkmcnt(0)
s_barrier
s_cmp_lg_u32 s3, 0
s_cbranch_scc1 LF_noscan
s_setprio 3
ds_read_b128 v[{S}:{S+3}], v{VL16} offset:{L_SEG}
s_waitcnt lgkmcnt(0)
""")
        for k in range(4):
            e(f"v_add_u32 v{S+8+k}, 4, v{S+k}\nv_and_b32 v{S+8+k}, -8, v{S+8+k}")
        e(f"""
v_add_u32 v{S+9}, v{S+8}, v{S+9}
v_add_u32 v{S+10}, v{S+9}, v{S+10}
v_add_u32 v{S+11}, v{S+10}, v{S+11}
v_mov_b32 v{S+13}, v{S+11}
""")
        wave_scan(e, S + 13)
        e(f"""
v_sub_u32 v{S+4}, v{S+13}, v{S+11}
v_add_u32 v{S+5}, v{S+4}, v{S+8}
v_add_u32 v{S+6}, v{S+4}, v{S+9}
v_add_u32 v{S+7}, v{S+4}, v{S+10}
ds_write_b128 v{VL16}, v[{S+4}:{S+7}] offset:{L_P}
""")
        for k in range(4):
            e(f"v_add_u32 v{S+k}, v{S+k}, v{S+4+k}\nv_lshrrev_b32 v{S+8+k}, 2, v{S+4+k}\nv_lshl_or_b32 v{S+k}, v{S+k}, 14, v{S+8+k}")
        e(f"""
ds_write_b128 v{VL16}, v[{S}:{S+3}] offset:{L_Q}
LF_noscan:
s_waitcnt lgkmcnt(0)
s_barrier
s_setprio 0
""")
        for h in range(2):
            for k in range(10 * h, 10 * h + 10):
                e(f"ds_read_b32 v{HA+k}, v{HA+k} offset:{L_P}")
            for k in range(10 * h, 10 * h + 10):
                e(f"s_waitcnt lgkmcnt({10*h+9-k})\nv_add_u32 v{HA+k}, v{HA+k}, v{RK+k}\nv_lshrrev_b32 v{RK+k}, 1, v{HA+k}")
        for k in range(NE):
            if k % 4 == 0:
                e(f"s_waitcnt vmcnt({2*NP - 2 - k//2})")
            e(f"""
v_lshl_or_b32 v{KJ+k}, v{KJ+k}, 8, v{U+k}
ds_write_b32 v{HA+k}, v{KJ+k} offset:{PS}
ds_write_b16{'_d16_hi' if k & 1 else ''} v{RK+k}, v{TH+k//2} offset:{PS+T_OFF}
""")
        e("s_lshl_b32 s86, s86, 16")
        for k in range(2):
            r, d = VR + k, VD + k
            e(f"""
v_lshlrev_b32 v{d}, 16, v{d}
v_mul_f32 v{S+8}, s86, v{d}
v_cvt_pk_bf16_f32 v{S+8}, v{S+8}, v{S+8}
v_lshlrev_b32 v{S+8}, 16, v{S+8}
v_mul_f32 v{r}, {hex(C_HI)}, v{S+8}
v_fract_f32 v{r}, v{r}
v_fmac_f32 v{r}, {hex(C_LO)}, v{S+8}
v_sin_f32 v{r}, v{r}
v_rcp_f32 v{d}, v{d}
v_cvt_pk_bf16_f32 v{r}, v{r}, v{r}
v_lshlrev_b32 v{r}, 16, v{r}
v_mul_f32 v{r}, v{r}, v{d}
v_cvt_pk_bf16_f32 v{r}, v{r}, v{r}
buffer_store_short v{r}, v{(3, VE2)[k]}, s[92:95], 0 offen sc1
buffer_store_short v{r}, v{(3, VE2)[k]}, s[96:99], 0 offen sc1
""")
        e(f"""
LF_nonce:
s_cmp_lg_u32 s3, 0
s_cbranch_scc1 LF_haven
LF_noncepoll:
v_readfirstlane_b32 s4, v{VN}
s_cmp_lg_u32 s4, 0
s_cbranch_scc1 LF_gotn
s_sub_u32 s34, s34, 1
s_cbranch_scc1 LM_end
s_sleep 2
buffer_load_dword v{VN}, v{VN}, s[60:63], 0 offen sc1
s_waitcnt vmcnt(0)
s_branch LF_noncepoll
LF_gotn:
v_mov_b32 v{S}, 0
ds_write_b32 v{S}, v{VN} offset:{L_N+32}
LF_haven:
v_add_u32 v2, 32768, v1
v_mov_b32 v{S}, 0
s_waitcnt lgkmcnt(0)
s_barrier
ds_read_b32 v{X+27}, v{S} offset:{L_N+32}
s_cmp_ge_u32 s2, {NWG}
s_cbranch_scc1 LF_cons
""")
        if not o["ss"]:
            stamp(e, o, VAB)
        for j in range(8):
            e(f"ds_read_b128 v[{4+4*j}:{7+4*j}], v{1 if j < 4 else 2} offset:{PS+(j%4)*8192}")
        e(f"ds_read_b32 v{S}, v{X+1} offset:{L_Q}\nv_add_u32 v3, 57344, v1")
        for j in range(8):
            e(f"s_waitcnt lgkmcnt({8-j})")
            if j < 4:
                e(f"buffer_store_dwordx4 v[{4+4*j}:{7+4*j}], v1, s[88:91], {so16[j]} offen {o['rec_st']}")
            elif j < 7:
                e(f"buffer_store_dwordx4 v[{4+4*j}:{7+4*j}], v2, s[88:91], {so16[j-4]} offen {o['rec_st']}")
            else:
                e(f"buffer_store_dwordx4 v[{4+4*j}:{7+4*j}], v3, s[88:91], 0 offen {o['rec_st']}")
        e(f"""
v_lshrrev_b32 v{S+2}, 7, v{X+1}
v_bfe_u32 v{S+3}, v{X+1}, 2, 5
v_lshl_add_u32 v{S+2}, v{S+3}, 3, v{S+2}
s_lshl_b32 s4, s2, 3
v_lshl_add_u32 v{S+2}, v{S+2}, 11, s4
s_waitcnt lgkmcnt(0)
v_mov_b32 v{S+1}, v{X+27}
s_waitcnt vmcnt(0)
s_barrier
s_cmp_ge_u32 s3, 4
s_cbranch_scc1 LF_cons
""")
        if o["early"]:
            e(f"""
buffer_load_dwordx2 v[{X+24}:{X+25}], v{X+6}, s[12:15], 0 offen sc1
buffer_store_dwordx2 v[{S}:{S+1}], v{S+2}, s[12:15], 0 offen sc1
s_waitcnt vmcnt(1)
s_branch LF_polled
""")
        else:
            e(f"buffer_store_dwordx2 v[{S}:{S+1}], v{S+2}, s[12:15], 0 offen sc1")
        e("LF_cons:")
        if o["ss"]:
            stamp(e, o, VAB)

        def poll(label=""):
            e(f"""
buffer_load_dwordx2 v[{X+24}:{X+25}], v{X+6}, s[12:15], 0 offen sc1
s_waitcnt vmcnt(0) lgkmcnt(0)
{label}
v_xor_b32 v{X+25}, v{X+25}, v{X+27}
v_and_b32 v{VSE}, v{X+24}, v{X+26}
v_and_b32 v{X+25}, v{X+25}, v{X+26}
v_cmp_ne_u32 s[28:29], 0, v{X+25}
s_or_b32 s28, s28, s29
""")
        poll("LF_polled:")
        e(f"s_mul_i32 s33, s3, {32*TS}\ns_mov_b32 s{S_MODE}, 0")
        if o["dyn"]:
            e("s_mov_b32 s5, 0xff\ns_mov_b32 s6, 0\nLF_round:\ns_mov_b32 s7, 0\ns_lshr_b32 s29, s28, 16\ns_or_b32 s28, s28, s29\ns_andn2_b32 s28, s5, s28")
            for i in range(8):
                e(f"s_bitcmp1_b32 s28, {i}\ns_cbranch_scc0 LF_nreq{i}\ns_add_u32 s4, s33, {4*TS*i}")
                seg_loads(i, "s4")
                e(f"LF_nreq{i}:")
            e("s_and_b32 s7, s28, 0xff\ns_andn2_b32 s5, s5, s7\nLF_count:")
            for i in range(8):
                e(f"s_bitcmp1_b32 s6, {i}\ns_cbranch_scc0 LF_ncnt{i}")
                phase1([sl[:6] + (None,) for sl in fast[2 + 4 * i:6 + 4 * i]], close=False)
                e(f"LF_ncnt{i}:")
            e(f"""
s_mov_b32 s6, s7
s_mov_b32 s7, 0
s_cmp_lg_u32 s5, 0
s_cbranch_scc1 LF_again
s_cmp_eq_u32 s6, 0
s_cbranch_scc1 LF_counted
s_waitcnt vmcnt(0)
s_branch LF_count
LF_again:
s_sub_u32 s34, s34, 1
s_cbranch_scc1 LM_end
{f"s_sleep {o['slp']}" if o["slp"] else ""}
""")
            poll()
            e("s_branch LF_round\nLF_counted:")
        else:
            for i in range(8):
                e(f"""
LF_wait{i}:
s_and_b32 s4, s28, {hex(0x10001 << i)}
s_cbranch_scc0 LF_go{i}
s_sub_u32 s34, s34, 1
s_cbranch_scc1 LM_end
{f"s_sleep {o['slp']}" if o["slp"] else ""}
""")
                poll()
                e(f"s_branch LF_wait{i}\nLF_go{i}:")
                seg_loads(i)
        if o["ss"]:
            stamp(e, o, VCUR)
            if o["stamps"]:
                e(f"v_mov_b32 v{VCLEAN}, s34")
        e(f"s_mul_i32 s33, s3, {32*TS}")
        extra_slots()
        e("LM_noextra:")
        self_slots(FS, FS + 2)

    def phase2(slots, side=(), lead=4):
        ops = []
        n = len(slots)
        side = list(side)
        for s in range(n + lead):
            if s < n:
                m, r, th, hi, a, k, _ = slots[s]
                setexec(m)
                e(f"ds_read_b32 v{a}, v{a} offset:{L_HIST}")
                ops.append(("A", s))
            if side and s % 2 == 1:
                e("s_mov_b64 exec, -1")
                e(side.pop(0))
            if s >= lead:
                m, r, th, hi, a, k, _ = slots[s - lead]
                younger = len(ops) - 1 - ops.index(("A", s - lead))
                assert younger <= 15
                setexec(m)
                e(f"""
s_waitcnt lgkmcnt({younger})
v_add_u32 v{a}, v{a}, v{k}
ds_write_b32 v{a}, v{r} offset:{L_REC - 2*CBIAS}
v_lshrrev_b32 v{k}, 1, v{a}
ds_write_b16{"_d16_hi" if hi else ""} v{k}, v{th} offset:{L_TH - CBIAS}
""")
                ops += [("W", s - lead), ("T", s - lead)]
        e("s_mov_b64 exec, -1")
        assert not side

    def scan_exchange(flagged):
        e(f"s_lshl_b32 s4, s3, 9\nv_mov_b32 v{X+7}, {NBIN-1}")
        for k in range(2):
            e(f"""
v_lshl_add_u32 v{X+4+k}, v{VLANE}, 1, {k}
""")
            if conv and flagged:
                e(f"""
v_mul_u32_u24 v{X+6}, 37, v{X+4+k}
v_lshrrev_b32 v{X+6}, 7, v{X+6}
v_and_b32 v{X+6}, 62, v{X+6}
v_bfe_i32 v{X+6}, s{S_BASE}, v{X+6}, 2
v_cmp_gt_u32 vcc, {NCH}, v{X+4+k}
v_mad_i32_i24 v{X+k}, v{X+6}, {REG_CH}, v{X+4+k}
s_nop 0
""")
            else:
                e(f"""
{f"v_add_u32 v{X+k}, s{S_BASE}, v{X+4+k}" if flagged else f"v_mov_b32 v{X+k}, v{X+4+k}"}
v_subrev_u32 v{X+6}, {NCH}, v{X+k}
v_cmp_gt_u32 vcc, {NCH}, v{X+4+k}
v_min_u32 v{X+k}, v{X+k}, v{X+6}
s_nop 0
""")
            e(f"""
v_cndmask_b32 v{X+k}, v{X+7}, v{X+k}, vcc
v_lshl_add_u32 v{X+k}, v{X+k}, 2, s4
ds_read_b32 v{X+2+k}, v{X+k} offset:{L_HIST}
""")
        e(f"""
s_mul_i32 s5, s3, {LCAP*4}
s_add_u32 s5, s5, {2*CBIAS}
s_waitcnt lgkmcnt(0)
v_add_u32 v{X+3}, v{X+2}, v{X+3}
v_mov_b32 v{X+6}, v{X+3}
""")
        wave_scan(e, X + 6)
        e(f"""
v_sub_u32 v{X+3}, v{X+6}, v{X+3}
v_readlane_b32 s{S_N}, v{X+6}, 63
v_add_u32 v{X+3}, s5, v{X+3}
v_add_u32 v{X+2}, v{X+3}, v{X+2}
s_lshr_b32 s{S_N}, s{S_N}, 2
s_mov_b32 s6, s{S_N}
""")
        if flagged:
            e(f"""
s_max_u32 s6, s6, {TARGET}
s_sub_u32 s7, s6, s{S_N}
s_mul_i32 s7, s7, {M_STRETCH}
v_mul_u32_u24 v{X+4}, s7, v{X+4}
v_mul_u32_u24 v{X+5}, s7, v{X+5}
v_lshrrev_b32 v{X+4}, 16, v{X+4}
v_lshrrev_b32 v{X+5}, 16, v{X+5}
v_lshl_add_u32 v{X+3}, v{X+4}, 2, v{X+3}
v_lshl_add_u32 v{X+2}, v{X+5}, 2, v{X+2}
s_cmp_lg_u32 s{S_MODE}, 0
s_cselect_b32 s6, 0x7fffffff, s6
""")
        e(f"""
ds_write_b32 v{X}, v{X+3} offset:{L_HIST}
ds_write_b32 v{X+1}, v{X+2} offset:{L_HIST}
s_lshl_b32 s4, s3, 2
v_mov_b32 v{X+4}, s4
v_mov_b32 v{X+5}, s6
ds_write_b32 v{X+4}, v{X+5} offset:{L_N}
v_mov_b32 v{X+6}, 0
s_waitcnt lgkmcnt(0)
s_barrier
ds_read_b128 v[{X}:{X+3}], v{X+6} offset:{L_N}
ds_read_b128 v[{X+8}:{X+11}], v{X+6} offset:{L_N+16}
s_waitcnt lgkmcnt(0)
v_max3_u32 v{X}, v{X}, v{X+1}, v{X+2}
v_max3_u32 v{X+3}, v{X+3}, v{X+8}, v{X+9}
v_max3_u32 v{X}, v{X}, v{X+10}, v{X+11}
v_max_u32 v{X}, v{X}, v{X+3}
s_nop 0
v_readfirstlane_b32 s{S_NIT}, v{X}
""")

    if not o["ss"] and not o["fused"]:
        stamp(e, o, VAB)
    phase1(fast[:2] + fast[34:] if o["fused"] and o["dyn"] else fast)
    if not o["fused"]:
        w_merge()
    stamp(e, o, VNXT if o["ss"] else VCUR)
    scan_exchange(True)
    if not o["ss"]:
        stamp(e, o, VNXT)
    e(f"""
s_cmp_gt_u32 s{S_NIT}, {LCAP}
s_cbranch_scc1 LM_slow
""")
    if conv:
        e(f"""
s_bfe_i32 s6, s{S_BASE}, 0x20000
s_bfe_i32 s33, s{S_BASE}, 0x20002
s_sub_u32 s33, s33, s6
s_mul_i32 s6, s6, {REG_ROWS*2}
s_mul_i32 s33, s33, {REG_ROWS*2}
""")
    else:
        e(f"s_mul_i32 s6, s{S_BASE}, {CH_ROWS*2}")
    e(f"""
s_mul_i32 s4, s3, {RPW}
s_add_u32 s6, s6, s4
s_add_u32 s7, s4, {L_RING}
""")
    side = [f"""
s_mov_b32 exec_hi, {hex((1 << (RPW // 16 - 32)) - 1)}
s_mov_b32 m0, s7
s_add_u32 s7, s7, {RPC*2}
buffer_load_dwordx4 v{VL16}, s[20:23], s6 offen lds
s_add_u32 s6, s6, {RPC*2}
"""] * (RH0 // RPC)
    if conv:
        assert 4 < RH0 // RPC <= 8
        side[3] += "s_add_u32 s6, s6, s33\n"
    side += [pfop] * o["pf2"]
    phase2(fast, side)

    e(f"""
LM_tail:
s_load_dwordx2 s[12:13], s[0:1], 72
s_add_u32 s{S_NIT}, s{S_NIT}, {G-1}
s_and_b32 s{S_NIT}, s{S_NIT}, {-G}
s_mul_i32 s5, s3, {LCAP*4}
{f"s_mov_b32 s{S_R0}, s{S_BASE}" if conv else f"s_mul_i32 s{S_R0}, s{S_BASE}, {CH_ROWS}"}
s_cmp_lg_u32 s{S_MODE}, 0
s_cselect_b32 s{S_R0}, 0, s{S_R0}
s_cselect_b32 s{S_SPAN}, 0, {RROWS - 64 - RPC}
s_mov_b32 s{S_LO}, {RH0 + RPC + 64 - RROWS}
s_mov_b32 s{S_OFF}, {(2 * (RH0 + RPC) + 128) % RBYTES}
s_mov_b32 s{S_SEL}, 0x0c040c00
s_mul_i32 s4, s3, {RPW}
s_add_u32 s{S_DLIM}, s4, {L_RING + RBYTES}
s_add_u32 s{S_DDST}, s4, {L_RING + 2 * RH0}
{f"s_mov_b32 s{S_DSRC}, 0" if conv else f"s_lshl_b32 s{S_DSRC}, s{S_R0}, 1"}
s_add_u32 s{S_DSRC}, s{S_DSRC}, s4
s_add_u32 s{S_DSRC}, s{S_DSRC}, {2 * RH0}
""")
    if conv:
        e(f"""
s_mov_b32 s{S_K}, {RH0 // RPC}
s_bfe_i32 s{S_DEFF}, s{S_R0}, {hex(0x20000 + 2 * (RH0 // RPC // 4))}
s_mul_i32 s{S_DEFF}, s{S_DEFF}, {REG_ROWS*2}
s_add_u32 s{S_DEFF}, s{S_DEFF}, s{S_DSRC}
s_mov_b32 s{S_RR}, {REG_ROWS}
""")
    if o["spf"]:
        e(f"""
s_lshl_b32 s{S_PF}, s2, 3
s_add_u32 s{S_PF}, s{S_PF}, s3
s_mul_i32 s{S_PF}, s{S_PF}, {SPW}
s_add_u32 s{S_PF}, s{S_PF}, {o["spf"] * 256}
""")
    if o["pf3"]:
        e(f"s_sub_u32 s{S_PF}, s{S_TOT}, {32*8192}\ns_cmp_lg_u32 s{S_MODE}, 0\ns_cselect_b32 s{S_PF}, 0, s{S_PF}")
    e(f"""
v_lshlrev_b32 v{VL16}, 4, v{VLANE}
v_and_b32 v{X}, 15, v{VLANE}
v_lshrrev_b32 v{X+1}, 4, v{VLANE}
v_lshl_add_u32 v{X}, v{X}, 2, v{X+1}
s_lshr_b32 s6, s5, 1
s_add_u32 s5, s5, {L_REC}
s_add_u32 s6, s6, {L_TH}
v_lshl_add_u32 v{VRA}, v{X}, 2, s5
v_lshl_add_u32 v{VTA}, v{X}, 1, s6
s_lshl_b32 s4, s3, 10
s_add_u32 s4, s4, {L_STG}
v_lshl_add_u32 v{VSW}, v{X}, 3, s4
v_bfe_u32 v{X}, v{VLANE}, 3, 2
v_bfe_u32 v{X+1}, v{VLANE}, 1, 1
v_lshl_add_u32 v{X}, v{X}, 1, v{X+1}
v_lshl_add_u32 v{X}, v{X}, 3, s4
{f"s_and_b32 s{S_OUT}, s2, -8" if o["oside"] else f"s_mov_b32 s{S_OUT}, s2"}
s_lshl_b32 s{S_OUT}, s{S_OUT}, 5
s_lshl_b32 s4, s3, 2
s_add_u32 s{S_OUT}, s{S_OUT}, s4
s_lshl_b32 s{S_OUT}, s{S_OUT}, 8
s_mov_b32 s14, {E*256}
s_mov_b32 s15, 0x20000
s_waitcnt vmcnt({o["pf2"]}) lgkmcnt(0)
s_barrier
""")

    if o["stamps"]:
        for k, r in enumerate((VAA, VAB, VCUR, VNXT)):
            e(f"v_readfirstlane_b32 s{92+k}, v{r}")
        stamp(e, o, VAA)
        e(f"s_nop 0\nv_readfirstlane_b32 s96, v{VAA}\ns_mov_b32 s97, 0")
        if o["fused"] and o["ss"]:
            e(f"v_readfirstlane_b32 s97, v{VCLEAN}\ns_sub_u32 s97, {o['tmo']}, s97")
        if o["cyc"]:
            e("s_memtime s[98:99]\ns_waitcnt lgkmcnt(0)")

    def readA(b):
        e(f"ds_read_b64 v[{A}:{A+1}], v{VAA} offset:{b*64}\nds_read_b64 v[{A+2}:{A+3}], v{VAB} offset:{b*64}")

    def filt():
        if "m" not in o["drop"]:
            e(f"v_mfma_f32_32x32x16_bf16 v[{FILT}:{FILT+15}], v[{A}:{A+3}], v[{W}:{W+3}], 0")

    def loads(rb, lane):
        for i, t in enumerate((VT0, VT1)):
            e(f"v_or_b32_dpp v{t}, v{VCLEAN}, v{VQ} row_newbcast:{lane+i} row_mask:0xf bank_mask:0xf")
            e(f"buffer_load_dwordx4 v[{ROW+rb*8+4*i}:{ROW+rb*8+4*i+3}], v{t}, s[8:11], 0 offen {o['row_ld']}")

    def clean():
        e(f"v_and_b32 v{VCLEAN}, {hex(ROWMASK)}, v{VNXT}")
        if o["numa"]:
            e(f"""
s_lshr_b32 s4, s2, 2
s_xor_b32 s4, s4, {o["pol"]}
s_lshl_b32 s4, s4, 13
v_lshrrev_b32 v{VT0}, 8, v{VCLEAN}
v_xor_b32 v{VT0}, v{VT0}, v{VCLEAN}
v_xor_b32 v{VT0}, s4, v{VT0}
v_bfe_i32 v{VT0}, v{VT0}, 13, 1
v_bfe_u32 v{VT1}, v{VCLEAN}, 14, 3
v_subrev_u32 v{VT1}, {o["numa"]}, v{VT1}
v_ashrrev_i32 v{VT1}, 31, v{VT1}
v_and_b32 v{VT0}, v{VT0}, v{VT1}
v_and_b32 v{VT0}, {42 << 20}, v{VT0}
v_add_u32 v{VCLEAN}, v{VCLEAN}, v{VT0}
v_ashrrev_i32 v{VT0}, 31, v{VNXT}
v_bfe_i32 v{VT1}, v{VNXT}, 30, 1
v_xor_b32 v{VT0}, v{VT0}, v{VT1}
v_and_b32 v{VT0}, 0x70000000, v{VT0}
v_or_b32 v{VCLEAN}, v{VCLEAN}, v{VT0}
s_nop 1
""")

    def next_records(off):
        e(f"ds_read_b32 v{VNXT}, v{VRA} offset:{off*4}\nds_read_u16 v{VTH}, v{VTA} offset:{off*2}")

    def pack():
        e(f"""
v_mov_b32_dpp v{VPK}, v{VNXT} row_shl:1 row_mask:0xf bank_mask:0xf
v_perm_b32 v{VPK}, v{VPK}, v{VNXT}, s{S_SEL}
v_or_b32 v{VPK}, 0xc000c000, v{VPK}
""")

    def lookup():
        e(f"""
v_bfe_u32 v{VT0}, v{VNXT}, 8, 18
""")
        if conv:
            e(f"""
v_mul_hi_u32_u24 v{VT1}, {M_REG}, v{VT0}
v_add_u32 v{VT1}, v{VT1}, v{VT1}
v_bfe_i32 v{VT1}, s{S_R0}, v{VT1}, 2
v_mad_i32_i24 v{VT0}, v{VT1}, s{S_RR}, v{VT0}
""")
        else:
            e(f"""
v_subrev_u32 v{VT0}, s{S_R0}, v{VT0}
v_add_u32 v{VT1}, {E}, v{VT0}
v_min_u32 v{VT0}, v{VT0}, v{VT1}
""")
        e(f"""
v_subrev_u32 v{VT0}, s{S_LO}, v{VT0}
v_lshl_add_u32 v{VT1}, v{VT0}, 1, s{S_OFF}
v_cmp_le_u32 s[{S_OOW}:{S_OOW+1}], s{S_SPAN}, v{VT0}
v_subrev_u32 v{VT0}, {RBYTES}, v{VT1}
v_min_u32 v{VT1}, v{VT0}, v{VT1}
v_cmp_le_i32 vcc, {hex(F_SELF)}, v{VNXT}
ds_read_u16 v{VRAD}, v{VT1} offset:{L_RING}
s_and_b64 s[{S_OOW}:{S_OOW+1}], s[{S_OOW}:{S_OOW+1}], vcc
""")

    def fallback(label, wait=True):
        e(f"""
s_cmp_eq_u64 s[{S_OOW}:{S_OOW+1}], 0
s_cbranch_scc1 {label}
s_waitcnt lgkmcnt(0)
s_mov_b64 exec, s[{S_OOW}:{S_OOW+1}]
v_bfe_u32 v{VRAD}, v{VNXT}, 8, 18
v_lshlrev_b32 v{VRAD}, 1, v{VRAD}
buffer_load_ushort v{VRAD}, v{VRAD}, s[20:23], 0 offen
s_mov_b64 exec, -1
{"s_waitcnt vmcnt(0)" if wait else ""}
{"s_add_u32 s97, s97, 1" if o["stamps"] and not o["cyc"] else ""}
{label}:
""")

    def ring_dma():
        e(f"s_mov_b32 m0, s{S_DDST}\ns_add_u32 s{S_DDST}, s{S_DDST}, {RPC*2}")
        e(f"buffer_load_dwordx4 v{VL16}, s[20:23], s{S_DEFF if conv else S_DSRC} offen lds")

    def ring_advance():
        if conv:
            e(f"""
s_add_u32 s{S_K}, s{S_K}, 1
s_lshr_b32 s5, s{S_K}, 1
s_and_b32 s5, s5, 30
s_or_b32 s5, s5, 0x20000
s_bfe_i32 s5, s{S_R0}, s5
s_mul_i32 s5, s5, {REG_ROWS*2}
""")
        e(f"""
s_cmp_ge_u32 s{S_DDST}, s{S_DLIM}
s_cselect_b32 s4, {RBYTES}, 0
s_sub_u32 s{S_DDST}, s{S_DDST}, s4
s_add_u32 s{S_DSRC}, s{S_DSRC}, {RPC*2}
{f"s_add_u32 s{S_DEFF}, s{S_DSRC}, s5" if conv else ""}
""")

    def window_advance():
        e(f"""
s_add_u32 s{S_LO}, s{S_LO}, {2*RPC}
s_add_u32 s{S_OFF}, s{S_OFF}, {4*RPC}
s_cmp_ge_u32 s{S_OFF}, {RBYTES}
s_cselect_b32 s4, {RBYTES}, 0
s_sub_u32 s{S_OFF}, s{S_OFF}, s4
""")

    J = (VTH, VSE, VLANE)
    t = UNP

    jl = o["jl"]

    def jit_angles():
        if jl >= 3:
            e(f"""
v_lshlrev_b32 v{J[0]}, 16, v{VTH}
v_mul_f32 v{t}, 0x40400000, v{J[0]}
v_cvt_pk_bf16_f32 v{t}, v{t}, v{t}
v_and_b32 v{J[2]}, 0xffff0000, v{t}
""")
            return
        e(f"""
v_lshlrev_b32 v{VTH}, 16, v{VTH}
v_mul_f32 v{t}, s{SE0}, v{VTH}
v_mul_f32 v{t+1}, s{SE1}, v{VTH}
v_mul_f32 v{t+2}, s{SE2}, v{VTH}
v_cvt_pk_bf16_f32 v{t+1}, v{t}, v{t+1}
v_cvt_pk_bf16_f32 v{t+2}, v{t+2}, v{t+2}
v_lshlrev_b32 v{J[0]}, 16, v{t+1}
v_and_b32 v{J[1]}, 0xffff0000, v{t+1}
v_and_b32 v{J[2]}, 0xffff0000, v{t+2}
""")

    KS = (0, 2) if jl >= 3 else (0, 1, 2)

    def jit_reduce():
        if jl >= 1:
            for k in KS:
                e(f"v_mul_f32 v{J[k]}, 0.15915494, v{J[k]}")
            for k in KS:
                e(f"v_fract_f32 v{J[k]}, v{J[k]}")
            return
        for k in KS:
            e(f"v_mul_f32 v{t+k}, {hex(C_HI)}, v{J[k]}")
        for k in KS:
            e(f"v_fract_f32 v{t+k}, v{t+k}")
        for k in KS:
            e(f"v_fmamk_f32 v{J[k]}, v{J[k]}, {hex(C_LO)}, v{t+k}")

    def jit_cos():
        for k in KS:
            e(f"v_cos_f32 v{J[k]}, v{J[k]}")
        if jl >= 3:
            e(f"v_add_f32 v{J[1]}, v{J[0]}, v{J[0]}\nv_fma_f32 v{J[1]}, v{J[1]}, v{J[0]}, -1.0")
        if jl < 2:
            e(f"""
s_nop 0
v_cvt_pk_bf16_f32 v{J[1]}, v{J[0]}, v{J[1]}
v_cvt_pk_bf16_f32 v{J[2]}, v{J[2]}, v{J[2]}
""")

    def jit_store():
        e(f"""
v_lshlrev_b32 v{VRAD}, 16, v{VRAD}
v_ashrrev_i32 v{t+3}, 31, v{VNXT}
v_bfe_i32 v{t+4}, v{VNXT}, 30, 1
v_bfi_b32 v{t+3}, v{t+3}, 0, v{VRAD}
v_and_b32 v{t+4}, v{t+4}, v{VRAD}
""")
        if jl < 2:
            e(f"""
v_lshlrev_b32 v{J[0]}, 16, v{J[1]}
v_and_b32 v{J[1]}, 0xffff0000, v{J[1]}
v_and_b32 v{J[2]}, 0xffff0000, v{J[2]}
""")
        e(f"""
v_mul_f32 v{t}, v{J[0]}, v{t+3}
v_mul_f32 v{t+1}, v{J[1]}, v{t+3}
v_mul_f32 v{t+2}, v{J[2]}, v{t+3}
v_cvt_pk_bf16_f32 v{t}, v{t}, v{t+1}
v_cvt_pk_bf16_f32 v{t+1}, v{t+2}, v{t+4}
ds_write_b64 v{VSW}, v[{t}:{t+1}]
v_xor_b32 v{VSW}, 512, v{VSW}
""")

    def jit_scale():
        assert jl < 2
        e(f"""
v_lshlrev_b32 v{VRAD}, 16, v{VRAD}
v_ashrrev_i32 v{t+3}, 31, v{VNXT}
v_bfe_i32 v{t+4}, v{VNXT}, 30, 1
v_lshlrev_b32 v{J[0]}, 16, v{J[1]}
v_bfi_b32 v{t+3}, v{t+3}, 0, v{VRAD}
v_and_b32 v{J[1]}, 0xffff0000, v{J[1]}
v_and_b32 v{J[2]}, 0xffff0000, v{J[2]}
v_and_b32 v{VRAD}, v{t+4}, v{VRAD}
v_mul_f32 v{J[0]}, v{J[0]}, v{t+3}
v_mul_f32 v{J[1]}, v{J[1]}, v{t+3}
v_mul_f32 v{J[2]}, v{J[2]}, v{t+3}
""")

    def jit_write():
        e(f"""
v_cvt_pk_bf16_f32 v{t}, v{J[0]}, v{J[1]}
v_cvt_pk_bf16_f32 v{t+1}, v{J[2]}, v{VRAD}
ds_write_b64 v{VSW}, v[{t}:{t+1}]
v_xor_b32 v{VSW}, 512, v{VSW}
""")

    NBS = 2 * NB

    def lanes(b):
        for g in range(4):
            e(f"v_readlane_b32 s{SI+g}, v{VPK}, {16*g+2*b}")

    def ahead():
        e(f"s_add_u32 s{S_PF}, s{S_PF}, {32*8192}\ns_mov_b32 m0, {L_TRASH}\nv_add_u32 v{VT0}, s{S_PF}, v{VL16}")
        e(f"buffer_load_dwordx4 v{VT0}, s[8:11], 0 offen lds")

    def batch(b, steady, pf=False):
        rb = b % NB
        last = rb == NB - 1
        if steady:
            cnt = 2 * NB - 2 if rb in (0, NB - 1) else 2 * NB - 1
            if o["spf"] and 1 <= b <= NB:
                cnt += 1
            if pf:
                cnt += NB - 1 if rb == NB - 1 else NB
            cnt -= o["shallow"]
        else:
            cnt = 2 * (NB - 1 - rb)
        def ts(k):
            if steady and b == o["seg"]:
                e(f"s_memtime s[{62+2*k}:{63+2*k}]")
        ts(0)
        e(f"s_waitcnt vmcnt({cnt})")
        if o["order"]:
            def M(i, u):
                d = UNP + 8 * i + 4 * u
                e(f"v_mfma_f32_16x16x32_bf16 v[{d}:{d+3}], v[{AU+4*u}:{AU+4*u+3}], v[{ROW+rb*8+4*i}:{ROW+rb*8+4*i+3}], 0")

            def LA(i):
                if steady:
                    e(f"v_or_b32_dpp v{(VT0, VT1)[i]}, v{VCLEAN}, v{VQ} row_newbcast:{2*((b+NB)%NBS)+i} row_mask:0xf bank_mask:0xf")

            def LL(i):
                if steady:
                    e(f"buffer_load_dwordx4 v[{ROW+rb*8+4*i}:{ROW+rb*8+4*i+3}], v{(VT0, VT1)[i]}, s[8:11], 0 offen {o['row_ld']}")

            def L(i):
                LA(i)
                LL(i)

            def R(g):
                e(f"v_readlane_b32 s{SI+g}, v{VPK}, {16*g+2*b}")
            if o["dtop"] and steady and rb == 0:
                ring_dma()
            M(0, 0)
            if steady or not last:
                readA((b + 1) % NBS)
            M(0, 1)
            if o["order"] == 1:
                if steady and rb == 0:
                    ring_dma()
                L(0)
                M(1, 0)
                R(0)
                R(1)
                M(1, 1)
                if o["prio"] == 2:
                    e("s_setprio 1")
                L(1)
                R(2)
                R(3)
            elif o["order"] >= 3:
                if steady and rb == 0 and not o["dtop"]:
                    ring_dma()
                if o["order"] in (3, 4):
                    L(0)
                else:
                    LA(0)
                M(1, 0)
                R(0)
                R(1)
                M(1, 1)
                if o["prio"] == 2:
                    e("s_setprio 1")
                LA(1)
                if o["order"] == 5:
                    LL(0)
                R(2)
                R(3)
            else:
                R(0)
                R(1)
                M(1, 0)
                R(2)
                R(3)
                M(1, 1)
                if o["prio"] == 2:
                    e("s_setprio 1")
                if steady and rb == 0:
                    ring_dma()
                L(0)
                L(1)
            if not steady:
                e("s_nop 1")
        else:
            for i in range(2):
                for u in range(2):
                    d = UNP + 8 * i + 4 * u
                    if "u" not in o["drop"]:
                        e(f"v_mfma_f32_16x16x32_bf16 v[{d}:{d+3}], v[{AU+4*u}:{AU+4*u+3}], v[{ROW+rb*8+4*i}:{ROW+rb*8+4*i+3}], 0")
            ts(1)
            if o["prio"] == 2:
                e("s_setprio 1")
            if o["prio"] == 3:
                e("s_setprio 0")
            if steady and rb == 0 and "d" not in o["drop"]:
                ring_dma()
            if steady and "l" not in o["drop"]:
                loads(rb, 2 * ((b + NB) % NBS))
                if pf:
                    ahead()
                if o["spf"] and b == 0:
                    e(f"""
s_mov_b32 m0, {L_TRASH}
v_add_u32 v{VT0}, s{S_PF}, v{VL16}
buffer_load_dwordx4 v{VT0}, s[8:11], 0 offen lds
s_add_u32 s{S_PF}, s{S_PF}, {NBK * NW * SPW}
""")
            else:
                e("s_nop 3")
        ts(2)
        if steady and (o["bb"] == 1 or (o["bb"] == 2 and rb % 2 == 1) or (o["bb"] == 3 and last)):
            e("s_barrier")
        for j in range(8):
            if j == 0:
                e(f"s_set_gpr_idx_on s{SI}, gpr_idx(SRC2,DST)")
            elif "i" in o["drop"]:
                pass
            elif j < 4:
                e(f"s_mov_b32 m0, s{SI+j}")
            else:
                e(f"s_lshr_b32 m0, s{SI+j-4}, 16")
            if j == 4 and o["order"] == 4:
                LL(1)
            if "f" in o["drop"]:
                pass
            elif o["acc"] == "pk":
                e(f"v_pk_fma_f32 v[{ACC}:{ACC+1}], v[{UNP+2*j}:{UNP+2*j+1}], v[{FILT+2*j}:{FILT+2*j+1}], v[{ACC}:{ACC+1}]")
            else:
                e(f"v_fmac_f32 v{ACC}, v{UNP+2*j}, v{FILT+2*j}\nv_fmac_f32 v{ACC+1}, v{UNP+2*j+1}, v{FILT+2*j+1}")
        e("s_set_gpr_idx_off")
        if o["order"] in (3, 5):
            LL(1)
        ts(3)
        if o["prio"] == 2:
            e("s_setprio 0")
        if o["prio"] == 3:
            e("s_setprio 1")
        if not steady and last:
            return
        e("s_waitcnt lgkmcnt(0)")
        filt()
        ts(4)
        if steady and o["seg"] >= 0 and b == o["seg"] + 1:
            for k in range(5):
                e(f"s_sub_u32 s4, s{64+2*k}, s{62+2*k}\ns_add_u32 s{76+k}, s{76+k}, s4")
        if steady and b == NBS - 2:
            e(f"v_xor_b32 v{VAA}, 512, v{VAA}\nv_xor_b32 v{VAB}, 512, v{VAB}")
        if not o["order"] and (steady or rb < NB - 2):
            readA((b + 2) % NBS)
        if steady and b == NBS - 1:
            pack()
            e(f"v_add_u32 v{VRA}, {SG*4}, v{VRA}\nv_add_u32 v{VTA}, {SG*2}, v{VTA}")
            next_records(SG)
        if not o["order"]:
            lanes((b + 1) % NBS)
        ts(5)
        if not steady:
            return
        if o["spread"]:
            assert not pf
            if b == 0:
                lookup()
                fallback("LM_inwin", wait=False)
            if rb == 1:
                ring_advance()
            if b == 1:
                jit_angles()
            if b == 2:
                jit_reduce()
                if o["spread"] == 2:
                    jit_cos()
            if b == 3:
                clean()
                if o["spread"] == 1:
                    jit_cos()
            if b == 4:
                e(f"s_waitcnt vmcnt({2*NB+1})")
                jit_scale()
            if b == 5:
                jit_write()
                window_advance()
        else:
            if rb == 0:
                ring_advance()
            if b == 0:
                lookup()
                window_advance()
                fallback("LM_inwinP" if pf else "LM_inwin", wait=False)
            if b == NB - 1:
                clean()
            if not o["nojit"]:
                piece = {1: jit_angles, 2: jit_reduce, 3: jit_cos, 4: jit_store}.get(b)
                if b == NB:
                    e(f"s_waitcnt vmcnt({2*NB+1 + (NB if pf else 0)})")
                if piece:
                    piece()

    next_records(0)
    e(f"""
v_cndmask_b32 v{VAA}, 0, v{X}, s[{MA}:{MA+1}]
v_cndmask_b32 v{VAB}, 0, v{X}, s[{MB}:{MB+1}]
s_waitcnt lgkmcnt(0)
""")
    clean()
    lookup()
    for b in range(NB):
        loads(b, 2 * b)
        if o["pf3"]:
            ahead()
    pack()
    e("s_waitcnt lgkmcnt(0)")
    fallback("LM_inwin0")
    jit_angles()
    jit_reduce()
    jit_cos()
    jit_store()
    readA(0)
    e("s_waitcnt lgkmcnt(0)")
    filt()
    next_records(SG)
    if not o["order"]:
        readA(1)
    e(f"s_cmp_lg_u32 s{S_MODE}, 0\ns_cbranch_scc1 LM_keepacc")
    for i in range(2 * DPW):
        e(f"v_mov_b32 v{ACC+i}, 0")
    e("LM_keepacc:")
    if o["seg"] >= 0:
        for k in range(5):
            e(f"s_mov_b32 s{76+k}, 0")
    if o["prio"] == 1:
        e("s_cmp_lt_u32 s3, 4\ns_cbranch_scc1 LM_prio\ns_setprio 1\nLM_prio:")
    if not o["order"]:
        lanes(0)
    e(f"s_cmp_le_u32 s{S_NIT}, {G}\ns_cbranch_scc1 LM_drainA")
    bar = "" if o["nobar"] or o["bb"] else "s_barrier"
    if o["pf3"]:
        e(f"s_mov_b32 s{S_PFN}, {o['pf3']}\nLM_loopP:")
        for b in range(NB):
            batch(b, True, True)
        e(f"s_sub_u32 s{S_NIT}, s{S_NIT}, {G}\n{bar}\ns_cmp_le_u32 s{S_NIT}, {G}\ns_cbranch_scc1 LM_drainB")
        for b in range(NB, NBS):
            batch(b, True, True)
        e(f"""
s_sub_u32 s{S_NIT}, s{S_NIT}, {G}
{bar}
s_cmp_le_u32 s{S_NIT}, {G}
s_cbranch_scc1 LM_drainA
s_sub_u32 s{S_PFN}, s{S_PFN}, 1
s_cmp_lg_u32 s{S_PFN}, 0
s_cbranch_scc1 LM_loopP
""")
    e(".p2align 6\nLM_loop:")
    for b in range(NB):
        batch(b, True)
    e(f"""
s_sub_u32 s{S_NIT}, s{S_NIT}, {G}
{'' if o['nomid'] else bar}
s_cmp_le_u32 s{S_NIT}, {G}
s_cbranch_scc1 LM_drainB
""")
    for b in range(NB, NBS):
        batch(b, True)
    e(f"""
s_sub_u32 s{S_NIT}, s{S_NIT}, {G}
{bar}
s_cmp_gt_u32 s{S_NIT}, {G}
s_cbranch_scc1 LM_loop
LM_drainA:
""")
    for b in range(NB):
        batch(b, False)
    e("s_branch LM_drained\nLM_drainB:")
    for b in range(NB, NBS):
        batch(b, False)
    e(f"LM_drained:\nv_lshrrev_b32 v{VLANE}, 4, v{VL16}")
    e(f"""
s_waitcnt lgkmcnt(0)
s_cmp_eq_u32 s{S_MODE}, 0
s_cbranch_scc1 LM_out
s_add_u32 s{S_BASE}, s{S_BASE}, {RMAX}
s_cmp_lt_u32 s{S_BASE}, s{S_TOT}
s_cbranch_scc1 LM_round
LM_out:
""")
    if o["cyc"]:
        e("s_memtime s[6:7]\ns_waitcnt lgkmcnt(0)\ns_sub_u32 s97, s6, s98")
    stamp(e, o, VAA)
    if o["oside"]:
        diecode(6)
        e("s_lshl_b32 s6, s6, 13")
    for k in range(DPW // 16):
        y0 = (UNP, ROW, ROW + 16)[k % 3]
        for i in range(4):
            for j in range(4):
                a = ACC + 32 * k + 8 * i + 2 * j
                e(f"v_cvt_pk_bf16_f32 v{y0+4*i+j}, v{a}, v{a+1}")
        for i in range(4):
            y = y0 + 4 * i
            e(f"v_permlane16_swap_b32 v{y}, v{y+1}\nv_permlane16_swap_b32 v{y+2}, v{y+3}")
        for i in range(4):
            y = y0 + 4 * i
            if 4 * k + i == DPW // 4 - 1:
                e(f"s_cmp_ge_u32 s2, {FULL_BK}\ns_cbranch_scc1 LM_stored")
            e(f"""
v_permlane32_swap_b32 v{y}, v{y+2}
v_permlane32_swap_b32 v{y+1}, v{y+3}
{f"s_xor_b32 s4, s6, {((4*k+i) & 7) << 13}" if o["oside"] else ""}
{f"s_add_u32 s4, s4, s{S_OUT}" if o["oside"] else ""}
buffer_store_dwordx4 v[{y}:{y+3}], v{VL16}, s[12:15], {"s4" if o["oside"] else f"s{S_OUT}"} offen {o['out_st']}
s_add_u32 s{S_OUT}, s{S_OUT}, {STRIDE_ROWS*256}
""")
    e("LM_stored:")
    if o["ptrs"]:
        e(f"""
s_or_b32 s4, s2, s3
s_cmp_lg_u32 s4, 0
s_cbranch_scc1 LM_end
s_load_dwordx4 s[36:39], s[0:1], 0
s_load_dwordx4 s[40:43], s[0:1], 72
s_load_dwordx2 s[44:45], s[0:1], 88
s_waitcnt lgkmcnt(0)
""")
        srd(e, 48, 42, 43, 256)
        e("v_mov_b32 v0, 0\ns_mov_b64 exec, 1")
        for k, r in enumerate((36, 37, 40, 41, 44, 45, 38, 39)):
            e(f"v_mov_b32 v1, s{r}\nbuffer_store_dword v1, v0, s[48:51], 0 offen offset:{4*k}")
    if o["stamps"]:
        for k in range(6):
            e(f"v_mov_b32 v{8+k}, s{(76 if o['seg'] >= 0 and k < 5 else 92)+k}")
    stamps_out(e, o, [8, 9, 10, 11, 12, VAA, 13, VAB], 33 << 20, NW)
    e("LM_end:\ns_endpgm")

    e(f"""
LM_slow:
s_mov_b32 s{S_MODE}, 1
s_lshl_b32 s4, s3, 7
v_and_b32 v{X}, 7, v{VLANE}
v_lshrrev_b32 v{X+1}, 4, v{VLANE}
v_lshl_add_u32 v{X}, v{X}, 2, v{X+1}
v_lshl_add_u32 v{X}, v{X}, 2, s4
ds_write_b32 v{X}, v{VSE} offset:{L_SEG}
v_lshlrev_b32 v{X+1}, 4, v{VLANE}
s_waitcnt lgkmcnt(0)
s_barrier
ds_read_b128 v[{X+4}:{X+7}], v{X+1} offset:{L_SEG}
s_waitcnt lgkmcnt(0)
""")
    for k in range(4):
        e(f"""
v_lshrrev_b32 v{X+8+k}, 16, v{X+4+k}
v_and_b32 v{X+4+k}, 0xffff, v{X+4+k}
v_sub_u32 v{X+8+k}, v{X+8+k}, v{X+4+k}
""")
    e(f"""
v_add_u32 v{X+9}, v{X+8}, v{X+9}
v_add_u32 v{X+10}, v{X+9}, v{X+10}
v_add_u32 v{X+11}, v{X+10}, v{X+11}
v_mov_b32 v{X+3}, v{X+11}
""")
    wave_scan(e, X + 3)
    e(f"""
v_sub_u32 v{X+12}, v{X+3}, v{X+11}
v_readlane_b32 s{S_TOT}, v{X+3}, 63
v_add_u32 v{X+13}, v{X+12}, v{X+8}
v_add_u32 v{X+14}, v{X+12}, v{X+9}
v_add_u32 v{X+15}, v{X+12}, v{X+10}
ds_write_b128 v{X+1}, v[{X+12}:{X+15}] offset:{L_P}
""")
    for k in range(4):
        e(f"v_sub_u32 v{X+4+k}, v{X+4+k}, v{X+12+k}")
    e(f"ds_write_b128 v{X+1}, v[{X+4}:{X+7}] offset:{L_Q}")
    for i in range(2 * DPW):
        e(f"v_mov_b32 v{ACC+i}, 0")
    SR = X + 12
    STH = SR + RSLOTS + 2
    SA = STH + RSLOTS + 1
    SK = SA + RSLOTS + 2
    assert SK + RSLOTS + 2 <= ROW + G
    e(f"""
s_mov_b32 s{S_BASE}, 0
LM_round:
s_lshl_b32 s4, s3, 6
v_add_u32 v{X}, s4, v{VLANE}
v_lshlrev_b32 v{X+1}, 2, v{X}
v_mov_b32 v{X+2}, 0
v_mov_b32 v{VONE}, 4
ds_write_b32 v{X+1}, v{X+2} offset:{L_HIST}
ds_write_b32 v{X+1}, v{X+2} offset:{L_HIST+2048}
v_add_u32 v{X}, s{S_BASE}, v{X}
""")
    prefill()
    for j in range(RSLOTS):
        e(f"v_cmp_gt_u32 s[{SM+2*j}:{SM+2*j+1}], s{S_TOT}, v{X}\nv_mov_b32 v{X+3}, 0")
        for st in (128, 64, 32, 16, 8, 4, 2, 1):
            e(f"""
ds_read_b32 v{X+4}, v{X+3} offset:{L_P+4*st}
v_add_u32 v{X+5}, {4*st}, v{X+3}
s_waitcnt lgkmcnt(0)
v_cmp_le_u32 vcc, v{X+4}, v{X}
s_nop 1
v_cndmask_b32 v{X+3}, v{X+3}, v{X+5}, vcc
""")
        e(f"""
ds_read_b32 v{X+4}, v{X+3} offset:{L_Q}
v_mul_u32_u24 v{X+3}, {TS//4}, v{X+3}
s_waitcnt lgkmcnt(0)
v_add_u32 v{X+4}, v{X+4}, v{X}
v_lshl_add_u32 v{X+5}, v{X+4}, 2, v{X+3}
v_lshl_add_u32 v{X+4}, v{X+4}, 1, v{X+3}
v_add_u32 v{X+4}, {T_OFF}, v{X+4}
s_mov_b64 exec, s[{SM+2*j}:{SM+2*j+1}]
buffer_load_dword v{SR+j}, v{X+5}, s[16:19], 0 offen
buffer_load_ushort v{STH+j}, v{X+4}, s[16:19], 0 offen
s_mov_b64 exec, -1
v_add_u32 v{X}, 512, v{X}
""")
    self_slots(SR + RSLOTS, STH + RSLOTS)
    m0 = SM + 2 * RSLOTS
    e(f"""
s_cmp_eq_u32 s{S_BASE}, 0
s_cselect_b64 s[{m0}:{m0+1}], -1, 0
s_cselect_b32 s{m0+2}, s34, 0
s_mov_b32 s{m0+3}, 0
s_waitcnt vmcnt(0) lgkmcnt(0)
s_barrier
""")
    slow = [(SM + 2 * j, SR + j, STH + min(j, RSLOTS), 0, SA + j, SK + j, None) for j in range(RSLOTS + 2)]
    phase1(slow)
    scan_exchange(False)
    phase2(slow)
    e("s_branch LM_tail")
    return e.text()


def gen_pf(o):
    e = Asm()
    fl = "" if o["pre"] == "pf" else o["pre"]
    e(f"""
dn_pf_kernel:
s_cmp_ge_u32 s2, {NWG}
s_cbranch_scc1 LF_end
s_load_dwordx2 s[4:5], s[0:1], {o["presrc"]}
v_lshlrev_b32 v1, 4, v0
s_waitcnt lgkmcnt(0)
""")
    srd(e, 8, 4, 5, E * 256, o["preoff"] << 20)
    e("s_mul_i32 s4, s2, 16384")
    for i in range(10):
        e(f"buffer_load_dwordx4 v[{8+4*i}:{11+4*i}], v1, s[8:11], s4 offen {fl}\ns_add_u32 s4, s4, {250*16384}")
    e("s_waitcnt vmcnt(0)\nLF_end:\ns_endpgm")
    return e.text()


HEADER = """; DimeNet angular message passing on gfx950.
; and sweeps the source rows in ascending order so that the compute units of a die share them in L2.
"""


def kd(name, vgpr):
    return f""".p2align 6
.amdhsa_kernel {name}
  .amdhsa_next_free_vgpr {vgpr}
  .amdhsa_next_free_sgpr 102
  .amdhsa_accum_offset {vgpr}
  .amdhsa_group_segment_fixed_size 0
  .amdhsa_kernarg_size 96
  .amdhsa_user_sgpr_count 2
  .amdhsa_user_sgpr_kernarg_segment_ptr 1
  .amdhsa_system_sgpr_workgroup_id_x 1
  .amdhsa_float_denorm_mode_32 3
.end_amdhsa_kernel
"""


def generate(**kw):
    o = dict(DEFAULTS)
    o.update(kw)
    s = HEADER
    if o["fused"]:
        s += f"; @launch grid=({NBK},1,1) block=(512,1,1) lds={L_LDS}\n"
        s += '.amdgcn_target "amdgcn-amd-amdhsa--gfx950"\n.text\n'
        s += f".globl {MAIN}\n.p2align 8\n.type {MAIN},@function\n{gen_main(o)}"
        return s + '.section .rodata,"a"\n' + kd(MAIN, 256)
    if o["pre"]:
        s += f"; @launch kernel=dn_pf_kernel grid=({NWG},1,1) block=(1024,1,1) lds=0\n"
    s += f"; @launch kernel={PART} grid=({NWG},1,1) block=(1024,1,1) lds={P_LDS}\n"
    s += f"; @launch kernel={MAIN} grid=({NBK},1,1) block=(512,1,1) lds={L_LDS}\n"
    for _ in range(o["post"]):
        s += f"; @launch kernel=dn_nop_kernel grid=({NWG},1,1) block=(64,1,1) lds=0\n"
    s += '.amdgcn_target "amdgcn-amd-amdhsa--gfx950"\n.text\n'
    extra = []
    if o["pre"]:
        extra.append(("dn_pf_kernel", gen_pf(o)))
    if o["post"]:
        extra.append(("dn_nop_kernel", "dn_nop_kernel:\n    s_endpgm\n"))
    for name, body in [(PART, gen_part(o)), (MAIN, gen_main(o))] + extra:
        s += f".globl {name}\n.p2align 8\n.type {name},@function\n{body}"
    s += '.section .rodata,"a"\n' + kd(PART, 104) + kd(MAIN, 256)
    for name, _ in extra:
        s += kd(name, 64)
    return s


if __name__ == "__main__":
    out = sys.argv[1]
    kw = {}
    for a in sys.argv[2:]:
        k, v = a.split("=", 1)
        kw[k] = int(v) if v.lstrip("-").isdigit() else v.replace("_", " ")
    open(out, "w").write(generate(**kw))
```

```python
import math
import os
import struct
import sys

MAIN = "standalone__molecular_angular_dimenet__graph_kernel"
PART = "dn_part_kernel"

E, T = 160000, 2560000
NWG = int(os.environ.get('NWG', 250))
NBK = 256
TILE = T // NWG
PT = TILE // 10
NW = 8
DPW = 80
CH_SHIFT = 11
CH_ROWS = 1 << CH_SHIFT
NCH = 160000 // CH_ROWS + 1
NBIN = 128
NB = 4
G = NB * 8
STRIDE_ROWS = NBK * NW * 4
FULL_BK = (E - (DPW // 4 - 1) * STRIDE_ROWS) // 32

PAD = int(os.environ.get('PAD', 2))
TCAP = -(-(TILE + 256 * (PAD - 1)) // 64) * 64
T_OFF = TCAP * 4
TS = TCAP * 6
WS_REC = 0
WS_OFF = NWG * TS
WS_RAD = WS_OFF + 256 * 2048

P_HIST, P_OFF, P_REC = 0, 1024, 2048
NPASS = -(-TS // 16384)
P_LDS = P_REC + NPASS * 16384

SG = 2 * G
RPC = int(os.environ.get('RPC', 3520))
RROWS = 9 * RPC
RBYTES = RROWS * 2
RPW = RPC * 2 // NW
RH0 = 7 * RPC
LCAP = 1664
L_ZERO = 0
L_STG = 1024
L_HIST = L_STG + NW * 1024
L_N = L_HIST + NW * NBIN * 4
L_SEG = L_N + 64
L_P = L_SEG + 1024
L_Q = L_P + 1024
L_RING = L_Q + 1024
L_TH = L_RING + RBYTES + 128
L_REC = L_TH + NW * LCAP * 2
L_TRASH = L_REC + NW * LCAP * 4
L_LDS = L_TRASH + 1024
SPW = 896
CBIAS = 24576
RSLOTS = 3
RMAX = RSLOTS * 512
RAD_BYTES = 2 * (E + RH0 + (LCAP // G + 1) * RPC)
assert RMAX + DPW <= LCAP and LCAP % SG == 0 and L_LDS <= 163840 and L_REC % 16 == 0 and L_RING % 16 == 0
assert L_TH % 16 == 0 and RPW % 16 == 0 and L_RING < 65536
assert 0 <= L_REC - 2 * CBIAS < 65536 and 0 <= L_TH - CBIAS < 65536

F_SELF = 0xC0000000
F_DUMMY = 0x80000000
ROWMASK = 0x03FFFF00
DUMMY_REC = F_DUMMY | ROWMASK
assert TS % 128 == 0 and E % 32 == 0
KEY_SHIFT = 8 + CH_SHIFT
M_STRETCH = (CH_ROWS << 16) // E
REG_CH = 7
REG_ROWS = REG_CH * CH_ROWS
M_REG = -(-(1 << 32) // REG_ROWS)
assert all((k * M_REG) >> 32 == k // REG_ROWS for k in range(E)) and M_REG < (1 << 24)
assert all((c * 37) >> 8 == c // REG_CH for c in range(NCH))


def f2u(x):
    return struct.unpack("<I", struct.pack("<f", x))[0]


def u2f(u):
    return struct.unpack("<f", struct.pack("<I", u))[0]


INV2PI = 1.0 / (2.0 * math.pi)
C_HI = f2u(INV2PI) & 0xFFFFFF00
C_LO = f2u(INV2PI - u2f(C_HI))

DEFAULTS = dict(pf1=0, pf1s=0, pf1pos=2, pf1e=0, fused=0, tmo=65536, touch=0, slp=1, early=0, fji=2, dyn=1, pf2=6, pf3=0, pf0=0, ulate=0, aux_st="sc1", diagdelay=0, ss=0, spf=0, nomid=0, jl=0, order=3, prio=1, acc="pk", drop="", cyc=0, hz=0, nojit=0, nobar=0, dummyrow=0, nodma=0, target=1440, conv=0, ilv=5, segpf=0, pfgap=0, ptrs=0, spread=1, oside=0, opol=0, dtop=0, bb=1, seg=-1, numa=0, pol=0, probe=0, probe_fl="", shallow=0, rot=10, rotsh=0, jifirst=1, pre="", presrc=0, preoff=0, post=0, in_flags="nt", rec_st="sc1", seg_ld="", row_ld="", out_st="sc1", stamps=0)


class Asm:
    def __init__(self):
        self.l = []

    def __call__(self, s):
        for line in s.strip("\n").split("\n"):
            line = line.strip()
            if not line:
                continue
            if line.endswith(":") or line.startswith("."):
                self.l.append(line)
            else:
                self.l.append("    " + line)

    def text(self):
        return "\n".join(self.l) + "\n"


def srd(e, d, lo, hi, nbytes, add=None):
    if add is None:
        e(f"s_mov_b32 s{d}, s{lo}\ns_mov_b32 s{d+1}, s{hi}")
    else:
        e(f"s_add_u32 s{d}, s{lo}, {add}\ns_addc_u32 s{d+1}, s{hi}, 0")
    e(f"s_mov_b32 s{d+2}, {nbytes}\ns_mov_b32 s{d+3}, 0x20000")


def wave_scan(e, v):
    for ctl in ("row_shr:1 row_mask:0xf", "row_shr:2 row_mask:0xf", "row_shr:4 row_mask:0xf",
                "row_shr:8 row_mask:0xf", "row_bcast:15 row_mask:0xa", "row_bcast:31 row_mask:0xc"):
        e(f"s_nop 1\nv_add_u32_dpp v{v}, v{v}, v{v} {ctl} bank_mask:0xf")


def stamp(e, o, v):
    if o["stamps"]:
        e(f"s_memrealtime vcc\ns_waitcnt lgkmcnt(0)\nv_mov_b32 v{v}, vcc_lo")


def stamps_out(e, o, regs, region, nwaves):
    if not o["stamps"]:
        return
    e("s_waitcnt vmcnt(0)")
    stamp(e, o, regs[-1])
    e("s_load_dwordx2 s[4:5], s[0:1], 88\ns_waitcnt lgkmcnt(0)")
    srd(e, 12, 4, 5, NBK * nwaves * 32, region)
    srd(e, 16, 4, 5, 64, 32 << 20)
    e(f"s_mul_i32 s4, s2, {nwaves}\ns_add_u32 s4, s4, s3\ns_lshl_b32 s4, s4, 5\nv_mov_b32 v0, s4")
    for k, r in enumerate(regs):
        e(f"buffer_store_dword v{r}, v0, s[12:15], 0 offen offset:{4*k}")
    if o["stamps"] == 2 and nwaves == NW:
        e(f"""
s_load_dwordx2 s[6:7], s[0:1], 80
v_mov_b32 v0, 0
s_or_b32 s4, s2, s3
s_cmp_lg_u32 s4, 0
s_cbranch_scc1 LM_end
s_lshr_b32 s4, s2, 2
s_waitcnt vmcnt(0) lgkmcnt(0)
""")
        srd(e, 20, 6, 7, 256)
        e("buffer_load_dword v1, v0, s[16:19], 0 offen sc0 sc1")
        e("buffer_load_dwordx4 v[20:23], v0, s[16:19], 0 offen offset:4 sc0 sc1\ns_waitcnt vmcnt(0)\ns_mov_b64 exec, 1")
        for k, r in enumerate(list(regs) + [20, 21, 22, 23]):
            e(f"v_sub_u32 v{r}, v{r}, v1\nbuffer_store_dword v{r}, v0, s[20:23], 0 offen offset:{4*k}")


def gen_part(o):
    e = Asm()
    fl = o["in_flags"]
    JI, KJ, TH = 4, 16, 28
    VD = 33
    U, REM, HA, RK = 36, 46, 56, 66
    S = 76
    PFD = 92
    ST = 96
    e(f"""
{PART}:
s_cmp_ge_u32 s2, {NWG}
s_cbranch_scc1 LP_end
s_load_dwordx8 s[12:19], s[0:1], 8
s_load_dwordx2 s[20:21], s[0:1], 40
s_load_dwordx2 s[22:23], s[0:1], 88
s_load_dwordx2 s[26:27], s[0:1], 0
{"s_load_dwordx2 s[76:77], s[0:1], 72" if o["probe"] else ""}
""")
    stamp(e, o, ST)
    e(f"""
v_lshlrev_b32 v1, 4, v0
v_lshlrev_b32 v2, 3, v0
v_lshlrev_b32 v3, 2, v0
v_lshlrev_b32 v34, 1, v0
v_mov_b32 v35, 0
ds_write_b32 v3, v35
v_lshrrev_b32 v35, 6, v0
s_mul_i32 s4, s2, {TILE*4}
s_mul_i32 s5, s2, {TILE*2}
s_mul_i32 s6, s2, {TS}
v_readfirstlane_b32 s3, v35
s_mul_i32 s7, s2, {E//NWG*2}
s_lshl_b32 s8, s2, 10
s_mov_b32 s9, {PT*16}
s_mov_b32 s10, {PT*32}
s_mov_b32 s11, {PT*8}
v_cmp_gt_u32 vcc, {PT}, v0
s_waitcnt lgkmcnt(0)
s_load_dword s24, s[20:21], 0
""")
    srd(e, 28, 18, 19, TILE * 4, "s4")
    if o["probe"]:
        e(f"""
s_mov_b32 s72, 0
s_cmp_lg_u32 s3, 0
s_cbranch_scc1 LP_noprobe
s_mul_i32 s62, s2, 21846
s_lshr_b32 s62, s62, 16
s_mul_i32 s63, s62, 3
s_sub_u32 s63, s2, s63
s_add_u32 s74, s22, {64 << 20}
s_addc_u32 s75, s23, 0
s_cmp_eq_u32 s63, 0
s_cselect_b32 s68, s26, s74
s_cselect_b32 s69, s27, s75
s_cmp_eq_u32 s63, 2
s_cselect_b32 s68, s76, s68
s_cselect_b32 s69, s77, s69
s_mov_b32 s70, {8 << 20}
s_mov_b32 s71, 0x20000
s_and_b32 s62, s62, 1
s_lshl_b32 s62, s62, 13
s_lshl_b32 s63, s2, 14
s_add_u32 s62, s62, s63
v_mov_b32 v90, s62
s_xor_b32 s62, s62, 8192
v_mov_b32 v91, s62
s_mov_b64 exec, 1
buffer_load_dword v92, v90, s[68:71], 0 offen {o["probe_fl"]}
buffer_load_dword v93, v91, s[68:71], 0 offen {o["probe_fl"]}
LP_noprobe:
{"s_barrier" if o["probe"] == 2 else ""}
""")
    e(f"""
s_mov_b64 exec, vcc
buffer_load_dwordx4 v[{JI}:{JI+3}], v1, s[28:31], 0 offen {fl}
buffer_load_dwordx4 v[{JI+4}:{JI+7}], v1, s[28:31], s9 offen {fl}
buffer_load_dwordx2 v[{JI+8}:{JI+9}], v2, s[28:31], s10 offen {fl}
""")
    if o["probe"]:
        e(f"""
s_cmp_lg_u32 s3, 0
s_cbranch_scc1 LP_noprobe2
s_waitcnt vmcnt(4) lgkmcnt(0)
s_memtime s[72:73]
s_waitcnt vmcnt(3)
s_memtime s[74:75]
s_waitcnt lgkmcnt(0)
s_sub_u32 s72, s74, s72
LP_noprobe2:
s_getreg_b32 s73, hwreg(HW_REG_XCC_ID)
""")
    srd(e, 32, 16, 17, TILE * 4, "s4")
    srd(e, 36, 14, 15, TILE * 2, "s5")
    srd(e, 48, 12, 13, E // NWG * 2, "s7")

    def rest_loads():
        e(f"""
buffer_load_ushort v{VD}, v34, s[48:51], 0 offen
buffer_load_dwordx4 v[{KJ}:{KJ+3}], v1, s[32:35], 0 offen {fl}
buffer_load_dwordx2 v[{TH}:{TH+1}], v2, s[36:39], 0 offen {fl}
buffer_load_dwordx4 v[{KJ+4}:{KJ+7}], v1, s[32:35], s9 offen {fl}
buffer_load_dwordx2 v[{TH+2}:{TH+3}], v2, s[36:39], s11 offen {fl}
buffer_load_dwordx2 v[{KJ+8}:{KJ+9}], v2, s[32:35], s10 offen {fl}
buffer_load_dword v{TH+4}, v3, s[36:39], s9 offen {fl}
""")
    if not o["jifirst"]:
        rest_loads()
    npf = o["pf1"]

    def prefetch(start, n):
        srd(e, 56, 26, 27, E * 256)
        e(f"s_lshl_b32 s60, s2, 14\ns_add_u32 s60, s60, {start * NWG * 16384}")
        for i in range(n):
            e(f"buffer_load_dwordx4 v[{PFD}:{PFD+3}], v1, s[56:59], s60 offen\ns_add_u32 s60, s60, {NWG*16384}")
    srd(e, 40, 22, 23, TS, "s6")
    e(f"s_add_u32 s8, s8, {WS_OFF}")
    srd(e, 44, 22, 23, NBK * 4, "s8")
    e(f"s_add_u32 s7, s7, {WS_RAD}")
    srd(e, 52, 22, 23, E // NWG * 2, "s7")
    e(f"s_add_u32 s7, s7, {E*2}")
    srd(e, 64, 22, 23, E // NWG * 2, "s7")
    e(f"""
s_mov_b32 s25, 0x380
s_mov_b32 s61, 0xf8
v_mov_b32 v35, 4
s_barrier
""")
    if o["jifirst"]:
        e(f"s_waitcnt vmcnt({o['jifirst'] - 1})")
        rest_loads()
    for k in range(10):
        if k in (0, 4, 8):
            e(f"s_waitcnt vmcnt({9 - k // 4})")
        if o["oside"]:
            e(f"v_lshrrev_b32 v{U+k}, 8, v{JI+k}\nv_xor_b32 v{U+k}, v{U+k}, v{JI+k}")
        e(f"""
v_lshlrev_b32 v{U+k}, 2, v{U+k if o["oside"] else JI+k}
v_lshrrev_b32 v{HA+k}, 6, v{JI+k}
v_bfi_b32 v{HA+k}, s25, v{U+k}, v{HA+k}
v_and_b32 v{HA+k}, 0x3fc, v{HA+k}
ds_add_rtn_u32 v{RK+k}, v{HA+k}, v35 offset:{P_HIST}
""")
    def low_bits():
        for k in range(10):
            e(f"""
v_lshl_add_u32 v{U+k}, v{JI+k}, 23, v{JI+k}
v_lshrrev_b32 v{JI+k}, 10, v{JI+k}
v_add_u32 v{U+k}, v{U+k}, v{U+k}
v_and_b32 v{U+k}, 0x1c000006, v{U+k}
v_and_or_b32 v{U+k}, v{JI+k}, s61, v{U+k}
""")
    if not o["ulate"]:
        low_bits()
    e("s_waitcnt lgkmcnt(0)\ns_barrier")
    stamp(e, o, ST + 1)
    e(f"""
v_and_b32 v{S+12}, 63, v0
v_lshlrev_b32 v{S+12}, 4, v{S+12}
s_cmp_lg_u32 s3, 0
s_cbranch_scc1 LP_noscan
s_setprio 3
ds_read_b128 v[{S}:{S+3}], v{S+12} offset:{P_HIST}
s_waitcnt lgkmcnt(0)
""")
    for k in range(4):
        e(f"v_add_u32 v{S+8+k}, {4*PAD-4}, v{S+k}\nv_and_b32 v{S+8+k}, {-4*PAD}, v{S+8+k}")
    e(f"""
v_add_u32 v{S+9}, v{S+8}, v{S+9}
v_add_u32 v{S+10}, v{S+9}, v{S+10}
v_add_u32 v{S+11}, v{S+10}, v{S+11}
v_mov_b32 v{S+13}, v{S+11}
""")
    wave_scan(e, S + 13)
    e(f"""
v_sub_u32 v{S+4}, v{S+13}, v{S+11}
v_add_u32 v{S+5}, v{S+4}, v{S+8}
v_add_u32 v{S+6}, v{S+4}, v{S+9}
v_add_u32 v{S+7}, v{S+4}, v{S+10}
ds_write_b128 v{S+12}, v[{S+4}:{S+7}] offset:{P_OFF}
""")
    for k in range(4):
        e(f"v_add_u32 v{S+k}, v{S+k}, v{S+4+k}\nv_lshrrev_b32 v{S+4+k}, 2, v{S+4+k}\nv_lshl_or_b32 v{S+k}, v{S+k}, 14, v{S+4+k}")
    if o["ulate"]:
        e("s_waitcnt lgkmcnt(0)\ns_barrier\ns_setprio 0")
        low_bits()
        e("s_branch LP_offs\nLP_noscan:")
        low_bits()
        e("s_barrier\nLP_offs:")
    else:
        e("LP_noscan:\ns_waitcnt lgkmcnt(0)\ns_barrier\ns_setprio 0")
    for k in range(10):
        e(f"ds_read_b32 v{HA+k}, v{HA+k} offset:{P_OFF}")
    for k in range(10):
        e(f"s_waitcnt lgkmcnt({9-k})\nv_add_u32 v{HA+k}, v{HA+k}, v{RK+k}\nv_lshrrev_b32 v{RK+k}, 1, v{HA+k}")
    stamp(e, o, ST + 2)
    for k in range(10):
        if k in (0, 4, 8):
            e(f"s_waitcnt vmcnt({4 - k // 2})")
        e(f"""
v_lshl_or_b32 v{KJ+k}, v{KJ+k}, 8, v{U+k}
ds_write_b32 v{HA+k}, v{KJ+k} offset:{P_REC}
ds_write_b16{'_d16_hi' if k & 1 else ''} v{RK+k}, v{TH+k//2} offset:{P_REC+T_OFF}
""")
    e(f"""
s_lshl_b32 s24, s24, 16
v_lshlrev_b32 v{VD}, 16, v{VD}
v_mul_f32 v{S+8}, s24, v{VD}
v_cvt_pk_bf16_f32 v{S+8}, v{S+8}, v{S+8}
v_lshlrev_b32 v{S+8}, 16, v{S+8}
v_mul_f32 v{S+9}, {hex(C_HI)}, v{S+8}
v_fract_f32 v{S+9}, v{S+9}
v_fmac_f32 v{S+9}, {hex(C_LO)}, v{S+8}
v_sin_f32 v{S+9}, v{S+9}
v_rcp_f32 v{VD}, v{VD}
v_cvt_pk_bf16_f32 v{S+9}, v{S+9}, v{S+9}
v_lshlrev_b32 v{S+9}, 16, v{S+9}
v_mul_f32 v{S+9}, v{S+9}, v{VD}
v_cvt_pk_bf16_f32 v{S+9}, v{S+9}, v{S+9}
""")
    if npf:
        prefetch(o["pf1s"], npf)
    e(f"""
buffer_store_short v{S+9}, v34, s[52:55], 0 offen {o['aux_st']}
buffer_store_short v{S+9}, v34, s[64:67], 0 offen {o['aux_st']}
s_cmp_lg_u32 s3, 0
s_cbranch_scc1 LP_nooff
""")
    e(f"""
buffer_store_dwordx4 v[{S}:{S+3}], v{S+12}, s[44:47], 0 offen {o['aux_st']}
LP_nooff:
s_mov_b64 exec, -1
v_add_u32 v2, 16384, v1
v_add_u32 v3, 32768, v1
v_add_u32 v34, 49152, v1
{"v_add_u32 v35, 65536, v1" if NPASS > 4 else ""}
s_waitcnt lgkmcnt(0)
s_barrier
""")
    stamp(e, o, ST + 3)
    for j in range(NPASS):
        e(f"ds_read_b128 v[{4+4*j}:{7+4*j}], v{1 if j < 4 else 35} offset:{P_REC+j%4*16384}")
    for j, a in enumerate((1, 2, 3, 34, 35)[:NPASS]):
        e(f"s_waitcnt lgkmcnt({NPASS-1-j})")
        e(f"buffer_store_dwordx4 v[{4+4*j}:{7+4*j}], v{a}, s[40:43], 0 offen {o['rec_st']}")
    for _ in range(o["diagdelay"]):
        e("s_sleep 32")
    if o["pf1e"]:
        prefetch(o["pf1s"] + npf, o["pf1e"])
    if o["probe"]:
        e(f"v_mov_b32 v{ST+1}, s72\nv_mov_b32 v{ST+2}, s73")
    stamps_out(e, o, [ST, ST + 1, ST + 2, ST + 3, ST + 4], 32 << 20, 16)
    e("LP_end:\ns_endpgm")
    return e.text()


def gen_main(o):
    assert 7 * o["rot"] * CH_ROWS * 256 + (o["pf0"] + o["pf2"]) * (32 * 8192 + 16 * 4096 * o["pfgap"]) <= E * 256
    conv = o["conv"]
    assert not conv or (REG_ROWS == 4 * RPC and not o["fused"] and not o["pf3"] and not o["spf"])
    e = Asm()
    TARGET = o["target"]
    ACC, ROW = 0, 160
    FILT = ROW + G
    UNP = FILT + 16
    A = UNP + 16
    W = A + 4
    AU = W + 4
    (VPK, VNXT, VCLEAN, VTA, VTH, VRAD, VRA, VL16, VAA, VAB, VQ, VT0, VT1, VSW, VLANE, VSE) = range(AU + 8, AU + 24)
    VCUR = VPK
    assert VSE <= 255
    SI = 36
    SM = 36
    X = ROW
    VONE = VRAD
    SE0, SE1, SE2 = 30, 31, 32
    S_NIT, S_N, S_MODE = 28, 29, 35
    S_TOT, S_BASE = 100, 101
    MA, MB = 24, 26
    S_R0, S_OFF, S_SEL, S_LO, S_SPAN, S_DSRC, S_DDST, S_DLIM, S_OOW, S_PF = 44, 45, 46, 47, 48, 49, 50, 51, 52, 54
    S_OUT, S_PFN, S_K, S_DEFF, S_RR = 55, 56, 57, 58, 59

    def diecode(d):
        e(f"""
s_brev_b32 s{d}, s2
s_lshr_b32 s{d}, s{d}, 29
s_xor_b32 s{d}, s{d}, {o["opol"]}
""")

    if not o["fused"]:
        e(f"""
{MAIN}:
s_cmp_ge_u32 s2, {NBK}
s_cbranch_scc1 LM_end
s_load_dwordx2 s[4:5], s[0:1], 0
s_load_dwordx2 s[6:7], s[0:1], 88
s_load_dwordx4 s[40:43], s[0:1], 56
s_load_dwordx2 s[44:45], s[0:1], 48
""")
        stamp(e, o, VAA)
        e(f"""
v_lshrrev_b32 v{X}, 6, v0
v_and_b32 v{VLANE}, 63, v0
v_lshlrev_b32 v{X+1}, 2, v0
v_readfirstlane_b32 s3, v{X}
v_mov_b32 v{X+2}, 0
ds_write_b32 v{X+1}, v{X+2} offset:{L_HIST}
ds_write_b32 v{X+1}, v{X+2} offset:{L_HIST+2048}
ds_write_b32 v{X+1}, v{X+2} offset:{L_ZERO}
s_and_b32 s33, s2, 7
s_lshr_b32 s34, s2, 3
s_lshl_b32 s{S_TOT}, s34, 13
""")
        if o["pfgap"]:
            e(f"s_lshr_b32 s28, s34, 1\ns_mul_i32 s28, s28, {o['pfgap'] * 4096}\ns_add_u32 s{S_TOT}, s{S_TOT}, s28")
        if conv:
            e(f"""
s_lshl_b32 s28, s33, 1
s_lshl_b32 s28, 13, s28
s_lshr_b32 s29, s28, 2
s_cmp_ge_u32 s33, 1
s_cselect_b32 s{S_BASE}, s29, 0
s_lshl_b32 s28, s28, 14
s_cmp_le_u32 s33, 2
s_cselect_b32 s28, s28, 0
s_or_b32 s{S_BASE}, s{S_BASE}, s28
""")
        else:
            e(f"s_lshr_b32 s{S_BASE}, s33, {o['rotsh']}\ns_mul_i32 s{S_BASE}, s{S_BASE}, {o['rot']}")
        if o["oside"]:
            diecode(33)
        e(f"""
s_lshl_b32 s33, s33, 5
s_add_u32 s34, s34, s33
v_and_b32 v{X+3}, 15, v{VLANE}
v_lshlrev_b32 v{VQ}, 4, v{X+3}
v_lshrrev_b32 v{X+4}, 5, v{VLANE}
v_lshrrev_b32 v{X+11}, 4, v{VLANE}
v_and_b32 v{X+5}, 7, v{VLANE}
v_lshl_add_u32 v{X+5}, v{X+5}, 2, v{X+11}
s_lshl_b32 s33, s3, 15
s_lshl_b32 s34, s34, 2
s_add_u32 s33, s33, s34
v_lshl_add_u32 v{X+6}, v{X+5}, 10, s33
s_waitcnt lgkmcnt(0)
""")
        srd(e, 24, 6, 7, NWG * 1024, WS_OFF)
        e(f"buffer_load_dword v{VSE}, v{X+6}, s[24:27], 0 offen")
        srd(e, 8, 4, 5, o["hz"] if o["hz"] else (E * 256 + (42 << 20) if o["numa"] else E * 256))
        srd(e, 16, 6, 7, NWG * TS)
        srd(e, 20, 6, 7, RAD_BYTES, WS_RAD)
        e(f"""
v_lshlrev_b32 v{VL16}, 4, v{VLANE}
{f"s_and_b32 s5, s{S_BASE}, 1" if conv else ""}
s_mul_i32 s5, {"s5" if conv else f"s{S_BASE}"}, {(REG_ROWS if conv else CH_ROWS)*256}
s_lshl_b32 s4, s3, 10
s_add_u32 s4, s4, s5
s_add_u32 s{S_TOT}, s4, s{S_TOT}
""")
    else:
        e(f"""
{MAIN}:
s_cmp_ge_u32 s2, {NBK}
s_cbranch_scc1 LM_end
s_load_dwordx8 s[68:75], s[0:1], 8
s_load_dwordx2 s[4:5], s[0:1], 0
s_load_dwordx4 s[76:79], s[0:1], 72
s_load_dwordx2 s[6:7], s[0:1], 88
s_load_dwordx4 s[40:43], s[0:1], 56
s_load_dwordx4 s[44:47], s[0:1], 40
""")
        stamp(e, o, VAA)
        e(f"""
v_lshrrev_b32 v{X}, 6, v0
v_and_b32 v{VLANE}, 63, v0
v_lshlrev_b32 v{X+1}, 2, v0
v_readfirstlane_b32 s3, v{X}
v_lshlrev_b32 v1, 4, v0
v_lshlrev_b32 v2, 3, v0
v_lshlrev_b32 v3, 1, v0
v_mov_b32 v{X+2}, 0
ds_write_b32 v{X+1}, v{X+2} offset:{L_SEG}
ds_write_b32 v{X+1}, v{X+2} offset:{L_HIST}
ds_write_b32 v{X+1}, v{X+2} offset:{L_HIST+2048}
ds_write_b32 v{X+1}, v{X+2} offset:{L_ZERO}
s_and_b32 s33, s2, 7
s_lshr_b32 s34, s2, 3
s_lshl_b32 s{S_TOT}, s34, 13
s_lshr_b32 s{S_BASE}, s33, {o["rotsh"]}
s_mul_i32 s{S_BASE}, s{S_BASE}, {o["rot"]}
v_and_b32 v{X+3}, 15, v{VLANE}
v_lshlrev_b32 v{VQ}, 4, v{X+3}
v_lshrrev_b32 v{X+4}, 5, v{VLANE}
v_lshrrev_b32 v{X+11}, 4, v{VLANE}
v_and_b32 v{X+5}, 7, v{VLANE}
v_lshl_add_u32 v{X+5}, v{X+5}, 2, v{X+11}
s_lshl_b32 s33, s3, 5
v_add_u32 v{X+5}, s33, v{X+5}
s_lshl_b32 s33, s2, 11
v_lshl_add_u32 v{X+6}, v{X+5}, 3, s33
v_subrev_u32 v{X+26}, {NWG}, v{X+5}
v_ashrrev_i32 v{X+26}, 31, v{X+26}
v_lshlrev_b32 v{VL16}, 4, v{VLANE}
s_mul_i32 s33, s{S_BASE}, {CH_ROWS*256}
s_lshl_b32 s34, s3, 10
s_add_u32 s33, s33, s34
s_add_u32 s{S_TOT}, s33, s{S_TOT}
s_waitcnt lgkmcnt(0)
s_mov_b64 s[76:77], s[44:45]
s_mov_b64 s[44:45], s[46:47]
""")
        srd(e, 8, 4, 5, o["hz"] if o["hz"] else E * 256)
        srd(e, 16, 6, 7, NWG * TS)
        srd(e, 20, 6, 7, RAD_BYTES, WS_RAD)
    pfop = f"buffer_load_dwordx4 v[{X+24}:{X+27}], v{VL16}, s[8:11], s{S_TOT} offen\ns_add_u32 s{S_TOT}, s{S_TOT}, {32*8192 + 16*4096*o['pfgap']}"

    def prefill():
        for base, per, val in ((L_REC, LCAP * 4, F_DUMMY | ((E - 1) << 8) if o["dummyrow"] else DUMMY_REC), (L_TH, LCAP * 2, 0)):
            e(f"s_mul_i32 s4, s3, {per}\ns_add_u32 s4, s4, {base}\nv_lshl_add_u32 v{VT0}, v{VLANE}, 4, s4")
            r = A if val else UNP
            for k in range(4):
                e(f"v_mov_b32 v{r+k}, {hex(val)}")
            n = per // 1024
            for k in range(n):
                e(f"ds_write_b128 v{VT0}, v[{r}:{r+3}] offset:{1024*k}")
            rest = per % 1024 // 16
            if rest:
                assert rest <= 32
                e(f"s_mov_b64 exec, {hex((1 << rest) - 1) if rest < 32 else '0xffffffff'}")
                if rest == 32:
                    e("s_mov_b32 exec_hi, 0")
                e(f"ds_write_b128 v{VT0}, v[{r}:{r+3}] offset:{1024*n}\ns_mov_b64 exec, -1")
    def self_slots(r0, th):
        if o["oside"]:
            diecode(4)
        e(f"""
{"s_and_b32 s33, s2, -8" if o["oside"] else ""}
s_lshl_b32 s33, {"s33" if o["oside"] else "s2"}, 5
s_lshl_b32 s34, s3, 2
s_add_u32 s33, s33, s34
s_lshl_b32 s34, s3, 26
s_or_b32 s34, s34, {hex(F_SELF)}
v_mov_b32 v{th}, 0
""")
        for k in range(2):
            e(f"""
v_add_u32 v{VT0}, {64*k}, v{VLANE}
v_lshrrev_b32 v{VT1}, 2, v{VT0}
{f"v_xor_b32 v{r0+k}, s4, v{VT1}" if o["oside"] else ""}
{f"v_and_b32 v{r0+k}, 7, v{r0+k}" if o["oside"] else ""}
v_mul_u32_u24 v{VT1}, {STRIDE_ROWS}, v{VT1}
{f"v_lshl_add_u32 v{VT1}, v{r0+k}, 5, v{VT1}" if o["oside"] else ""}
v_and_b32 v{r0+k}, 3, v{VT0}
v_add3_u32 v{VT1}, v{VT1}, v{r0+k}, s33
v_lshl_or_b32 v{r0+k}, v{VT1}, 7, v{VT0}
v_lshlrev_b32 v{r0+k}, 1, v{r0+k}
v_or_b32 v{r0+k}, s34, v{r0+k}
""")
        e(f"s_cmp_lt_u32 s2, {FULL_BK}\ns_cselect_b32 s34, 16, 12\ns_bfm_b32 s34, s34, 0")
    FR, FT, FX, FS, FA, FK = 0, 32, 48, 52, 56, 92

    def w_loads():
        e(f"s_load_dwordx2 s[{SE0}:{SE0+1}], s[44:45], 0")
        srd(e, 12, 40, 41, 768)
        srd(e, 36, 42, 43, 256)
        e(f"""
v_bfe_u32 v{X+7}, v{VLANE}, 4, 1
v_lshl_add_u32 v{X+7}, v{X+7}, 1, v{X+4}
v_lshl_add_u32 v{X+7}, v{X+7}, 1, v{VQ}
buffer_load_ushort v{W}, v{X+7}, s[12:15], 0 offen
buffer_load_ushort v{FILT}, v{X+7}, s[12:15], 0 offen offset:256
buffer_load_ushort v{W+1}, v{X+7}, s[12:15], 0 offen offset:512
buffer_load_ushort v{FILT+1}, v{X+7}, s[36:39], 0 offen
buffer_load_ushort v{W+2}, v{X+7}, s[12:15], 0 offen offset:8
buffer_load_ushort v{FILT+2}, v{X+7}, s[12:15], 0 offen offset:264
buffer_load_ushort v{W+3}, v{X+7}, s[12:15], 0 offen offset:520
buffer_load_ushort v{FILT+3}, v{X+7}, s[36:39], 0 offen offset:8
""")

    def sweep_consts():
        e(f"""
v_and_b32 v{X+8}, 1, v{VLANE}
v_cmp_eq_u32 s[4:5], v{X+8}, v{X+4}
v_bfe_u32 v{X+9}, v{VLANE}, 2, 1
v_cmp_eq_u32 vcc, 0, v{X+9}
s_and_b64 s[{MA}:{MA+1}], s[4:5], vcc
s_andn2_b64 s[{MB}:{MB+1}], s[4:5], vcc
v_bfe_u32 v{X+10}, v{VLANE}, 1, 1
v_lshlrev_b32 v{X+8}, 4, v{X+8}
v_mov_b32 v{X+12}, 0x3f80
v_lshlrev_b32 v{X+8}, v{X+8}, v{X+12}
v_sub_u32 v{X+12}, v{X+11}, v{X+10}
v_bfe_u32 v{X+13}, v{VLANE}, 2, 2
v_lshl_add_u32 v{X+13}, v{X+12}, 2, v{X+13}
""")
        for u in range(2):
            for r in range(4):
                e(f"v_cmp_eq_u32 vcc, {8*u+r}, v{X+13}\ns_nop 1\nv_cndmask_b32 v{AU+4*u+r}, 0, v{X+8}, vcc")

    def extra_slots():
        e(f"""
v_lshrrev_b32 v{X+16}, 16, v{VSE}
v_and_b32 v{X+17}, 0xffff, v{VSE}
v_sub_u32 v{X+16}, v{X+16}, v{X+17}
v_cmp_lt_u32 s[4:5], 64, v{X+16}
s_mov_b64 s[12:13], 0
s_mov_b64 s[14:15], 0
s_and_b32 s4, s4, 0x00ff00ff
s_and_b32 s5, s5, 0x00ff00ff
s_cmp_eq_u64 s[4:5], 0
s_cbranch_scc1 LM_noextra
v_mov_b32 v{X+17}, 128
v_cmp_gt_u32 vcc, v{X+16}, v{X+17}
s_bcnt1_i32_b64 s6, s[4:5]
s_cmp_gt_u32 s6, 2
s_cselect_b32 s{S_MODE}, 1, 0
s_cmp_lg_u64 vcc, 0
s_cselect_b32 s{S_MODE}, 1, s{S_MODE}
""")
        for k in range(2):
            if k:
                e("s_cmp_eq_u64 s[4:5], 0\ns_cbranch_scc1 LM_noextra")
            e(f"""
s_ff1_i32_b64 s6, s[4:5]
s_bitset0_b64 s[4:5], s6
v_readlane_b32 s7, v{VSE}, s6
s_and_b32 s34, s6, 7
s_lshr_b32 s6, s6, 4
s_lshl_b32 s34, s34, 2
s_add_u32 s6, s6, s34
s_mul_i32 s6, s6, {TS}
s_add_u32 s6, s6, s33
s_and_b32 s34, s7, 0xffff
s_lshr_b32 s7, s7, 16
s_add_u32 s34, s34, 64
v_add_u32 v{X+17}, s34, v{VLANE}
v_cmp_gt_u32 s[{12+2*k}:{13+2*k}], s7, v{X+17}
v_lshlrev_b32 v{X+18}, 2, v{X+17}
v_lshlrev_b32 v{X+17}, 1, v{X+17}
v_add_u32 v{X+17}, {T_OFF}, v{X+17}
s_mov_b64 exec, s[{12+2*k}:{13+2*k}]
buffer_load_dword v{FX+2*k}, v{X+18}, s[16:19], s6 offen
buffer_load_ushort v{FX+2*k+1}, v{X+17}, s[16:19], s6 offen
s_mov_b64 exec, -1
""")

    def seg_loads(i, so="s33"):
        t, en, ta = X + 16 + 3 * (i & 1), X + 17 + 3 * (i & 1), X + 18 + 3 * (i & 1)
        m = SM + 8 * i
        e(f"""
v_mov_b32_dpp v{t}, v{VSE} row_newbcast:{i} row_mask:0xf bank_mask:0xf
v_lshrrev_b32 v{en}, 16, v{t}
v_and_b32 v{t}, 0xffff, v{t}
v_add_u32 v{t}, v{t}, v{X+14}
v_sub_u32 v{en}, v{en}, v{t}
v_cmp_lt_i32 s[{m}:{m+1}], 0, v{en}
v_lshl_add_u32 v{ta}, v{t}, 1, v{X+13}
v_lshl_add_u32 v{t}, v{t}, 2, v{X+15}
v_cmp_lt_i32 s[{m+2}:{m+3}], 1, v{en}
v_cmp_lt_i32 s[{m+4}:{m+5}], 2, v{en}
v_cmp_lt_i32 s[{m+6}:{m+7}], 3, v{en}
s_mov_b64 exec, s[{m}:{m+1}]
buffer_load_dwordx4 v[{FR+4*i}:{FR+4*i+3}], v{t}, s[16:19], {so} offen {o['seg_ld']}
buffer_load_dwordx2 v[{FT+2*i}:{FT+2*i+1}], v{ta}, s[16:19], {so} offen {o['seg_ld']}
s_mov_b64 exec, -1
{f"s_add_u32 s33, s33, {4*TS}" if so == "s33" else ""}
""")

    def seg_consts():
        e(f"""
v_lshlrev_b32 v{X+14}, 2, v{X+3}
v_mul_u32_u24 v{X+15}, {TS}, v{X+11}
v_add_u32 v{X+13}, {T_OFF}, v{X+15}
v_mov_b32 v{VONE}, 4
""")

    def ell_consts():
        e(f"""
s_lshl_b32 s{SE2}, s{SE1}, 16
s_and_b32 s{SE1}, s{SE0}, 0xffff0000
s_lshl_b32 s{SE0}, s{SE0}, 16
""")

    def w_merge():
        for i in range(4):
            e(f"v_lshl_or_b32 v{W+i}, v{FILT+i}, 16, v{W+i}")

    def setexec(m):
        if m == "all":
            e("s_mov_b64 exec, -1")
        elif m == "lo16":
            e("s_mov_b32 exec_lo, s34\ns_mov_b32 exec_hi, 0")
        else:
            e(f"s_mov_b64 exec, s[{m}:{m+1}]")

    def phase1(slots, close=True):
        for (m, r, th, hi, a, k, wait) in slots:
            if wait is not None:
                e(f"s_waitcnt vmcnt({wait})")
            setexec(m)
            e(f"""
v_lshrrev_b32 v{a}, {KEY_SHIFT-2}, v{r}
v_and_b32 v{a}, {hex(NW*NBIN*4-4)}, v{a}
ds_add_rtn_u32 v{k}, v{a}, v{VONE} offset:{L_HIST}
""")
        e("s_mov_b64 exec, -1")
        if close:
            e("s_waitcnt vmcnt(0) lgkmcnt(0)\ns_barrier")

    fast = [("all", FS, FS + 2, 0, FA, FK, None), ("lo16", FS + 1, FS + 2, 0, FA + 1, FK + 1, None)]
    for i in range(8):
        for j in range(4):
            n = len(fast)
            fast.append((SM + 8 * i + 2 * j, FR + 4 * i + j, FT + 2 * i + j // 2, j & 1, FA + n, FK + n, 15 - 2 * i if j == 0 else None))
    fast += [(12, FX, FX + 1, 0, FA + 34, FK + 34, 0 if o["fused"] else None), (14, FX + 2, FX + 3, 0, FA + 35, FK + 35, None)]

    if not o["fused"]:
        w_loads()
        if o["segpf"]:
            share = TILE // 8 + 16
            e(f"""
{"s_barrier" if o["segpf"] == 1 else ""}
s_and_b32 s4, s2, 7
s_mul_i32 s4, s4, {share}
s_max_u32 s4, s4, 64
s_sub_u32 s4, s4, 64
s_and_b32 s33, s2, -8
s_add_u32 s33, s33, s3
s_min_u32 s33, s33, {NWG-1}
s_mul_i32 s33, s33, {TS}
s_lshl_b32 s5, s4, 1
s_add_u32 s5, s5, s33
s_add_u32 s5, s5, {T_OFF}
s_lshl_b32 s4, s4, 2
s_add_u32 s4, s4, s33
""")
            for k in range(6):
                e(f"buffer_load_dwordx4 v[128:131], v{VL16}, s[16:19], s4 offen offset:{1024*(k%4)}")
                if k == 3:
                    e("s_add_u32 s4, s4, 4096")
            for k in range(3):
                e(f"buffer_load_dwordx4 v[128:131], v{VL16}, s[16:19], s5 offen offset:{1024*k}")
        if o["pf0"]:
            e("s_barrier")
        for _ in range(o["pf0"]):
            e(pfop)
        if o["ilv"]:
            lag = o["ilv"]
            group = lambda i, w: [sl[:6] + (w if j == 0 else None,) for j, sl in enumerate(fast[2 + 4 * i:6 + 4 * i])]
            prefill()
            seg_consts()
            e(f"s_mul_i32 s33, s3, {32*TS}\ns_mov_b32 s{S_MODE}, 0\ns_waitcnt vmcnt(8)")
            if o["ss"]:
                stamp(e, o, VAB)
            extra_slots()
            e("LM_noextra:")
            for i in range(8):
                seg_loads(i)
                if i == lag:
                    e("s_barrier")
                if i >= lag:
                    phase1(group(i - lag, 2 * lag + 1), close=False)
            if o["ss"]:
                stamp(e, o, VCUR)
            self_slots(FS, FS + 2)
            phase1(fast[:2], close=False)
            for i in range(8 - lag, 8):
                phase1(group(i, 15 - 2 * i), close=False)
            e("s_waitcnt lgkmcnt(0)")
            ell_consts()
        else:
            prefill()
            seg_consts()
            e(f"s_mul_i32 s33, s3, {32*TS}\ns_mov_b32 s{S_MODE}, 0\ns_waitcnt vmcnt({o['pf0'] + 8 + (9 if o['segpf'] else 0)})")
            if o["ss"]:
                stamp(e, o, VAB)
            extra_slots()
            e("LM_noextra:")
            for i in range(8):
                seg_loads(i)
            if o["ss"]:
                stamp(e, o, VCUR)
            sweep_consts()
            self_slots(FS, FS + 2)
            e("s_waitcnt lgkmcnt(0)")
            ell_consts()
            e("s_barrier")
    else:
        NE = TILE // 512
        NP = NE // 4
        JI, KJ, TH, VD, U, HA, RK, S = 4, 24, 44, 54, 56, 76, 96, 116
        VN, VFOUR, VR, VE2 = 132, 133, 134, 136
        PS = L_RING
        assert TILE == 512 * NE and NE == 20 and TS <= RBYTES + 128 and PS + T_OFF < 65536
        fl = o["in_flags"]
        so16 = ["0", "s80", "s81", "s82", "s83"]
        so8 = ["0", "s84", "s80", "s85", "s81"]
        srd(e, 60, 78, 79, 4)
        e(f"""
s_load_dword s86, s[76:77], 0
s_mul_i32 s4, s2, {TILE*4}
s_mov_b32 s80, 8192
s_mov_b32 s81, 16384
s_mov_b32 s82, 24576
s_mov_b32 s83, 32768
s_mov_b32 s84, 4096
s_mov_b32 s85, 12288
""")
        srd(e, 48, 74, 75, TILE * 4, "s4")
        w_loads()
        e(f"s_cmp_ge_u32 s2, {NWG}\ns_cbranch_scc1 LF_noji")
        for p in range(NP):
            e(f"buffer_load_dwordx4 v[{JI+4*p}:{JI+4*p+3}], v1, s[48:51], {so16[p]} offen {fl}")
        e(f"""
s_or_b32 s5, s2, s3
s_cmp_lg_u32 s5, 0
s_cbranch_scc1 LF_noji
s_memrealtime s[28:29]
s_waitcnt lgkmcnt(0)
s_or_b32 s28, s28, 1
v_mov_b32 v{S}, s28
v_mov_b32 v{S+1}, 0
s_mov_b64 exec, 1
buffer_store_dword v{S}, v{S+1}, s[60:63], 0 offen sc1
s_mov_b64 exec, -1
LF_noji:
""")
        srd(e, 52, 72, 73, TILE * 4, "s4")
        e(f"s_mul_i32 s5, s2, {TILE*2}")
        srd(e, 56, 70, 71, TILE * 2, "s5")
        e(f"s_mul_i32 s5, s2, {E//NWG*2}")
        srd(e, 64, 68, 69, E // NWG * 2, "s5")
        e(f"s_add_u32 s5, s5, {WS_RAD}")
        srd(e, 92, 16, 17, E // NWG * 2, "s5")
        e(f"s_add_u32 s5, s5, {E*2}")
        srd(e, 96, 16, 17, E // NWG * 2, "s5")
        e(f"s_mul_i32 s5, s2, {TS}")
        srd(e, 88, 16, 17, TS, "s5")
        srd(e, 12, 16, 17, NBK * 2048, WS_OFF)
        if o["touch"]:
            e(f"buffer_load_dwordx2 v[{X+24}:{X+25}], v{X+6}, s[12:15], 0 offen sc1")
        prefill()
        sweep_consts()
        seg_consts()
        e(f"""
v_mov_b32 v{VN}, 0
v_mov_b32 v{VFOUR}, 4
v_add_u32 v{VE2}, 1024, v3
s_mov_b32 s87, 0x380
s_mov_b32 s47, 0xf8
s_mov_b32 s34, {o["tmo"]}
s_waitcnt lgkmcnt(0)
""")
        ell_consts()
        e(f"""
s_barrier
s_cmp_lt_u32 s2, {NWG}
s_cbranch_scc1 LF_prod
s_waitcnt vmcnt(0)
""")
        w_merge()
        e(f"""
s_branch LF_nonce
LF_prod:
s_waitcnt vmcnt({o["fji"]})
buffer_load_ushort v{VD}, v3, s[64:67], 0 offen
buffer_load_ushort v{VD+1}, v{VE2}, s[64:67], 0 offen
""")
        for p in range(NP):
            e(f"buffer_load_dwordx4 v[{KJ+4*p}:{KJ+4*p+3}], v1, s[52:55], {so16[p]} offen {fl}")
            e(f"buffer_load_dwordx2 v[{TH+2*p}:{TH+2*p+1}], v2, s[56:59], {so8[p]} offen {fl}")
        e(f"""
s_cmp_lg_u32 s3, 0
s_cbranch_scc1 LF_nora
buffer_load_dword v{VN}, v{VN}, s[60:63], 0 offen sc1
LF_nora:
""")
        w_merge()
        for k in range(NE):
            if k % 4 == 0:
                e(f"s_waitcnt vmcnt({2*NP + 2 + NP - 1 - k//4})")
            e(f"""
v_lshlrev_b32 v{U+k}, 2, v{JI+k}
v_lshrrev_b32 v{HA+k}, 6, v{JI+k}
v_bfi_b32 v{HA+k}, s87, v{U+k}, v{HA+k}
v_and_b32 v{HA+k}, 0x3fc, v{HA+k}
ds_add_rtn_u32 v{RK+k}, v{HA+k}, v{VFOUR} offset:{L_SEG}
""")
        for k in range(NE):
            e(f"""
v_lshl_add_u32 v{U+k}, v{JI+k}, 23, v{JI+k}
v_lshrrev_b32 v{JI+k}, 10, v{JI+k}
v_add_u32 v{U+k}, v{U+k}, v{U+k}
v_and_b32 v{U+k}, 0x1c000006, v{U+k}
v_and_or_b32 v{U+k}, v{JI+k}, s47, v{U+k}
""")
        e(f"""
s_waitcnt lgkmcnt(0)
s_barrier
s_cmp_lg_u32 s3, 0
s_cbranch_scc1 LF_noscan
s_setprio 3
ds_read_b128 v[{S}:{S+3}], v{VL16} offset:{L_SEG}
s_waitcnt lgkmcnt(0)
""")
        for k in range(4):
            e(f"v_add_u32 v{S+8+k}, 4, v{S+k}\nv_and_b32 v{S+8+k}, -8, v{S+8+k}")
        e(f"""
v_add_u32 v{S+9}, v{S+8}, v{S+9}
v_add_u32 v{S+10}, v{S+9}, v{S+10}
v_add_u32 v{S+11}, v{S+10}, v{S+11}
v_mov_b32 v{S+13}, v{S+11}
""")
        wave_scan(e, S + 13)
        e(f"""
v_sub_u32 v{S+4}, v{S+13}, v{S+11}
v_add_u32 v{S+5}, v{S+4}, v{S+8}
v_add_u32 v{S+6}, v{S+4}, v{S+9}
v_add_u32 v{S+7}, v{S+4}, v{S+10}
ds_write_b128 v{VL16}, v[{S+4}:{S+7}] offset:{L_P}
""")
        for k in range(4):
            e(f"v_add_u32 v{S+k}, v{S+k}, v{S+4+k}\nv_lshrrev_b32 v{S+8+k}, 2, v{S+4+k}\nv_lshl_or_b32 v{S+k}, v{S+k}, 14, v{S+8+k}")
        e(f"""
ds_write_b128 v{VL16}, v[{S}:{S+3}] offset:{L_Q}
LF_noscan:
s_waitcnt lgkmcnt(0)
s_barrier
s_setprio 0
""")
        for h in range(2):
            for k in range(10 * h, 10 * h + 10):
                e(f"ds_read_b32 v{HA+k}, v{HA+k} offset:{L_P}")
            for k in range(10 * h, 10 * h + 10):
                e(f"s_waitcnt lgkmcnt({10*h+9-k})\nv_add_u32 v{HA+k}, v{HA+k}, v{RK+k}\nv_lshrrev_b32 v{RK+k}, 1, v{HA+k}")
        for k in range(NE):
            if k % 4 == 0:
                e(f"s_waitcnt vmcnt({2*NP - 2 - k//2})")
            e(f"""
v_lshl_or_b32 v{KJ+k}, v{KJ+k}, 8, v{U+k}
ds_write_b32 v{HA+k}, v{KJ+k} offset:{PS}
ds_write_b16{'_d16_hi' if k & 1 else ''} v{RK+k}, v{TH+k//2} offset:{PS+T_OFF}
""")
        e("s_lshl_b32 s86, s86, 16")
        for k in range(2):
            r, d = VR + k, VD + k
            e(f"""
v_lshlrev_b32 v{d}, 16, v{d}
v_mul_f32 v{S+8}, s86, v{d}
v_cvt_pk_bf16_f32 v{S+8}, v{S+8}, v{S+8}
v_lshlrev_b32 v{S+8}, 16, v{S+8}
v_mul_f32 v{r}, {hex(C_HI)}, v{S+8}
v_fract_f32 v{r}, v{r}
v_fmac_f32 v{r}, {hex(C_LO)}, v{S+8}
v_sin_f32 v{r}, v{r}
v_rcp_f32 v{d}, v{d}
v_cvt_pk_bf16_f32 v{r}, v{r}, v{r}
v_lshlrev_b32 v{r}, 16, v{r}
v_mul_f32 v{r}, v{r}, v{d}
v_cvt_pk_bf16_f32 v{r}, v{r}, v{r}
buffer_store_short v{r}, v{(3, VE2)[k]}, s[92:95], 0 offen sc1
buffer_store_short v{r}, v{(3, VE2)[k]}, s[96:99], 0 offen sc1
""")
        e(f"""
LF_nonce:
s_cmp_lg_u32 s3, 0
s_cbranch_scc1 LF_haven
LF_noncepoll:
v_readfirstlane_b32 s4, v{VN}
s_cmp_lg_u32 s4, 0
s_cbranch_scc1 LF_gotn
s_sub_u32 s34, s34, 1
s_cbranch_scc1 LM_end
s_sleep 2
buffer_load_dword v{VN}, v{VN}, s[60:63], 0 offen sc1
s_waitcnt vmcnt(0)
s_branch LF_noncepoll
LF_gotn:
v_mov_b32 v{S}, 0
ds_write_b32 v{S}, v{VN} offset:{L_N+32}
LF_haven:
v_add_u32 v2, 32768, v1
v_mov_b32 v{S}, 0
s_waitcnt lgkmcnt(0)
s_barrier
ds_read_b32 v{X+27}, v{S} offset:{L_N+32}
s_cmp_ge_u32 s2, {NWG}
s_cbranch_scc1 LF_cons
""")
        if not o["ss"]:
            stamp(e, o, VAB)
        for j in range(8):
            e(f"ds_read_b128 v[{4+4*j}:{7+4*j}], v{1 if j < 4 else 2} offset:{PS+(j%4)*8192}")
        e(f"ds_read_b32 v{S}, v{X+1} offset:{L_Q}\nv_add_u32 v3, 57344, v1")
        for j in range(8):
            e(f"s_waitcnt lgkmcnt({8-j})")
            if j < 4:
                e(f"buffer_store_dwordx4 v[{4+4*j}:{7+4*j}], v1, s[88:91], {so16[j]} offen {o['rec_st']}")
            elif j < 7:
                e(f"buffer_store_dwordx4 v[{4+4*j}:{7+4*j}], v2, s[88:91], {so16[j-4]} offen {o['rec_st']}")
            else:
                e(f"buffer_store_dwordx4 v[{4+4*j}:{7+4*j}], v3, s[88:91], 0 offen {o['rec_st']}")
        e(f"""
v_lshrrev_b32 v{S+2}, 7, v{X+1}
v_bfe_u32 v{S+3}, v{X+1}, 2, 5
v_lshl_add_u32 v{S+2}, v{S+3}, 3, v{S+2}
s_lshl_b32 s4, s2, 3
v_lshl_add_u32 v{S+2}, v{S+2}, 11, s4
s_waitcnt lgkmcnt(0)
v_mov_b32 v{S+1}, v{X+27}
s_waitcnt vmcnt(0)
s_barrier
s_cmp_ge_u32 s3, 4
s_cbranch_scc1 LF_cons
""")
        if o["early"]:
            e(f"""
buffer_load_dwordx2 v[{X+24}:{X+25}], v{X+6}, s[12:15], 0 offen sc1
buffer_store_dwordx2 v[{S}:{S+1}], v{S+2}, s[12:15], 0 offen sc1
s_waitcnt vmcnt(1)
s_branch LF_polled
""")
        else:
            e(f"buffer_store_dwordx2 v[{S}:{S+1}], v{S+2}, s[12:15], 0 offen sc1")
        e("LF_cons:")
        if o["ss"]:
            stamp(e, o, VAB)

        def poll(label=""):
            e(f"""
buffer_load_dwordx2 v[{X+24}:{X+25}], v{X+6}, s[12:15], 0 offen sc1
s_waitcnt vmcnt(0) lgkmcnt(0)
{label}
v_xor_b32 v{X+25}, v{X+25}, v{X+27}
v_and_b32 v{VSE}, v{X+24}, v{X+26}
v_and_b32 v{X+25}, v{X+25}, v{X+26}
v_cmp_ne_u32 s[28:29], 0, v{X+25}
s_or_b32 s28, s28, s29
""")
        poll("LF_polled:")
        e(f"s_mul_i32 s33, s3, {32*TS}\ns_mov_b32 s{S_MODE}, 0")
        if o["dyn"]:
            e("s_mov_b32 s5, 0xff\ns_mov_b32 s6, 0\nLF_round:\ns_mov_b32 s7, 0\ns_lshr_b32 s29, s28, 16\ns_or_b32 s28, s28, s29\ns_andn2_b32 s28, s5, s28")
            for i in range(8):
                e(f"s_bitcmp1_b32 s28, {i}\ns_cbranch_scc0 LF_nreq{i}\ns_add_u32 s4, s33, {4*TS*i}")
                seg_loads(i, "s4")
                e(f"LF_nreq{i}:")
            e("s_and_b32 s7, s28, 0xff\ns_andn2_b32 s5, s5, s7\nLF_count:")
            for i in range(8):
                e(f"s_bitcmp1_b32 s6, {i}\ns_cbranch_scc0 LF_ncnt{i}")
                phase1([sl[:6] + (None,) for sl in fast[2 + 4 * i:6 + 4 * i]], close=False)
                e(f"LF_ncnt{i}:")
            e(f"""
s_mov_b32 s6, s7
s_mov_b32 s7, 0
s_cmp_lg_u32 s5, 0
s_cbranch_scc1 LF_again
s_cmp_eq_u32 s6, 0
s_cbranch_scc1 LF_counted
s_waitcnt vmcnt(0)
s_branch LF_count
LF_again:
s_sub_u32 s34, s34, 1
s_cbranch_scc1 LM_end
{f"s_sleep {o['slp']}" if o["slp"] else ""}
""")
            poll()
            e("s_branch LF_round\nLF_counted:")
        else:
            for i in range(8):
                e(f"""
LF_wait{i}:
s_and_b32 s4, s28, {hex(0x10001 << i)}
s_cbranch_scc0 LF_go{i}
s_sub_u32 s34, s34, 1
s_cbranch_scc1 LM_end
{f"s_sleep {o['slp']}" if o["slp"] else ""}
""")
                poll()
                e(f"s_branch LF_wait{i}\nLF_go{i}:")
                seg_loads(i)
        if o["ss"]:
            stamp(e, o, VCUR)
            if o["stamps"]:
                e(f"v_mov_b32 v{VCLEAN}, s34")
        e(f"s_mul_i32 s33, s3, {32*TS}")
        extra_slots()
        e("LM_noextra:")
        self_slots(FS, FS + 2)

    def phase2(slots, side=(), lead=4):
        ops = []
        n = len(slots)
        side = list(side)
        for s in range(n + lead):
            if s < n:
                m, r, th, hi, a, k, _ = slots[s]
                setexec(m)
                e(f"ds_read_b32 v{a}, v{a} offset:{L_HIST}")
                ops.append(("A", s))
            if side and s % 2 == 1:
                e("s_mov_b64 exec, -1")
                e(side.pop(0))
            if s >= lead:
                m, r, th, hi, a, k, _ = slots[s - lead]
                younger = len(ops) - 1 - ops.index(("A", s - lead))
                assert younger <= 15
                setexec(m)
                e(f"""
s_waitcnt lgkmcnt({younger})
v_add_u32 v{a}, v{a}, v{k}
ds_write_b32 v{a}, v{r} offset:{L_REC - 2*CBIAS}
v_lshrrev_b32 v{k}, 1, v{a}
ds_write_b16{"_d16_hi" if hi else ""} v{k}, v{th} offset:{L_TH - CBIAS}
""")
                ops += [("W", s - lead), ("T", s - lead)]
        e("s_mov_b64 exec, -1")
        assert not side

    def scan_exchange(flagged):
        e(f"s_lshl_b32 s4, s3, 9\nv_mov_b32 v{X+7}, {NBIN-1}")
        for k in range(2):
            e(f"""
v_lshl_add_u32 v{X+4+k}, v{VLANE}, 1, {k}
""")
            if conv and flagged:
                e(f"""
v_mul_u32_u24 v{X+6}, 37, v{X+4+k}
v_lshrrev_b32 v{X+6}, 7, v{X+6}
v_and_b32 v{X+6}, 62, v{X+6}
v_bfe_i32 v{X+6}, s{S_BASE}, v{X+6}, 2
v_cmp_gt_u32 vcc, {NCH}, v{X+4+k}
v_mad_i32_i24 v{X+k}, v{X+6}, {REG_CH}, v{X+4+k}
s_nop 0
""")
            else:
                e(f"""
{f"v_add_u32 v{X+k}, s{S_BASE}, v{X+4+k}" if flagged else f"v_mov_b32 v{X+k}, v{X+4+k}"}
v_subrev_u32 v{X+6}, {NCH}, v{X+k}
v_cmp_gt_u32 vcc, {NCH}, v{X+4+k}
v_min_u32 v{X+k}, v{X+k}, v{X+6}
s_nop 0
""")
            e(f"""
v_cndmask_b32 v{X+k}, v{X+7}, v{X+k}, vcc
v_lshl_add_u32 v{X+k}, v{X+k}, 2, s4
ds_read_b32 v{X+2+k}, v{X+k} offset:{L_HIST}
""")
        e(f"""
s_mul_i32 s5, s3, {LCAP*4}
s_add_u32 s5, s5, {2*CBIAS}
s_waitcnt lgkmcnt(0)
v_add_u32 v{X+3}, v{X+2}, v{X+3}
v_mov_b32 v{X+6}, v{X+3}
""")
        wave_scan(e, X + 6)
        e(f"""
v_sub_u32 v{X+3}, v{X+6}, v{X+3}
v_readlane_b32 s{S_N}, v{X+6}, 63
v_add_u32 v{X+3}, s5, v{X+3}
v_add_u32 v{X+2}, v{X+3}, v{X+2}
s_lshr_b32 s{S_N}, s{S_N}, 2
s_mov_b32 s6, s{S_N}
""")
        if flagged:
            e(f"""
s_max_u32 s6, s6, {TARGET}
s_sub_u32 s7, s6, s{S_N}
s_mul_i32 s7, s7, {M_STRETCH}
v_mul_u32_u24 v{X+4}, s7, v{X+4}
v_mul_u32_u24 v{X+5}, s7, v{X+5}
v_lshrrev_b32 v{X+4}, 16, v{X+4}
v_lshrrev_b32 v{X+5}, 16, v{X+5}
v_lshl_add_u32 v{X+3}, v{X+4}, 2, v{X+3}
v_lshl_add_u32 v{X+2}, v{X+5}, 2, v{X+2}
s_cmp_lg_u32 s{S_MODE}, 0
s_cselect_b32 s6, 0x7fffffff, s6
""")
        e(f"""
ds_write_b32 v{X}, v{X+3} offset:{L_HIST}
ds_write_b32 v{X+1}, v{X+2} offset:{L_HIST}
s_lshl_b32 s4, s3, 2
v_mov_b32 v{X+4}, s4
v_mov_b32 v{X+5}, s6
ds_write_b32 v{X+4}, v{X+5} offset:{L_N}
v_mov_b32 v{X+6}, 0
s_waitcnt lgkmcnt(0)
s_barrier
ds_read_b128 v[{X}:{X+3}], v{X+6} offset:{L_N}
ds_read_b128 v[{X+8}:{X+11}], v{X+6} offset:{L_N+16}
s_waitcnt lgkmcnt(0)
v_max3_u32 v{X}, v{X}, v{X+1}, v{X+2}
v_max3_u32 v{X+3}, v{X+3}, v{X+8}, v{X+9}
v_max3_u32 v{X}, v{X}, v{X+10}, v{X+11}
v_max_u32 v{X}, v{X}, v{X+3}
s_nop 0
v_readfirstlane_b32 s{S_NIT}, v{X}
""")

    if not o["ss"] and not o["fused"]:
        stamp(e, o, VAB)
    phase1(fast[34:] if o["ilv"] else fast[:2] + fast[34:] if o["fused"] and o["dyn"] else fast)
    if not o["fused"]:
        w_merge()
    stamp(e, o, VNXT if o["ss"] else VCUR)
    scan_exchange(True)
    if not o["ss"]:
        stamp(e, o, VNXT)
    e(f"""
s_cmp_gt_u32 s{S_NIT}, {LCAP}
s_cbranch_scc1 LM_slow
""")
    if conv:
        e(f"""
s_bfe_i32 s6, s{S_BASE}, 0x20000
s_bfe_i32 s33, s{S_BASE}, 0x20002
s_sub_u32 s33, s33, s6
s_mul_i32 s6, s6, {REG_ROWS*2}
s_mul_i32 s33, s33, {REG_ROWS*2}
""")
    else:
        e(f"s_mul_i32 s6, s{S_BASE}, {CH_ROWS*2}")
    e(f"""
s_mul_i32 s4, s3, {RPW}
s_add_u32 s6, s6, s4
s_add_u32 s7, s4, {L_RING}
""")
    side = [f"""
s_mov_b32 exec_hi, {hex((1 << (RPW // 16 - 32)) - 1)}
s_mov_b32 m0, s7
s_add_u32 s7, s7, {RPC*2}
buffer_load_dwordx4 v{VL16}, s[20:23], s6 offen lds
s_add_u32 s6, s6, {RPC*2}
"""] * (RH0 // RPC)
    if conv:
        assert 4 < RH0 // RPC <= 8
        side[3] += "s_add_u32 s6, s6, s33\n"
    side += [pfop] * o["pf2"]
    if o["ilv"]:
        main_e, e = e, Asm()
        e(f"v_lshrrev_b32 v{X+4}, 5, v{VLANE}\nv_lshrrev_b32 v{X+11}, 4, v{VLANE}")
        sweep_consts()
        late, e = e.l, main_e
        cuts = [0, 15, 27, len(late)]
        side += ["\n".join(late[cuts[k]:cuts[k + 1]]) for k in range(3)]
    phase2(fast, side)

    e(f"""
LM_tail:
s_load_dwordx2 s[12:13], s[0:1], 72
s_add_u32 s{S_NIT}, s{S_NIT}, {G-1}
s_and_b32 s{S_NIT}, s{S_NIT}, {-G}
s_mul_i32 s5, s3, {LCAP*4}
{f"s_mov_b32 s{S_R0}, s{S_BASE}" if conv else f"s_mul_i32 s{S_R0}, s{S_BASE}, {CH_ROWS}"}
s_cmp_lg_u32 s{S_MODE}, 0
s_cselect_b32 s{S_R0}, 0, s{S_R0}
s_cselect_b32 s{S_SPAN}, 0, {RROWS - 64 - RPC}
s_mov_b32 s{S_LO}, {RH0 + RPC + 64 - RROWS}
s_mov_b32 s{S_OFF}, {(2 * (RH0 + RPC) + 128) % RBYTES}
s_mov_b32 s{S_SEL}, 0x0c040c00
s_mul_i32 s4, s3, {RPW}
s_add_u32 s{S_DLIM}, s4, {L_RING + RBYTES}
s_add_u32 s{S_DDST}, s4, {L_RING + 2 * RH0}
{f"s_mov_b32 s{S_DSRC}, 0" if conv else f"s_lshl_b32 s{S_DSRC}, s{S_R0}, 1"}
s_add_u32 s{S_DSRC}, s{S_DSRC}, s4
s_add_u32 s{S_DSRC}, s{S_DSRC}, {2 * RH0}
""")
    if conv:
        e(f"""
s_mov_b32 s{S_K}, {RH0 // RPC}
s_bfe_i32 s{S_DEFF}, s{S_R0}, {hex(0x20000 + 2 * (RH0 // RPC // 4))}
s_mul_i32 s{S_DEFF}, s{S_DEFF}, {REG_ROWS*2}
s_add_u32 s{S_DEFF}, s{S_DEFF}, s{S_DSRC}
s_mov_b32 s{S_RR}, {REG_ROWS}
""")
    if o["spf"]:
        e(f"""
s_lshl_b32 s{S_PF}, s2, 3
s_add_u32 s{S_PF}, s{S_PF}, s3
s_mul_i32 s{S_PF}, s{S_PF}, {SPW}
s_add_u32 s{S_PF}, s{S_PF}, {o["spf"] * 256}
""")
    if o["pf3"]:
        e(f"s_sub_u32 s{S_PF}, s{S_TOT}, {32*8192}\ns_cmp_lg_u32 s{S_MODE}, 0\ns_cselect_b32 s{S_PF}, 0, s{S_PF}")
    e(f"""
v_lshlrev_b32 v{VL16}, 4, v{VLANE}
v_and_b32 v{X}, 15, v{VLANE}
v_lshrrev_b32 v{X+1}, 4, v{VLANE}
v_lshl_add_u32 v{X}, v{X}, 2, v{X+1}
s_lshr_b32 s6, s5, 1
s_add_u32 s5, s5, {L_REC}
s_add_u32 s6, s6, {L_TH}
v_lshl_add_u32 v{VRA}, v{X}, 2, s5
v_lshl_add_u32 v{VTA}, v{X}, 1, s6
s_lshl_b32 s4, s3, 10
s_add_u32 s4, s4, {L_STG}
v_lshl_add_u32 v{VSW}, v{X}, 3, s4
v_bfe_u32 v{X}, v{VLANE}, 3, 2
v_bfe_u32 v{X+1}, v{VLANE}, 1, 1
v_lshl_add_u32 v{X}, v{X}, 1, v{X+1}
v_lshl_add_u32 v{X}, v{X}, 3, s4
{f"s_and_b32 s{S_OUT}, s2, -8" if o["oside"] else f"s_mov_b32 s{S_OUT}, s2"}
s_lshl_b32 s{S_OUT}, s{S_OUT}, 5
s_lshl_b32 s4, s3, 2
s_add_u32 s{S_OUT}, s{S_OUT}, s4
s_lshl_b32 s{S_OUT}, s{S_OUT}, 8
s_mov_b32 s14, {E*256}
s_mov_b32 s15, 0x20000
s_waitcnt vmcnt({o["pf2"]}) lgkmcnt(0)
s_barrier
""")

    if o["stamps"]:
        for k, r in enumerate((VAA, VAB, VCUR, VNXT)):
            e(f"v_readfirstlane_b32 s{92+k}, v{r}")
        stamp(e, o, VAA)
        e(f"s_nop 0\nv_readfirstlane_b32 s96, v{VAA}\ns_mov_b32 s97, 0")
        if o["fused"] and o["ss"]:
            e(f"v_readfirstlane_b32 s97, v{VCLEAN}\ns_sub_u32 s97, {o['tmo']}, s97")
        if o["cyc"]:
            e("s_memtime s[98:99]\ns_waitcnt lgkmcnt(0)")

    def readA(b):
        e(f"ds_read_b64 v[{A}:{A+1}], v{VAA} offset:{b*64}\nds_read_b64 v[{A+2}:{A+3}], v{VAB} offset:{b*64}")

    def filt():
        if "m" not in o["drop"]:
            e(f"v_mfma_f32_32x32x16_bf16 v[{FILT}:{FILT+15}], v[{A}:{A+3}], v[{W}:{W+3}], 0")

    def loads(rb, lane):
        for i, t in enumerate((VT0, VT1)):
            e(f"v_or_b32_dpp v{t}, v{VCLEAN}, v{VQ} row_newbcast:{lane+i} row_mask:0xf bank_mask:0xf")
            e(f"buffer_load_dwordx4 v[{ROW+rb*8+4*i}:{ROW+rb*8+4*i+3}], v{t}, s[8:11], 0 offen {o['row_ld']}")

    def clean():
        e(f"v_and_b32 v{VCLEAN}, {hex(ROWMASK)}, v{VNXT}")
        if o["numa"]:
            e(f"""
s_lshr_b32 s4, s2, 2
s_xor_b32 s4, s4, {o["pol"]}
s_lshl_b32 s4, s4, 13
v_lshrrev_b32 v{VT0}, 8, v{VCLEAN}
v_xor_b32 v{VT0}, v{VT0}, v{VCLEAN}
v_xor_b32 v{VT0}, s4, v{VT0}
v_bfe_i32 v{VT0}, v{VT0}, 13, 1
v_bfe_u32 v{VT1}, v{VCLEAN}, 14, 3
v_subrev_u32 v{VT1}, {o["numa"]}, v{VT1}
v_ashrrev_i32 v{VT1}, 31, v{VT1}
v_and_b32 v{VT0}, v{VT0}, v{VT1}
v_and_b32 v{VT0}, {42 << 20}, v{VT0}
v_add_u32 v{VCLEAN}, v{VCLEAN}, v{VT0}
v_ashrrev_i32 v{VT0}, 31, v{VNXT}
v_bfe_i32 v{VT1}, v{VNXT}, 30, 1
v_xor_b32 v{VT0}, v{VT0}, v{VT1}
v_and_b32 v{VT0}, 0x70000000, v{VT0}
v_or_b32 v{VCLEAN}, v{VCLEAN}, v{VT0}
s_nop 1
""")

    def next_records(off):
        e(f"ds_read_b32 v{VNXT}, v{VRA} offset:{off*4}\nds_read_u16 v{VTH}, v{VTA} offset:{off*2}")

    def pack():
        e(f"""
v_mov_b32_dpp v{VPK}, v{VNXT} row_shl:1 row_mask:0xf bank_mask:0xf
v_perm_b32 v{VPK}, v{VPK}, v{VNXT}, s{S_SEL}
v_or_b32 v{VPK}, 0xc000c000, v{VPK}
""")

    def lookup():
        e(f"""
v_bfe_u32 v{VT0}, v{VNXT}, 8, 18
""")
        if conv:
            e(f"""
v_mul_hi_u32_u24 v{VT1}, {M_REG}, v{VT0}
v_add_u32 v{VT1}, v{VT1}, v{VT1}
v_bfe_i32 v{VT1}, s{S_R0}, v{VT1}, 2
v_mad_i32_i24 v{VT0}, v{VT1}, s{S_RR}, v{VT0}
""")
        else:
            e(f"""
v_subrev_u32 v{VT0}, s{S_R0}, v{VT0}
v_add_u32 v{VT1}, {E}, v{VT0}
v_min_u32 v{VT0}, v{VT0}, v{VT1}
""")
        e(f"""
v_subrev_u32 v{VT0}, s{S_LO}, v{VT0}
v_lshl_add_u32 v{VT1}, v{VT0}, 1, s{S_OFF}
v_cmp_le_u32 s[{S_OOW}:{S_OOW+1}], s{S_SPAN}, v{VT0}
v_subrev_u32 v{VT0}, {RBYTES}, v{VT1}
v_min_u32 v{VT1}, v{VT0}, v{VT1}
v_cmp_le_i32 vcc, {hex(F_SELF)}, v{VNXT}
ds_read_u16 v{VRAD}, v{VT1} offset:{L_RING}
s_and_b64 s[{S_OOW}:{S_OOW+1}], s[{S_OOW}:{S_OOW+1}], vcc
""")

    def fallback(label, wait=True):
        e(f"""
s_cmp_eq_u64 s[{S_OOW}:{S_OOW+1}], 0
s_cbranch_scc1 {label}
s_waitcnt lgkmcnt(0)
s_mov_b64 exec, s[{S_OOW}:{S_OOW+1}]
v_bfe_u32 v{VRAD}, v{VNXT}, 8, 18
v_lshlrev_b32 v{VRAD}, 1, v{VRAD}
buffer_load_ushort v{VRAD}, v{VRAD}, s[20:23], 0 offen
s_mov_b64 exec, -1
{"s_waitcnt vmcnt(0)" if wait else ""}
{"s_add_u32 s97, s97, 1" if o["stamps"] and not o["cyc"] else ""}
{label}:
""")

    def ring_dma():
        e(f"s_mov_b32 m0, s{S_DDST}\ns_add_u32 s{S_DDST}, s{S_DDST}, {RPC*2}")
        e(f"buffer_load_dwordx4 v{VL16}, s[20:23], s{S_DEFF if conv else S_DSRC} offen lds")

    def ring_advance():
        if conv:
            e(f"""
s_add_u32 s{S_K}, s{S_K}, 1
s_lshr_b32 s5, s{S_K}, 1
s_and_b32 s5, s5, 30
s_or_b32 s5, s5, 0x20000
s_bfe_i32 s5, s{S_R0}, s5
s_mul_i32 s5, s5, {REG_ROWS*2}
""")
        e(f"""
s_cmp_ge_u32 s{S_DDST}, s{S_DLIM}
s_cselect_b32 s4, {RBYTES}, 0
s_sub_u32 s{S_DDST}, s{S_DDST}, s4
s_add_u32 s{S_DSRC}, s{S_DSRC}, {RPC*2}
{f"s_add_u32 s{S_DEFF}, s{S_DSRC}, s5" if conv else ""}
""")

    def window_advance():
        e(f"""
s_add_u32 s{S_LO}, s{S_LO}, {2*RPC}
s_add_u32 s{S_OFF}, s{S_OFF}, {4*RPC}
s_cmp_ge_u32 s{S_OFF}, {RBYTES}
s_cselect_b32 s4, {RBYTES}, 0
s_sub_u32 s{S_OFF}, s{S_OFF}, s4
""")

    J = (VTH, VSE, VLANE)
    t = UNP

    jl = o["jl"]

    def jit_angles():
        if jl >= 3:
            e(f"""
v_lshlrev_b32 v{J[0]}, 16, v{VTH}
v_mul_f32 v{t}, 0x40400000, v{J[0]}
v_cvt_pk_bf16_f32 v{t}, v{t}, v{t}
v_and_b32 v{J[2]}, 0xffff0000, v{t}
""")
            return
        e(f"""
v_lshlrev_b32 v{VTH}, 16, v{VTH}
v_mul_f32 v{t}, s{SE0}, v{VTH}
v_mul_f32 v{t+1}, s{SE1}, v{VTH}
v_mul_f32 v{t+2}, s{SE2}, v{VTH}
v_cvt_pk_bf16_f32 v{t+1}, v{t}, v{t+1}
v_cvt_pk_bf16_f32 v{t+2}, v{t+2}, v{t+2}
v_lshlrev_b32 v{J[0]}, 16, v{t+1}
v_and_b32 v{J[1]}, 0xffff0000, v{t+1}
v_and_b32 v{J[2]}, 0xffff0000, v{t+2}
""")

    KS = (0, 2) if jl >= 3 else (0, 1, 2)

    def jit_reduce():
        if jl >= 1:
            for k in KS:
                e(f"v_mul_f32 v{J[k]}, 0.15915494, v{J[k]}")
            for k in KS:
                e(f"v_fract_f32 v{J[k]}, v{J[k]}")
            return
        for k in KS:
            e(f"v_mul_f32 v{t+k}, {hex(C_HI)}, v{J[k]}")
        for k in KS:
            e(f"v_fract_f32 v{t+k}, v{t+k}")
        for k in KS:
            e(f"v_fmamk_f32 v{J[k]}, v{J[k]}, {hex(C_LO)}, v{t+k}")

    def jit_cos():
        for k in KS:
            e(f"v_cos_f32 v{J[k]}, v{J[k]}")
        if jl >= 3:
            e(f"v_add_f32 v{J[1]}, v{J[0]}, v{J[0]}\nv_fma_f32 v{J[1]}, v{J[1]}, v{J[0]}, -1.0")
        if jl < 2:
            e(f"""
s_nop 0
v_cvt_pk_bf16_f32 v{J[1]}, v{J[0]}, v{J[1]}
v_cvt_pk_bf16_f32 v{J[2]}, v{J[2]}, v{J[2]}
""")

    def jit_store():
        e(f"""
v_lshlrev_b32 v{VRAD}, 16, v{VRAD}
v_ashrrev_i32 v{t+3}, 31, v{VNXT}
v_bfe_i32 v{t+4}, v{VNXT}, 30, 1
v_bfi_b32 v{t+3}, v{t+3}, 0, v{VRAD}
v_and_b32 v{t+4}, v{t+4}, v{VRAD}
""")
        if jl < 2:
            e(f"""
v_lshlrev_b32 v{J[0]}, 16, v{J[1]}
v_and_b32 v{J[1]}, 0xffff0000, v{J[1]}
v_and_b32 v{J[2]}, 0xffff0000, v{J[2]}
""")
        e(f"""
v_mul_f32 v{t}, v{J[0]}, v{t+3}
v_mul_f32 v{t+1}, v{J[1]}, v{t+3}
v_mul_f32 v{t+2}, v{J[2]}, v{t+3}
v_cvt_pk_bf16_f32 v{t}, v{t}, v{t+1}
v_cvt_pk_bf16_f32 v{t+1}, v{t+2}, v{t+4}
ds_write_b64 v{VSW}, v[{t}:{t+1}]
v_xor_b32 v{VSW}, 512, v{VSW}
""")

    def jit_scale():
        assert jl < 2
        e(f"""
v_lshlrev_b32 v{VRAD}, 16, v{VRAD}
v_ashrrev_i32 v{t+3}, 31, v{VNXT}
v_bfe_i32 v{t+4}, v{VNXT}, 30, 1
v_lshlrev_b32 v{J[0]}, 16, v{J[1]}
v_bfi_b32 v{t+3}, v{t+3}, 0, v{VRAD}
v_and_b32 v{J[1]}, 0xffff0000, v{J[1]}
v_and_b32 v{J[2]}, 0xffff0000, v{J[2]}
v_and_b32 v{VRAD}, v{t+4}, v{VRAD}
v_mul_f32 v{J[0]}, v{J[0]}, v{t+3}
v_mul_f32 v{J[1]}, v{J[1]}, v{t+3}
v_mul_f32 v{J[2]}, v{J[2]}, v{t+3}
""")

    def jit_write():
        e(f"""
v_cvt_pk_bf16_f32 v{t}, v{J[0]}, v{J[1]}
v_cvt_pk_bf16_f32 v{t+1}, v{J[2]}, v{VRAD}
ds_write_b64 v{VSW}, v[{t}:{t+1}]
v_xor_b32 v{VSW}, 512, v{VSW}
""")

    NBS = 2 * NB

    def lanes(b):
        for g in range(4):
            e(f"v_readlane_b32 s{SI+g}, v{VPK}, {16*g+2*b}")

    def ahead():
        e(f"s_add_u32 s{S_PF}, s{S_PF}, {32*8192}\ns_mov_b32 m0, {L_TRASH}\nv_add_u32 v{VT0}, s{S_PF}, v{VL16}")
        e(f"buffer_load_dwordx4 v{VT0}, s[8:11], 0 offen lds")

    def batch(b, steady, pf=False):
        rb = b % NB
        last = rb == NB - 1
        if steady:
            cnt = 2 * NB - 2 if rb in (0, NB - 1) else 2 * NB - 1
            if o["spf"] and 1 <= b <= NB:
                cnt += 1
            if pf:
                cnt += NB - 1 if rb == NB - 1 else NB
            cnt -= o["shallow"]
        else:
            cnt = 2 * (NB - 1 - rb)
        def ts(k):
            if steady and b == o["seg"]:
                e(f"s_memtime s[{62+2*k}:{63+2*k}]")
        ts(0)
        e(f"s_waitcnt vmcnt({cnt})")
        if o["order"]:
            def M(i, u):
                d = UNP + 8 * i + 4 * u
                e(f"v_mfma_f32_16x16x32_bf16 v[{d}:{d+3}], v[{AU+4*u}:{AU+4*u+3}], v[{ROW+rb*8+4*i}:{ROW+rb*8+4*i+3}], 0")

            def LA(i):
                if steady:
                    e(f"v_or_b32_dpp v{(VT0, VT1)[i]}, v{VCLEAN}, v{VQ} row_newbcast:{2*((b+NB)%NBS)+i} row_mask:0xf bank_mask:0xf")

            def LL(i):
                if steady:
                    e(f"buffer_load_dwordx4 v[{ROW+rb*8+4*i}:{ROW+rb*8+4*i+3}], v{(VT0, VT1)[i]}, s[8:11], 0 offen {o['row_ld']}")

            def L(i):
                LA(i)
                LL(i)

            def R(g):
                e(f"v_readlane_b32 s{SI+g}, v{VPK}, {16*g+2*b}")
            if o["dtop"] and steady and rb == 0:
                ring_dma()
            M(0, 0)
            if steady or not last:
                readA((b + 1) % NBS)
            M(0, 1)
            if o["order"] == 1:
                if steady and rb == 0:
                    ring_dma()
                L(0)
                M(1, 0)
                R(0)
                R(1)
                M(1, 1)
                if o["prio"] == 2:
                    e("s_setprio 1")
                L(1)
                R(2)
                R(3)
            elif o["order"] >= 3:
                if steady and rb == 0 and not o["dtop"]:
                    ring_dma()
                if o["order"] in (3, 4):
                    L(0)
                else:
                    LA(0)
                M(1, 0)
                R(0)
                R(1)
                M(1, 1)
                if o["prio"] == 2:
                    e("s_setprio 1")
                LA(1)
                if o["order"] == 5:
                    LL(0)
                R(2)
                R(3)
            else:
                R(0)
                R(1)
                M(1, 0)
                R(2)
                R(3)
                M(1, 1)
                if o["prio"] == 2:
                    e("s_setprio 1")
                if steady and rb == 0:
                    ring_dma()
                L(0)
                L(1)
            if not steady:
                e("s_nop 1")
        else:
            for i in range(2):
                for u in range(2):
                    d = UNP + 8 * i + 4 * u
                    if "u" not in o["drop"]:
                        e(f"v_mfma_f32_16x16x32_bf16 v[{d}:{d+3}], v[{AU+4*u}:{AU+4*u+3}], v[{ROW+rb*8+4*i}:{ROW+rb*8+4*i+3}], 0")
            ts(1)
            if o["prio"] == 2:
                e("s_setprio 1")
            if o["prio"] == 3:
                e("s_setprio 0")
            if steady and rb == 0 and "d" not in o["drop"]:
                ring_dma()
            if steady and "l" not in o["drop"]:
                loads(rb, 2 * ((b + NB) % NBS))
                if pf:
                    ahead()
                if o["spf"] and b == 0:
                    e(f"""
s_mov_b32 m0, {L_TRASH}
v_add_u32 v{VT0}, s{S_PF}, v{VL16}
buffer_load_dwordx4 v{VT0}, s[8:11], 0 offen lds
s_add_u32 s{S_PF}, s{S_PF}, {NBK * NW * SPW}
""")
            else:
                e("s_nop 3")
        ts(2)
        if steady and (o["bb"] == 1 or (o["bb"] == 2 and rb % 2 == 1) or (o["bb"] == 3 and last)):
            e("s_barrier")
        for j in range(8):
            if j == 0:
                e(f"s_set_gpr_idx_on s{SI}, gpr_idx(SRC2,DST)")
            elif "i" in o["drop"]:
                pass
            elif j < 4:
                e(f"s_mov_b32 m0, s{SI+j}")
            else:
                e(f"s_lshr_b32 m0, s{SI+j-4}, 16")
            if j == 4 and o["order"] == 4:
                LL(1)
            if "f" in o["drop"]:
                pass
            elif o["acc"] == "pk":
                e(f"v_pk_fma_f32 v[{ACC}:{ACC+1}], v[{UNP+2*j}:{UNP+2*j+1}], v[{FILT+2*j}:{FILT+2*j+1}], v[{ACC}:{ACC+1}]")
            else:
                e(f"v_fmac_f32 v{ACC}, v{UNP+2*j}, v{FILT+2*j}\nv_fmac_f32 v{ACC+1}, v{UNP+2*j+1}, v{FILT+2*j+1}")
        e("s_set_gpr_idx_off")
        if o["order"] in (3, 5):
            LL(1)
        ts(3)
        if o["prio"] == 2:
            e("s_setprio 0")
        if o["prio"] == 3:
            e("s_setprio 1")
        if not steady and last:
            return
        e("s_waitcnt lgkmcnt(0)")
        filt()
        ts(4)
        if steady and o["seg"] >= 0 and b == o["seg"] + 1:
            for k in range(5):
                e(f"s_sub_u32 s4, s{64+2*k}, s{62+2*k}\ns_add_u32 s{76+k}, s{76+k}, s4")
        if steady and b == NBS - 2:
            e(f"v_xor_b32 v{VAA}, 512, v{VAA}\nv_xor_b32 v{VAB}, 512, v{VAB}")
        if not o["order"] and (steady or rb < NB - 2):
            readA((b + 2) % NBS)
        if steady and b == NBS - 1:
            pack()
            e(f"v_add_u32 v{VRA}, {SG*4}, v{VRA}\nv_add_u32 v{VTA}, {SG*2}, v{VTA}")
            next_records(SG)
        if not o["order"]:
            lanes((b + 1) % NBS)
        ts(5)
        if not steady:
            return
        if o["spread"]:
            assert not pf
            if b == 0:
                lookup()
                fallback("LM_inwin", wait=False)
            if rb == 1:
                ring_advance()
            if b == 1:
                jit_angles()
            if b == 2:
                jit_reduce()
                if o["spread"] == 2:
                    jit_cos()
            if b == 3:
                clean()
                if o["spread"] == 1:
                    jit_cos()
            if b == 4:
                e(f"s_waitcnt vmcnt({2*NB+1})")
                jit_scale()
            if b == 5:
                jit_write()
                window_advance()
        else:
            if rb == 0:
                ring_advance()
            if b == 0:
                lookup()
                window_advance()
                fallback("LM_inwinP" if pf else "LM_inwin", wait=False)
            if b == NB - 1:
                clean()
            if not o["nojit"]:
                piece = {1: jit_angles, 2: jit_reduce, 3: jit_cos, 4: jit_store}.get(b)
                if b == NB:
                    e(f"s_waitcnt vmcnt({2*NB+1 + (NB if pf else 0)})")
                if piece:
                    piece()

    next_records(0)
    e(f"""
v_cndmask_b32 v{VAA}, 0, v{X}, s[{MA}:{MA+1}]
v_cndmask_b32 v{VAB}, 0, v{X}, s[{MB}:{MB+1}]
s_waitcnt lgkmcnt(0)
""")
    clean()
    lookup()
    for b in range(NB):
        loads(b, 2 * b)
        if o["pf3"]:
            ahead()
    pack()
    e("s_waitcnt lgkmcnt(0)")
    fallback("LM_inwin0")
    jit_angles()
    jit_reduce()
    jit_cos()
    jit_store()
    readA(0)
    e("s_waitcnt lgkmcnt(0)")
    filt()
    next_records(SG)
    if not o["order"]:
        readA(1)
    e(f"s_cmp_lg_u32 s{S_MODE}, 0\ns_cbranch_scc1 LM_keepacc")
    for i in range(2 * DPW):
        e(f"v_mov_b32 v{ACC+i}, 0")
    e("LM_keepacc:")
    if o["seg"] >= 0:
        for k in range(5):
            e(f"s_mov_b32 s{76+k}, 0")
    if o["prio"] == 1:
        e("s_cmp_lt_u32 s3, 4\ns_cbranch_scc1 LM_prio\ns_setprio 1\nLM_prio:")
    if not o["order"]:
        lanes(0)
    e(f"s_cmp_le_u32 s{S_NIT}, {G}\ns_cbranch_scc1 LM_drainA")
    bar = "" if o["nobar"] or o["bb"] else "s_barrier"
    if o["pf3"]:
        e(f"s_mov_b32 s{S_PFN}, {o['pf3']}\nLM_loopP:")
        for b in range(NB):
            batch(b, True, True)
        e(f"s_sub_u32 s{S_NIT}, s{S_NIT}, {G}\n{bar}\ns_cmp_le_u32 s{S_NIT}, {G}\ns_cbranch_scc1 LM_drainB")
        for b in range(NB, NBS):
            batch(b, True, True)
        e(f"""
s_sub_u32 s{S_NIT}, s{S_NIT}, {G}
{bar}
s_cmp_le_u32 s{S_NIT}, {G}
s_cbranch_scc1 LM_drainA
s_sub_u32 s{S_PFN}, s{S_PFN}, 1
s_cmp_lg_u32 s{S_PFN}, 0
s_cbranch_scc1 LM_loopP
""")
    e(".p2align 6\nLM_loop:")
    for b in range(NB):
        batch(b, True)
    e(f"""
s_sub_u32 s{S_NIT}, s{S_NIT}, {G}
{'' if o['nomid'] else bar}
s_cmp_le_u32 s{S_NIT}, {G}
s_cbranch_scc1 LM_drainB
""")
    for b in range(NB, NBS):
        batch(b, True)
    e(f"""
s_sub_u32 s{S_NIT}, s{S_NIT}, {G}
{bar}
s_cmp_gt_u32 s{S_NIT}, {G}
s_cbranch_scc1 LM_loop
LM_drainA:
""")
    for b in range(NB):
        batch(b, False)
    e("s_branch LM_drained\nLM_drainB:")
    for b in range(NB, NBS):
        batch(b, False)
    e(f"LM_drained:\nv_lshrrev_b32 v{VLANE}, 4, v{VL16}")
    e(f"""
s_waitcnt lgkmcnt(0)
s_cmp_eq_u32 s{S_MODE}, 0
s_cbranch_scc1 LM_out
s_add_u32 s{S_BASE}, s{S_BASE}, {RMAX}
s_cmp_lt_u32 s{S_BASE}, s{S_TOT}
s_cbranch_scc1 LM_round
LM_out:
""")
    if o["cyc"]:
        e("s_memtime s[6:7]\ns_waitcnt lgkmcnt(0)\ns_sub_u32 s97, s6, s98")
    stamp(e, o, VAA)
    if o["oside"]:
        diecode(6)
        e("s_lshl_b32 s6, s6, 13")
    for k in range(DPW // 16):
        y0 = (UNP, ROW, ROW + 16)[k % 3]
        for i in range(4):
            for j in range(4):
                a = ACC + 32 * k + 8 * i + 2 * j
                e(f"v_cvt_pk_bf16_f32 v{y0+4*i+j}, v{a}, v{a+1}")
        for i in range(4):
            y = y0 + 4 * i
            e(f"v_permlane16_swap_b32 v{y}, v{y+1}\nv_permlane16_swap_b32 v{y+2}, v{y+3}")
        for i in range(4):
            y = y0 + 4 * i
            if 4 * k + i == DPW // 4 - 1:
                e(f"s_cmp_ge_u32 s2, {FULL_BK}\ns_cbranch_scc1 LM_stored")
            e(f"""
v_permlane32_swap_b32 v{y}, v{y+2}
v_permlane32_swap_b32 v{y+1}, v{y+3}
{f"s_xor_b32 s4, s6, {((4*k+i) & 7) << 13}" if o["oside"] else ""}
{f"s_add_u32 s4, s4, s{S_OUT}" if o["oside"] else ""}
buffer_store_dwordx4 v[{y}:{y+3}], v{VL16}, s[12:15], {"s4" if o["oside"] else f"s{S_OUT}"} offen {o['out_st']}
s_add_u32 s{S_OUT}, s{S_OUT}, {STRIDE_ROWS*256}
""")
    e("LM_stored:")
    if o["ptrs"]:
        e(f"""
s_or_b32 s4, s2, s3
s_cmp_lg_u32 s4, 0
s_cbranch_scc1 LM_end
s_load_dwordx4 s[36:39], s[0:1], 0
s_load_dwordx4 s[40:43], s[0:1], 72
s_load_dwordx2 s[44:45], s[0:1], 88
s_waitcnt lgkmcnt(0)
""")
        srd(e, 48, 42, 43, 256)
        e("v_mov_b32 v0, 0\ns_mov_b64 exec, 1")
        for k, r in enumerate((36, 37, 40, 41, 44, 45, 38, 39)):
            e(f"v_mov_b32 v1, s{r}\nbuffer_store_dword v1, v0, s[48:51], 0 offen offset:{4*k}")
    if o["stamps"]:
        for k in range(6):
            e(f"v_mov_b32 v{8+k}, s{(76 if o['seg'] >= 0 and k < 5 else 92)+k}")
    stamps_out(e, o, [8, 9, 10, 11, 12, VAA, 13, VAB], 33 << 20, NW)
    e("LM_end:\ns_endpgm")

    e(f"""
LM_slow:
""")
    if o["ilv"]:
        e(f"v_lshrrev_b32 v{X+4}, 5, v{VLANE}\nv_lshrrev_b32 v{X+11}, 4, v{VLANE}")
        sweep_consts()
    e(f"""
s_mov_b32 s{S_MODE}, 1
s_lshl_b32 s4, s3, 7
v_and_b32 v{X}, 7, v{VLANE}
v_lshrrev_b32 v{X+1}, 4, v{VLANE}
v_lshl_add_u32 v{X}, v{X}, 2, v{X+1}
v_lshl_add_u32 v{X}, v{X}, 2, s4
ds_write_b32 v{X}, v{VSE} offset:{L_SEG}
v_lshlrev_b32 v{X+1}, 4, v{VLANE}
s_waitcnt lgkmcnt(0)
s_barrier
ds_read_b128 v[{X+4}:{X+7}], v{X+1} offset:{L_SEG}
s_waitcnt lgkmcnt(0)
""")
    for k in range(4):
        e(f"""
v_lshrrev_b32 v{X+8+k}, 16, v{X+4+k}
v_and_b32 v{X+4+k}, 0xffff, v{X+4+k}
v_sub_u32 v{X+8+k}, v{X+8+k}, v{X+4+k}
""")
    e(f"""
v_add_u32 v{X+9}, v{X+8}, v{X+9}
v_add_u32 v{X+10}, v{X+9}, v{X+10}
v_add_u32 v{X+11}, v{X+10}, v{X+11}
v_mov_b32 v{X+3}, v{X+11}
""")
    wave_scan(e, X + 3)
    e(f"""
v_sub_u32 v{X+12}, v{X+3}, v{X+11}
v_readlane_b32 s{S_TOT}, v{X+3}, 63
v_add_u32 v{X+13}, v{X+12}, v{X+8}
v_add_u32 v{X+14}, v{X+12}, v{X+9}
v_add_u32 v{X+15}, v{X+12}, v{X+10}
ds_write_b128 v{X+1}, v[{X+12}:{X+15}] offset:{L_P}
""")
    for k in range(4):
        e(f"v_sub_u32 v{X+4+k}, v{X+4+k}, v{X+12+k}")
    e(f"ds_write_b128 v{X+1}, v[{X+4}:{X+7}] offset:{L_Q}")
    for i in range(2 * DPW):
        e(f"v_mov_b32 v{ACC+i}, 0")
    SR = X + 12
    STH = SR + RSLOTS + 2
    SA = STH + RSLOTS + 1
    SK = SA + RSLOTS + 2
    assert SK + RSLOTS + 2 <= ROW + G
    e(f"""
s_mov_b32 s{S_BASE}, 0
LM_round:
s_lshl_b32 s4, s3, 6
v_add_u32 v{X}, s4, v{VLANE}
v_lshlrev_b32 v{X+1}, 2, v{X}
v_mov_b32 v{X+2}, 0
v_mov_b32 v{VONE}, 4
ds_write_b32 v{X+1}, v{X+2} offset:{L_HIST}
ds_write_b32 v{X+1}, v{X+2} offset:{L_HIST+2048}
v_add_u32 v{X}, s{S_BASE}, v{X}
""")
    prefill()
    for j in range(RSLOTS):
        e(f"v_cmp_gt_u32 s[{SM+2*j}:{SM+2*j+1}], s{S_TOT}, v{X}\nv_mov_b32 v{X+3}, 0")
        for st in (128, 64, 32, 16, 8, 4, 2, 1):
            e(f"""
ds_read_b32 v{X+4}, v{X+3} offset:{L_P+4*st}
v_add_u32 v{X+5}, {4*st}, v{X+3}
s_waitcnt lgkmcnt(0)
v_cmp_le_u32 vcc, v{X+4}, v{X}
s_nop 1
v_cndmask_b32 v{X+3}, v{X+3}, v{X+5}, vcc
""")
        e(f"""
ds_read_b32 v{X+4}, v{X+3} offset:{L_Q}
v_mul_u32_u24 v{X+3}, {TS//4}, v{X+3}
s_waitcnt lgkmcnt(0)
v_add_u32 v{X+4}, v{X+4}, v{X}
v_lshl_add_u32 v{X+5}, v{X+4}, 2, v{X+3}
v_lshl_add_u32 v{X+4}, v{X+4}, 1, v{X+3}
v_add_u32 v{X+4}, {T_OFF}, v{X+4}
s_mov_b64 exec, s[{SM+2*j}:{SM+2*j+1}]
buffer_load_dword v{SR+j}, v{X+5}, s[16:19], 0 offen
buffer_load_ushort v{STH+j}, v{X+4}, s[16:19], 0 offen
s_mov_b64 exec, -1
v_add_u32 v{X}, 512, v{X}
""")
    self_slots(SR + RSLOTS, STH + RSLOTS)
    m0 = SM + 2 * RSLOTS
    e(f"""
s_cmp_eq_u32 s{S_BASE}, 0
s_cselect_b64 s[{m0}:{m0+1}], -1, 0
s_cselect_b32 s{m0+2}, s34, 0
s_mov_b32 s{m0+3}, 0
s_waitcnt vmcnt(0) lgkmcnt(0)
s_barrier
""")
    slow = [(SM + 2 * j, SR + j, STH + min(j, RSLOTS), 0, SA + j, SK + j, None) for j in range(RSLOTS + 2)]
    phase1(slow)
    scan_exchange(False)
    phase2(slow)
    e("s_branch LM_tail")
    return e.text()


def gen_pf(o):
    e = Asm()
    fl = "" if o["pre"] == "pf" else o["pre"]
    e(f"""
dn_pf_kernel:
s_cmp_ge_u32 s2, {NWG}
s_cbranch_scc1 LF_end
s_load_dwordx2 s[4:5], s[0:1], {o["presrc"]}
v_lshlrev_b32 v1, 4, v0
s_waitcnt lgkmcnt(0)
""")
    srd(e, 8, 4, 5, E * 256, o["preoff"] << 20)
    e("s_mul_i32 s4, s2, 16384")
    for i in range(10):
        e(f"buffer_load_dwordx4 v[{8+4*i}:{11+4*i}], v1, s[8:11], s4 offen {fl}\ns_add_u32 s4, s4, {250*16384}")
    e("s_waitcnt vmcnt(0)\nLF_end:\ns_endpgm")
    return e.text()


HEADER = """; DimeNet angular message passing on gfx950.
; and sweeps the source rows in ascending order so that the compute units of a die share them in L2.
"""


def kd(name, vgpr):
    return f""".p2align 6
.amdhsa_kernel {name}
  .amdhsa_next_free_vgpr {vgpr}
  .amdhsa_next_free_sgpr 102
  .amdhsa_accum_offset {vgpr}
  .amdhsa_group_segment_fixed_size 0
  .amdhsa_kernarg_size 96
  .amdhsa_user_sgpr_count 2
  .amdhsa_user_sgpr_kernarg_segment_ptr 1
  .amdhsa_system_sgpr_workgroup_id_x 1
  .amdhsa_float_denorm_mode_32 3
.end_amdhsa_kernel
"""


def generate(**kw):
    o = dict(DEFAULTS)
    o.update(kw)
    s = HEADER
    if o["fused"]:
        s += f"; @launch grid=({NBK},1,1) block=(512,1,1) lds={L_LDS}\n"
        s += '.amdgcn_target "amdgcn-amd-amdhsa--gfx950"\n.text\n'
        s += f".globl {MAIN}\n.p2align 8\n.type {MAIN},@function\n{gen_main(o)}"
        return s + '.section .rodata,"a"\n' + kd(MAIN, 256)
    if o["pre"]:
        s += f"; @launch kernel=dn_pf_kernel grid=({NWG},1,1) block=(1024,1,1) lds=0\n"
    s += f"; @launch kernel={PART} grid=({NWG},1,1) block=(1024,1,1) lds={P_LDS}\n"
    s += f"; @launch kernel={MAIN} grid=({NBK},1,1) block=(512,1,1) lds={L_LDS}\n"
    for _ in range(o["post"]):
        s += f"; @launch kernel=dn_nop_kernel grid=({NWG},1,1) block=(64,1,1) lds=0\n"
    s += '.amdgcn_target "amdgcn-amd-amdhsa--gfx950"\n.text\n'
    extra = []
    if o["pre"]:
        extra.append(("dn_pf_kernel", gen_pf(o)))
    if o["post"]:
        extra.append(("dn_nop_kernel", "dn_nop_kernel:\n    s_endpgm\n"))
    for name, body in [(PART, gen_part(o)), (MAIN, gen_main(o))] + extra:
        s += f".globl {name}\n.p2align 8\n.type {name},@function\n{body}"
    s += '.section .rodata,"a"\n' + kd(PART, 104) + kd(MAIN, 256)
    for name, _ in extra:
        s += kd(name, 64)
    return s


if __name__ == "__main__":
    out = sys.argv[1]
    kw = {}
    for a in sys.argv[2:]:
        k, v = a.split("=", 1)
        kw[k] = int(v) if v.lstrip("-").isdigit() else v.replace("_", " ")
    open(out, "w").write(generate(**kw))
```
